```python
import torch

def _softmax(x, axis=-1):
    return torch.softmax(x, dim=axis)
def _gelu(x):
    return torch.nn.functional.gelu(x, approximate="tanh")
def _silu(x):
    return torch.nn.functional.silu(x)
def _sigmoid(x):
    return torch.sigmoid(x)
def _layernorm(x, axis=-1, eps=1e-5):
    m = x.mean(dim=axis, keepdim=True)
    v = x.var(dim=axis, keepdim=True, unbiased=False)
    return (x - m) / torch.sqrt(v + eps)
def _scatter_add(tgt, idx, src, axis=0):
    return tgt.clone().index_add_(axis, idx, src)
def _segment_sum(src, seg, n):
    out = torch.zeros((n,) + src.shape[1:], dtype=src.dtype)
    return out.index_add_(0, seg, src)
def _pad(x, pw):
    flat = tuple(v for pair in reversed(pw) for v in pair)
    return torch.nn.functional.pad(x, flat)

kernel_name = 'gather_scatter__cheap_equivariant_egnn__graph'

def setup_inputs():

    _w = (lambda a: (lambda t: t.to(torch.bfloat16) if t.is_floating_point() else t)(torch.as_tensor(a)))
    N, deg, D, De = 10000, 16, 256, max(16, 1)
    E = N * deg
    return {
        "h": _w((lambda *s: torch.randn(*s, dtype=torch.bfloat16) * 0.1)(N, D)),
        "pos": _w((lambda *s: torch.randn(*s, dtype=torch.bfloat16) * 0.8)(N, 3)),
        "e_attr": _w((lambda *s: torch.randn(*s, dtype=torch.bfloat16) * 0.8)(E, De)),
        "src": _w((lambda lo, hi, *s: torch.randint(lo, hi, s))(0, N, E).to(torch.int64)),
        "dst": _w((lambda lo, hi, *s: torch.randint(lo, hi, s))(0, N, E).to(torch.int64)),
        "w_e": _w(0.1 * (lambda *s: torch.randn(*s, dtype=torch.bfloat16) * 0.8)(2 * D + 1 + De, D)),
        "w_x": _w(0.1 * (lambda *s: torch.randn(*s, dtype=torch.bfloat16) * 0.1)(D, 1)),
        "w_h": _w(0.1 * (lambda *s: torch.randn(*s, dtype=torch.bfloat16) * 0.1)(2 * D, D)),
    }

def reference(h, pos, e_attr, src, dst, w_e, w_x, w_h):
    N, D = h.shape[0], h.shape[1]
    diff = pos[dst] - pos[src]
    dist2 = torch.sum(diff * diff, axis=-1, keepdims=True)
    e_in = torch.concatenate([h[dst], h[src], dist2, e_attr], axis=-1)
    m_ij = _silu(e_in @ w_e)
    coord_scale = m_ij @ w_x
    pos_new = pos + _segment_sum(diff * coord_scale, dst, N)
    m_i = _segment_sum(m_ij, dst, N)
    h_new = h + _silu(torch.concatenate([h, m_i], axis=-1) @ w_h)
    return h_new, pos_new
```

```python
import re

REG_RE = re.compile(r'^(-?)(?:abs\()?([vsa])(?:(\d+)|\[(\d+):(\d+)\])\)?$')

def regs_of(tok):
    tok = tok.strip()
    if tok in ('vcc',): return {('s', 106), ('s', 107)}
    if tok == 'vcc_lo': return {('s', 106)}
    if tok == 'vcc_hi': return {('s', 107)}
    if tok == 'exec': return {('s', 126), ('s', 127)}
    if tok == 'exec_lo': return {('s', 126)}
    if tok == 'exec_hi': return {('s', 127)}
    if tok == 'm0': return {('s', 124)}
    m = REG_RE.match(tok)
    if not m: return set()
    c = m.group(2)
    if m.group(3) is not None: return {(c, int(m.group(3)))}
    return {(c, i) for i in range(int(m.group(4)), int(m.group(5)) + 1)}

TRANS = ('v_exp_f32', 'v_rcp_f32', 'v_log_f32', 'v_rsq_f32', 'v_sqrt_f32', 'v_sin_f32', 'v_cos_f32', 'v_rcp_iflag_f32')

class Ins:
    __slots__ = ('text', 'op', 'kind', 'wr', 'rd', 'passes', 'srcc', 'srcab', 'dpp', 'storedata', 'ws', 'islabel', 'isbranch', 'opsel')
    def __init__(self, text):
        self.text = text; self.op = ''; self.kind = 'other'; self.wr = set(); self.rd = set(); self.passes = 0
        self.srcc = set(); self.srcab = set(); self.dpp = False; self.storedata = set(); self.ws = 1
        self.islabel = False; self.isbranch = False; self.opsel = False

def split_ops(s):
    out = []; depth = 0; cur = ''
    for ch in s:
        if ch == '[' or ch == '(': depth += 1
        if ch == ']' or ch == ')': depth -= 1
        if ch == ',' and depth == 0: out.append(cur.strip()); cur = ''
        else: cur += ch
    if cur.strip(): out.append(cur.strip())
    return out

def parse(text):
    I = Ins(text)
    t = text.split(';')[0].strip()
    if not t: I.ws = 0; I.kind = 'none'; return I
    if t.endswith(':'): I.islabel = True; I.ws = 0; I.kind = 'label'; return I
    if t.startswith('.'): I.ws = 0; I.kind = 'none'; return I
    sp = t.split(None, 1)
    op = sp[0]; rest = sp[1] if len(sp) > 1 else ''
    I.op = op
    ops = split_ops(rest)
    mods = ''
    if ops:
        last = ops[-1].split()
        if len(last) > 1 and not last[0].startswith('hwreg'):
            ops[-1] = last[0]; mods = ' '.join(last[1:])
        elif len(last) == 1 and ':' in last[0] and not last[0][0] in 'vsa':
            pass
    R = [regs_of(o) for o in ops]
    def U(lst):
        s = set()
        for x in lst: s |= x
        return s
    if op == 's_nop':
        I.kind = 'salu'; I.ws = int(ops[0], 0) + 1; return I
    if op.startswith('s_cbranch') or op in ('s_branch', 's_endpgm', 's_setpc_b64'):
        I.kind = 'salu'; I.isbranch = True; return I
    if op.startswith('v_mfma'):
        I.kind = 'mfma'
        I.passes = 8 if '32x32x16' in op else (4 if '16x16x32' in op else 16)
        I.wr = R[0]; I.srcab = R[1] | R[2]; I.srcc = R[3]; I.rd = R[1] | R[2] | R[3]
        return I
    if op.startswith('v_'):
        I.kind = 'trans' if op.replace('_e32', '').replace('_e64', '') in TRANS else 'valu'
        I.dpp = ('_dpp' in op) or ('quad_perm' in mods) or ('row_' in mods)
        I.opsel = ('dst_sel:WORD' in mods) or ('dst_sel:BYTE' in mods) or ('op_sel:' in mods and not op.startswith('v_pk_'))
        I.rd |= {('s', 126), ('s', 127)}
        if op.startswith('v_cmp'):
            I.wr = R[0]; I.rd |= U(R[1:])
        elif op.startswith('v_readfirstlane') or op.startswith('v_readlane'):
            I.wr = R[0]; I.rd |= U(R[1:]); I.kind = 'readlane'
        elif op.startswith('v_permlane'):
            I.wr = R[0] | R[1]; I.rd |= R[0] | R[1]; I.kind = 'permlane'
        elif '_co_' in op:
            I.wr = R[0] | R[1]; I.rd |= U(R[2:])
        elif op.startswith('v_cndmask'):
            I.wr = R[0]; I.rd |= U(R[1:])
            if len(ops) == 3: I.rd |= regs_of('vcc')
        elif op.startswith('v_fmac') or op.startswith('v_pk_fmac') or op.startswith('v_dot2c') or op.startswith('v_writelane') or I.dpp or 'd16' in op or 'sdwa' in op and 'UNUSED_PRESERVE' in mods:
            I.wr = R[0]; I.rd |= U(R)
        else:
            I.wr = R[0]; I.rd |= U(R[1:])
        return I
    if op.startswith('ds_'):
        I.kind = 'ds'
        if op.startswith('ds_read') or '_rtn' in op or op.startswith('ds_bpermute') or op.startswith('ds_swizzle') or op.startswith('ds_permute'):
            I.wr = R[0]; I.rd = U(R[1:])
            if 'd16' in op: I.rd |= R[0]
        else:
            I.rd = U(R)
        return I
    if op.startswith('buffer_') or op.startswith('global_'):
        I.kind = 'vmem'
        islds = (' lds' in (' ' + mods)) or mods.strip() == 'lds' or 'load_lds' in op
        if islds:
            I.rd = U(R) | {('s', 124)}; I.kind = 'vmemlds'
        elif 'load' in op:
            I.wr = R[0]; I.rd = U(R[1:])
            if 'd16' in op: I.rd |= R[0]
        elif 'atomic' in op and ('sc0' in mods):
            I.wr = R[0]; I.rd = U(R)
        else:
            I.rd = U(R)
            if 'x4' in op or 'x3' in op:
                I.storedata = R[0] if op.startswith('buffer_') else R[1]
        return I
    if op.startswith('s_'):
        I.kind = 'salu'
        if op.startswith('s_cmp') or op.startswith('s_waitcnt') or op.startswith('s_barrier') or op.startswith('s_setprio') or op.startswith('s_sleep') or op.startswith('s_bitcmp'):
            I.rd = U(R)
        elif 'saveexec' in op:
            I.wr = R[0] | regs_of('exec'); I.rd = U(R[1:]) | regs_of('exec')
        else:
            I.wr = R[0]; I.rd = U(R[1:])
        return I
    raise ValueError('unparsed: ' + text)

def need(P, C):
    n = 0
    pv = P.kind in ('valu', 'trans', 'readlane', 'permlane')
    cv = C.kind in ('valu', 'trans', 'readlane', 'permlane')
    Pwv = {r for r in P.wr if r[0] in 'va'}
    Pws = {r for r in P.wr if r[0] == 's'}
    if pv:
        if C.kind == 'mfma' and (Pwv & C.rd): n = max(n, 2)
        if Pws:
            if cv and (Pws & (C.rd - {('s', 126), ('s', 127)})): n = max(n, 4 if C.kind == 'readlane' else 2)
            if C.kind in ('vmem', 'vmemlds') and (Pws & C.rd): n = max(n, 5)
            if C.kind == 'salu' and (Pws & C.rd): n = max(n, 1)
        if C.kind == 'readlane' and (Pwv & C.rd): n = max(n, 1)
        if C.kind == 'permlane' and (Pwv & C.rd): n = max(n, 2)
        if C.dpp and (Pwv & C.rd): n = max(n, 2)
        if P.kind == 'trans' and (cv or C.kind == 'mfma') and C.kind != 'trans' and (Pwv & C.rd): n = max(n, 1)
        if P.kind == 'trans' and C.kind == 'trans' and (Pwv & C.rd): n = max(n, 1)
        if P.opsel and cv and (Pwv & (C.rd | C.wr)): n = max(n, 1)
    if P.kind == 'mfma':
        big = {4: 8, 8: 12, 16: 20}[P.passes]
        if C.kind == 'mfma':
            if P.wr & C.srcab: n = max(n, big)
            if P.wr & C.srcc:
                if C.srcc == P.wr and C.passes == P.passes: pass
                else: n = max(n, big - 2)
            if (P.wr & C.wr) and not (C.srcc == P.wr and C.wr == P.wr):
                n = max(n, big)
        elif C.kind in ('valu', 'trans', 'readlane', 'permlane', 'ds', 'vmem', 'vmemlds'):
            if P.wr & (C.rd | C.wr): n = max(n, big)
            if cv and (P.srcc & C.wr): n = max(n, {4: 3, 8: 7, 16: 15}[P.passes])
    if P.kind == 'salu' and ('s', 124) in P.wr and C.kind == 'vmemlds': n = max(n, 1)
    if P.storedata and (P.storedata & C.wr): n = max(n, 2 if cv else 1)
    return n

class Asm:
    def __init__(self):
        self.lines = []
    def __call__(self, text):
        for ln in text.split('\n'):
            ln = ln.strip()
            if ln: self.lines.append(ln)
    def label(self, name): self.lines.append(name + ':')
    def comment(self, c): self.lines.append('; ' + c)
    def finalize(self, window=24):
        L = [parse(ln) for ln in self.lines]
        n = len(L)
        labels = {I.text[:-1]: i for i, I in enumerate(L) if I.islabel}
        targets = {}
        for i, I in enumerate(L):
            if I.isbranch and I.op not in ('s_endpgm', 's_setpc_b64'):
                t = I.text.split(';')[0].split()[-1]
                assert t in labels, 'unknown label ' + t
                targets.setdefault(labels[t], []).append(i)
        nb = [0] * n
        def look(j, dist, C, seen):
            req = 0
            while j >= 0 and dist < window:
                P = L[j]
                if P.islabel:
                    for b in targets.get(j, []):
                        if (b, dist) not in seen:
                            seen.add((b, dist))
                            req = max(req, look(b, dist, C, seen))
                elif P.ws:
                    if P.isbranch and P.op in ('s_branch', 's_endpgm', 's_setpc_b64') and not seen.__contains__(('entry', j, dist)) and j != seen_entry.get(id(seen), -1) and not (j, dist) in seen:
                        break
                    req = max(req, need(P, C) - dist)
                    dist += P.ws
                dist += nb[j]
                j -= 1
            return req
        seen_entry = {}
        nnop = 0
        for i, C in enumerate(L):
            if C.ws == 0 or C.isbranch: continue
            req = look(i - 1, 0, C, set())
            if req > 0:
                nb[i] = req; nnop += 1
        out = []
        for i, I in enumerate(L):
            r = nb[i]
            while r > 0:
                k = min(r, 16); out.append('    s_nop %d' % (k - 1)); r -= k
            out.append(('' if (I.islabel or I.text.startswith('.')) else '    ') + I.text)
        self.nnop = nnop
        return '\n'.join(out)
```

```python
import struct, sys
from asmdsl import Asm
from layout import *

def f32bits(x): return struct.unpack('<I', struct.pack('<f', x))[0]
NL2E = f32bits(NLOG2E)

def srd(a, d, lo, hi, off, size):
    if off:
        a(f's_add_u32 s{d}, s{lo}, {off}')
        a(f's_addc_u32 s{d+1}, s{hi}, 0')
    else:
        a(f's_mov_b32 s{d}, s{lo}')
        a(f's_mov_b32 s{d+1}, s{hi}')
    a(f's_mov_b32 s{d+2}, {size}')
    a(f's_mov_b32 s{d+3}, 0x20000')

def load_kernargs(a):
    a('s_load_dwordx16 s[16:31], s[0:1], 0')
    a('s_load_dwordx4 s[32:35], s[0:1], 64')
    a('s_load_dwordx2 s[36:37], s[0:1], 80')

K1_H = 0
K1_W = 81920
K1_IMG = 147456
K1_OVC = K1_IMG + 16000
K1_LDS = 163840

def gen_k1(a):
    a.label('k1_prep_kernel')
    a('s_cmp_ge_u32 s2, 256')
    a('s_cbranch_scc1 k1_done')
    load_kernargs(a)
    a('v_and_b32 v1, 63, v0')
    a('v_lshrrev_b32 v2, 6, v0')
    a('v_readfirstlane_b32 s3, v2')
    a('s_and_b32 s4, s2, 7')
    a('s_lshr_b32 s5, s2, 3')
    a('s_and_b32 s6, s5, 3')
    a('s_lshr_b32 s5, s5, 2')
    a('s_lshl_b32 s5, s5, 3')
    a('s_add_u32 s7, s4, s5')
    a('s_waitcnt lgkmcnt(0)')
    srd(a, 40, 24, 25, 0, E * 4)
    srd(a, 44, 22, 23, 0, E * 4)
    srd(a, 48, 16, 17, 0, N * 512)
    srd(a, 52, 26, 27, 0, 529 * 512)
    srd(a, 56, 30, 31, 0, 512 * 512)
    srd(a, 60, 36, 37, 0, 0x2000000)
    srd(a, 64, 36, 37, BT, N * 512)
    a('s_mul_i32 s8, s2, 2560')
    a('v_lshlrev_b32 v3, 2, v0')
    a('s_cmp_ge_u32 s2, 250')
    a('s_cbranch_scc1 k1_nopl')
    for i in range(3):
        a(f'buffer_load_dword v{10+i}, v3, s[40:43], s8 offen offset:{i*1024}')
        a(f'buffer_load_dword v{13+i}, v3, s[44:47], s8 offen offset:{i*1024}')
    a.label('k1_nopl')
    a('s_cmp_eq_u32 s3, 1')
    a('s_cbranch_scc0 k1_nopk1')
    a('s_lshr_b32 s9, s2, 5')
    a('s_lshr_b32 s10, s2, 1')
    a('s_and_b32 s10, s10, 15')
    a('s_and_b32 s11, s2, 1')
    a('s_lshl_b32 s9, s9, 5')
    a('s_add_u32 s9, s9, s11')
    a('v_and_b32 v4, 15, v1')
    a('v_lshrrev_b32 v5, 4, v1')
    a('v_lshlrev_b32 v4, 1, v4')
    a('v_add_u32 v4, s9, v4')
    a('v_lshlrev_b32 v4, 1, v4')
    a('s_cmp_lt_u32 s10, 8')
    a('s_cbranch_scc0 k1_pk_m')
    a('s_lshl_b32 s12, s10, 5')
    a('v_lshlrev_b32 v5, 3, v5')
    a('v_add_u32 v5, s12, v5')
    a('v_lshl_add_u32 v4, v5, 9, v4')
    for j in range(8):
        a(f'buffer_load_ushort v{16+j}, v4, s[56:59], 0 offen offset:{j*512}')
    a('s_branch k1_nopk')
    a.label('k1_pk_m')
    a('s_sub_u32 s12, s10, 8')
    a('s_lshl_b32 s12, s12, 4')
    a('v_lshlrev_b32 v5, 2, v5')
    a('v_add_u32 v5, s12, v5')
    a('v_and_b32 v6, 31, v5')
    a('v_and_b32 v5, 0xffe0, v5')
    a('v_lshl_add_u32 v5, v5, 1, v6')
    a('v_add_u32 v5, 256, v5')
    a('v_lshl_add_u32 v4, v5, 9, v4')
    a('v_add_u32 v6, 16384, v4')
    for j in range(8):
        vb = 4 if j % 2 == 0 else 6
        a(f'buffer_load_ushort v{16+j}, v{vb}, s[56:59], 0 offen offset:{(j//2)*512}')
    a('s_branch k1_nopk')
    a.label('k1_nopk1')
    a('s_cmp_eq_u32 s3, 2')
    a('s_cbranch_scc0 k1_nopk')
    a('s_cmp_lt_u32 s2, 12')
    a('s_cbranch_scc0 k1_nopk')
    a('s_cmp_lt_u32 s2, 8')
    a('s_cbranch_scc0 k1_pk_wd')
    a('v_and_b32 v4, 31, v1')
    a('v_lshrrev_b32 v5, 5, v1')
    a('s_lshl_b32 s9, s2, 5')
    a('v_add_u32 v4, s9, v4')
    a('v_lshlrev_b32 v4, 1, v4')
    a('v_lshlrev_b32 v5, 3, v5')
    a('v_add_u32 v5, 513, v5')
    a('v_lshl_add_u32 v4, v5, 9, v4')
    for j in range(8):
        a(f'buffer_load_ushort v{16+j}, v4, s[52:55], 0 offen offset:{j*512}')
    a('s_branch k1_nopk')
    a.label('k1_pk_wd')
    a('s_sub_u32 s9, s2, 8')
    a('s_lshl_b32 s9, s9, 6')
    a('v_add_u32 v4, s9, v1')
    a('v_lshlrev_b32 v4, 1, v4')
    a('v_add_u32 v4, 0x40000, v4')
    a('buffer_load_ushort v16, v4, s[52:55], 0 offen')
    a.label('k1_nopk')
    a('s_cmp_ge_u32 s7, 63')
    a('s_cbranch_scc1 k1_nodma')
    a('v_lshrrev_b32 v4, 4, v1')
    a('v_and_b32 v5, 15, v1')
    a('v_lshlrev_b32 v6, 2, v4')
    a('v_xor_b32 v5, v5, v6')
    a('v_lshlrev_b32 v5, 4, v5')
    a('v_lshl_add_u32 v30, v4, 9, v5')
    a('v_lshrrev_b32 v4, 3, v1')
    a('v_and_b32 v5, 7, v1')
    a('v_lshrrev_b32 v6, 1, v4')
    a('v_xor_b32 v5, v5, v6')
    a('v_lshlrev_b32 v5, 4, v5')
    a('v_lshl_add_u32 v31, v4, 9, v5')
    a('v_xor_b32 v32, 64, v31')
    a('s_lshr_b32 s9, s6, 1')
    a('s_lshl_b32 s9, s9, 17')
    a('s_and_b32 s10, s6, 1')
    a('s_lshl_b32 s10, s10, 8')
    a('s_add_u32 s9, s9, s10')
    a('s_lshl_b32 s10, s3, 13')
    a('s_add_u32 s9, s9, s10')
    a('s_lshl_b32 s10, s3, 12')
    a(f's_add_u32 s10, s10, {K1_W}')
    a('s_mul_i32 s11, s7, 160')
    a('s_mul_i32 s12, s3, 40')
    a('s_add_u32 s11, s11, s12')
    a('s_lshl_b32 s11, s11, 9')
    a('s_mul_i32 s12, s3, 5120')
    a('s_and_b32 s13, s3, 1')
    a('s_lshl_b32 s13, s13, 6')
    a('v_xor_b32 v33, s13, v31')
    a('v_xor_b32 v34, 64, v33')
    for kc in range(4):
        for q in range(4):
            a(f's_add_u32 s14, s9, {kc*32768 + q*2048}')
            a(f's_add_u32 m0, s10, {kc*16384 + q*1024}')
            a(f'buffer_load_dwordx4 v30, s[52:55], s14 offen lds')
        for i in range(5):
            a(f's_add_u32 s14, s11, {kc*128 + i*4096}')
            a(f's_add_u32 m0, s12, {K1_H + kc*20480 + i*1024}')
            a(f'buffer_load_dwordx4 v{33 + (i%2)}, s[48:51], s14 offen lds')
    a.label('k1_nodma')
    a('v_lshlrev_b32 v4, 6, v0')
    a(f'v_add_u32 v4, {K1_IMG + 60}, v4')
    a('v_mov_b32 v5, 0')
    a('v_cmp_eq_u32 vcc, 250, v0')
    a(f'v_mov_b32 v6, {K1_OVC}')
    a('v_cndmask_b32 v4, v4, v6, vcc')
    a('v_cmp_gt_u32 vcc, 251, v0')
    a('s_and_saveexec_b64 s[14:15], vcc')
    a('ds_write_b32 v4, v5')
    a('s_mov_b64 exec, s[14:15]')
    a('s_waitcnt lgkmcnt(0)')
    a('s_barrier')
    a('s_cmp_ge_u32 s2, 250')
    a('s_cbranch_scc1 k1_nopart')
    a('s_cmp_ge_u32 s7, 63')
    a('s_cbranch_scc1 k1_pw0')
    a('s_waitcnt vmcnt(36)')
    a('s_branch k1_pw1')
    a.label('k1_pw0')
    a('s_waitcnt vmcnt(0)')
    a.label('k1_pw1')
    for i in range(3):
        if i == 2:
            a('s_cmp_ge_u32 s3, 2')
            a('s_cbranch_scc1 k1_pdone')
        d, s = 10 + i, 13 + i
        a(f'v_mul_u32_u24 v4, 52429, v{d}')
        a('v_lshrrev_b32 v4, 21, v4')
        a(f'v_mul_u32_u24 v5, 40, v4')
        a(f'v_sub_u32 v5, v{d}, v5')
        a(f'v_lshl_or_b32 v6, v5, 14, v{s}')
        a(f'v_add_u32 v7, {i*256}, v0')
        a('v_lshl_or_b32 v6, v7, 20, v6')
        a('v_lshlrev_b32 v7, 6, v4')
        a(f'v_add_u32 v7, {K1_IMG}, v7')
        a('v_mov_b32 v8, 1')
        a('ds_add_rtn_u32 v9, v7, v8 offset:60')
        a('s_waitcnt lgkmcnt(0)')
        a(f'v_cmp_gt_u32 vcc, {CAP}, v9')
        a('v_lshl_add_u32 v7, v9, 2, v7')
        a('s_and_saveexec_b64 s[14:15], vcc')
        a('ds_write_b32 v7, v6')
        a('s_andn2_b64 exec, s[14:15], exec')
        a(f's_cbranch_execz k1_noovf{i}')
        a(f'v_mov_b32 v7, {K1_OVC}')
        a('ds_add_rtn_u32 v9, v7, v8')
        a('s_waitcnt lgkmcnt(0)')
        a('v_mov_b32 v7, v4')
        a('s_mul_i32 s38, s2, 5120')
        a(f's_add_u32 s38, s38, {OVF}')
        a('v_lshlrev_b32 v9, 3, v9')
        a('buffer_store_dwordx2 v[6:7], v9, s[60:63], s38 offen sc0 sc1')
        a.label(f'k1_noovf{i}')
        a('s_mov_b64 exec, s[14:15]')
    a.label('k1_pdone')
    a.label('k1_nopart')
    a('s_cmp_eq_u32 s3, 1')
    a('s_cbranch_scc0 k1_nops1')
    a('s_cmp_ge_u32 s7, 63')
    a('s_cbranch_scc1 k1_w1a')
    a('s_waitcnt vmcnt(36)')
    a('s_branch k1_w1b')
    a.label('k1_w1a')
    a('s_waitcnt vmcnt(0)')
    a.label('k1_w1b')
    a('s_lshl_b32 s38, s2, 10')
    a(f's_add_u32 s38, s38, {WHP}')
    a('v_lshlrev_b32 v4, 4, v1')
    for j in range(4):
        a(f'v_lshl_or_b32 v{16+j}, v{17+2*j}, 16, v{16+2*j}')
    a('buffer_store_dwordx4 v[16:19], v4, s[60:63], s38 offen sc0 sc1')
    a('s_branch k1_nops')
    a.label('k1_nops1')
    a('s_cmp_eq_u32 s3, 2')
    a('s_cbranch_scc0 k1_nops')
    a('s_cmp_lt_u32 s2, 12')
    a('s_cbranch_scc0 k1_nops')
    a('s_waitcnt vmcnt(36)')
    a(f's_mov_b32 s38, {NL2E:#x}')
    a('s_cmp_lt_u32 s2, 8')
    a('s_cbranch_scc0 k1_ps_wd')
    for j in range(8):
        a(f'v_lshlrev_b32 v{16+j}, 16, v{16+j}')
        a(f'v_mul_f32 v{16+j}, s38, v{16+j}')
    for j in range(4):
        a(f'v_cvt_pk_bf16_f32 v{16+j}, v{16+2*j}, v{17+2*j}')
    a('s_lshl_b32 s39, s2, 10')
    a(f's_add_u32 s39, s39, {W3P}')
    a('v_lshlrev_b32 v4, 4, v1')
    a('buffer_store_dwordx4 v[16:19], v4, s[60:63], s39 offen sc0 sc1')
    a('s_branch k1_nops')
    a.label('k1_ps_wd')
    a('v_lshlrev_b32 v16, 16, v16')
    a('v_mul_f32 v16, s38, v16')
    a('v_mov_b32 v17, 0')
    a('v_cvt_pk_bf16_f32 v16, v16, v17')
    a('v_mov_b32 v18, 0')
    a('v_mov_b32 v19, 0')
    a('s_sub_u32 s39, s2, 8')
    a('s_lshl_b32 s39, s39, 10')
    a(f's_add_u32 s39, s39, {WDP}')
    a('v_lshlrev_b32 v4, 4, v1')
    a('buffer_store_dwordx4 v[16:19], v4, s[60:63], s39 offen sc0 sc1')
    a.label('k1_nops')
    a('s_waitcnt lgkmcnt(0)')
    a('s_cmp_ge_u32 s7, 63')
    a('s_cbranch_scc1 k1_b1a')
    a('s_waitcnt vmcnt(27)')
    a.label('k1_b1a')
    a('s_barrier')
    a('s_cmp_ge_u32 s2, 250')
    a('s_cbranch_scc1 k1_noimg')
    a('v_lshlrev_b32 v4, 4, v0')
    a(f'v_add_u32 v4, {K1_IMG}, v4')
    for i in range(4):
        a(f'ds_read_b128 v[{16+4*i}:{19+4*i}], v4 offset:{i*4096}')
    a(f'v_mov_b32 v6, {K1_OVC}')
    a('ds_read_b32 v8, v6')
    a('v_lshrrev_b32 v5, 2, v0')
    a('v_mul_u32_u24 v5, 16000, v5')
    a('v_and_b32 v6, 3, v0')
    a('v_lshl_add_u32 v5, v6, 4, v5')
    a('s_lshl_b32 s38, s2, 6')
    a(f's_add_u32 s38, s38, {CELL}')
    a('s_waitcnt lgkmcnt(0)')
    for i in range(4):
        if i == 3:
            a('v_cmp_gt_u32 vcc, 232, v0')
            a('s_and_saveexec_b64 s[14:15], vcc')
        a(f'buffer_store_dwordx4 v[{16+4*i}:{19+4*i}], v5, s[60:63], s38 offen sc0 sc1')
        if i < 3:
            a(f'v_add_u32 v5, {64*16000}, v5')
    a('s_mov_b64 exec, s[14:15]')
    a('v_cmp_eq_u32 vcc, 0, v0')
    a('s_and_saveexec_b64 s[14:15], vcc')
    a('s_lshl_b32 s38, s2, 2')
    a(f's_add_u32 s38, s38, {OVFC}')
    a('v_mov_b32 v6, 0')
    a('buffer_store_dword v8, v6, s[60:63], s38 offen sc0 sc1')
    a('s_mov_b64 exec, s[14:15]')
    a.label('k1_noimg')
    a('s_cmp_ge_u32 s7, 63')
    a('s_cbranch_scc1 k1_done')
    a('v_and_b32 v4, 31, v1')
    a('v_lshrrev_b32 v5, 5, v1')
    a('s_cmp_lt_u32 s6, 2')
    a('s_cbranch_scc0 k1_rho_id')
    a('v_lshrrev_b32 v6, 4, v4')
    a('v_lshlrev_b32 v6, 4, v6')
    a('v_bfe_u32 v7, v4, 2, 1')
    a('v_lshl_add_u32 v6, v7, 3, v6')
    a('v_bfe_u32 v7, v4, 3, 1')
    a('v_lshl_add_u32 v6, v7, 2, v6')
    a('v_and_b32 v7, 3, v4')
    a('v_add_u32 v4, v6, v7')
    a.label('k1_rho_id')
    a('v_bfe_u32 v6, v4, 1, 3')
    a('v_xor_b32 v6, v6, v5')
    a('v_lshlrev_b32 v6, 4, v6')
    a('v_lshl_add_u32 v40, v4, 7, v6')
    for j in range(1, 4):
        a(f'v_xor_b32 v{40+j}, {2*j*16}, v40')
    a('v_bfe_u32 v6, v1, 4, 1')
    a('v_bfe_u32 v7, v1, 2, 2')
    a('v_bfe_u32 v8, v1, 1, 1')
    a('v_lshl_add_u32 v8, v6, 1, v8')
    a('s_lshl_b32 s38, s3, 2')
    a('v_add_u32 v8, s38, v8')
    a('v_lshlrev_b32 v9, 2, v7')
    a('v_xor_b32 v8, v8, v9')
    a('v_lshlrev_b32 v8, 4, v8')
    a('v_lshl_add_u32 v9, v5, 3, v7')
    a('v_lshl_add_u32 v8, v9, 8, v8')
    a('v_and_b32 v9, 1, v1')
    a('v_lshl_add_u32 v8, v9, 3, v8')
    a(f'v_add_u32 v44, {K1_W}, v8')
    ACC = 64
    FR = [144, 168]
    def issue_reads(ks, fs):
        kc, j = ks // 4, ks % 4
        base = FR[fs]
        a(f'ds_read_b64_tr_b16 v[{base+20}:{base+21}], v44 offset:{ks*4096}')
        a(f'ds_read_b64_tr_b16 v[{base+22}:{base+23}], v44 offset:{ks*4096+1024}')
        for rb in range(5):
            off = (kc % 2) * 20480 + rb * 4096
            a(f'ds_read_b128 v[{base+4*rb}:{base+4*rb+3}], v{40+j} offset:{off}')
    for variant in ('A', 'B'):
        if variant == 'A':
            a('s_cmp_lt_u32 s6, 2')
            a('s_cbranch_scc0 k1_gemmB')
        else:
            a.label('k1_gemmB')
        for ks in range(16):
            kc = ks // 4
            fs = ks % 2
            if ks % 4 == 0:
                if kc > 0:
                    a(f's_waitcnt vmcnt({(3-kc)*9})')
                    a('s_barrier')
                if kc == 2:
                    for j in range(4): a(f'v_add_u32 v{40+j}, 40960, v{40+j}')
                issue_reads(ks, fs)
            if ks % 4 != 3:
                issue_reads(ks + 1, 1 - fs)
                a('s_waitcnt lgkmcnt(7)')
            else:
                a('s_waitcnt lgkmcnt(0)')
            base = FR[fs]
            for rb in range(5):
                d = f'v[{ACC+16*rb}:{ACC+16*rb+15}]'
                c = '0' if ks == 0 else d
                hf = f'v[{base+4*rb}:{base+4*rb+3}]'; wf = f'v[{base+20}:{base+23}]'
                if variant == 'A': a(f'v_mfma_f32_32x32x16_bf16 {d}, {hf}, {wf}, {c}')
                else: a(f'v_mfma_f32_32x32x16_bf16 {d}, {wf}, {hf}, {c}')
        a(f's_mov_b32 s38, {NL2E:#x}')
        a(f's_mov_b32 s39, {NL2E:#x}')
        if variant == 'A':
            a('v_and_b32 v4, 31, v1')
            a('v_lshrrev_b32 v5, 5, v1')
            a('s_and_b32 s8, s6, 1')
            a('s_lshl_b32 s8, s8, 7')
            a('s_lshl_b32 s9, s3, 5')
            a('s_add_u32 s8, s8, s9')
            a('v_add_u32 v4, s8, v4')
            a('v_lshlrev_b32 v4, 4, v4')
            a('v_lshl_add_u32 v4, v5, 12, v4')
            a('s_mul_i32 s8, s7, 81920')
            a(f's_add_u32 s8, s8, {AT}')
            for rb in range(5):
                for half in range(2):
                    r0 = ACC + 16 * rb + 8 * half
                    for p in range(4):
                        a(f'v_pk_mul_f32 v[{r0+2*p}:{r0+2*p+1}], v[{r0+2*p}:{r0+2*p+1}], s[38:39]')
                    t0 = 144 + 4 * ((2 * rb + half) % 4)
                    for p in range(4):
                        a(f'v_cvt_pk_bf16_f32 v{t0+p}, v{r0+2*p}, v{r0+2*p+1}')
                    a(f's_add_u32 s9, s8, {(4*rb + 2*half)*4096}')
                    a(f'buffer_store_dwordx4 v[{t0}:{t0+3}], v4, s[60:63], s9 offen sc0 sc1')
            a('s_endpgm')
        else:
            a('s_barrier')
            a('v_and_b32 v4, 31, v1')
            a('v_lshrrev_b32 v5, 5, v1')
            a('v_and_b32 v6, 15, v1')
            a('s_lshl_b32 s8, s3, 2')
            a('v_xor_b32 v6, s8, v6')
            a('v_lshlrev_b32 v6, 4, v6')
            a('v_lshl_add_u32 v6, v4, 8, v6')
            a('v_lshl_add_u32 v6, v5, 3, v6')
            for i in range(1, 4):
                a(f'v_xor_b32 v{6+i}, {i*16}, v6')
            for rb in range(5):
                for i in range(4):
                    r0 = ACC + 16 * rb + 4 * i
                    for p in range(2):
                        a(f'v_pk_mul_f32 v[{r0+2*p}:{r0+2*p+1}], v[{r0+2*p}:{r0+2*p+1}], s[38:39]')
                    t0 = 144 + 2 * ((4 * rb + i) % 8)
                    a(f'v_cvt_pk_bf16_f32 v{t0}, v{r0}, v{r0+1}')
                    a(f'v_cvt_pk_bf16_f32 v{t0+1}, v{r0+2}, v{r0+3}')
                    a(f'ds_write_b64 v{6+i}, v[{t0}:{t0+1}] offset:{rb*8192}')
            a('s_waitcnt lgkmcnt(0)')
            a('s_barrier')
            a('v_lshlrev_b32 v4, 4, v0')
            a('v_lshrrev_b32 v5, 4, v0')
            a('v_and_b32 v6, 15, v0')
            a('v_xor_b32 v6, v6, v5')
            a('v_lshlrev_b32 v6, 4, v6')
            a('v_lshl_add_u32 v6, v5, 9, v6')
            a('s_mul_i32 s8, s7, 81920')
            a('s_and_b32 s9, s6, 1')
            a('s_lshl_b32 s9, s9, 8')
            a('s_add_u32 s8, s8, s9')
            for i in range(10):
                a(f'ds_read_b128 v[{64+4*i}:{67+4*i}], v4 offset:{i*4096}')
            for i in range(10):
                a(f's_waitcnt lgkmcnt({9-i})')
                a(f's_add_u32 s9, s8, {i*8192}')
                a(f'buffer_store_dwordx4 v[{64+4*i}:{67+4*i}], v6, s[64:67], s9 offen sc0 sc1')
            a('s_endpgm')
    a.label('k1_done')
    a('s_endpgm')

def kernel_desc(name, vgpr, sgpr=102, accum=None):
    if accum is None: accum = (vgpr + 3) // 4 * 4
    return f'''.amdhsa_kernel {name}
  .amdhsa_next_free_vgpr {vgpr}
  .amdhsa_next_free_sgpr {sgpr}
  .amdhsa_accum_offset {accum}
  .amdhsa_group_segment_fixed_size 0
  .amdhsa_kernarg_size 88
  .amdhsa_user_sgpr_count 2
  .amdhsa_user_sgpr_kernarg_segment_ptr 1
  .amdhsa_system_sgpr_workgroup_id_x 1
  .amdhsa_float_denorm_mode_32 3
  .amdhsa_float_denorm_mode_16_64 3
.end_amdhsa_kernel
'''

def build(kernels, out):
    hdr = ['; generated by dev/gen.py (hand-designed CDNA4 assembly, own generator)']
    for name, grid, block, lds, fn, vg in kernels:
        hdr.append(f'; @launch kernel={name} grid=({grid},1,1) block=({block},1,1) lds={lds}')
    txt = '\n'.join(hdr) + '\n.amdgcn_target "amdgcn-amd-amdhsa--gfx950"\n.text\n'
    seen = set()
    descs = ''
    for name, grid, block, lds, fn, vg in kernels:
        if name in seen: continue
        seen.add(name)
        a = Asm()
        fn(a)
        body = a.finalize()
        txt += f'.globl {name}\n.p2align 8\n.type {name},@function\n' + body + '\n'
        descs += kernel_desc(name, vg)
        print(name, 'lines', len(a.lines), 'nops', a.nnop, file=sys.stderr)
    txt += '.section .rodata,"a"\n.p2align 6\n' + descs.replace('.amdhsa_kernel', '.p2align 6\n.amdhsa_kernel', 100).replace('.end_.p2align 6\n', '.end_')
    open(out, 'w').write(txt)

if __name__ == '__main__':
    ks = [('k1_prep_kernel', 256, 256, K1_LDS, gen_k1, 256)]
    build(ks, sys.argv[1] if len(sys.argv) > 1 else 'k.s')
```

```python
N = 10000; E = 160000; D = 256
TN = 40
T = 250
CH = 640
C = 250
CAP = 15
BT   = 0x000000
AT   = 0x500000
CELL = 0xA00000
OVF  = 0xE00000
OVFC = 0xF40000
W3P  = 0xF50000
WDP  = 0xF52000
WHP  = 0xF60000
DBGW = 0x1000000
NLOG2E = -1.4426950408889634
G32  = 0x1200000
```

```python
from asmdsl import Asm
from layout import *
from gen import srd, load_kernargs, NL2E, f32bits

NT = 4
NW = NT * 4
SCAP = 768
SC = 800
STG = 0
JIT = STG + NW * 4096
EA0 = JIT + NW * 2048
EA1 = EA0 + SC * 16
SRC = EA1 + SC * 16
X0 = SRC + SC * 4
X1 = X0 + SC * 4
Y0 = X1 + SC * 4
Y1 = Y0 + SC * 4
MACC = (Y1 + SC * 4 + 255) // 256 * 256
PBUF = MACC + 40 * 512
LUT = PBUF + 1920
CNT = LUT + 128
K2_LDS = CNT + 64
HT = 0
assert K2_LDS <= 163840, K2_LDS

V_LCX, V_LCS, V_LCL, V_LRD, V_RB, V_LCD, V_LCA, V_Z, V_WX0, V_WX1 = 2, 3, 4, 5, 6, 7, 8, 9, 10, 11
V_X, V_AL, V_T0, V_T1 = 12, 13, 14, 15
ACC, PRE, R, W3, WDA, SEL, L, OH, EA = 16, 48, 64, 80, 88, 96, 104, 112, 116
def vr(b, n): return f'v[{b}:{b+n-1}]'

def stamp(a, idx, dbg):
    if not dbg: return
    a(f's_cmp_lg_u32 s3, 0')
    a(f's_cbranch_scc1 st_skip{idx}')
    a('s_memrealtime s[94:95]')
    a('s_waitcnt lgkmcnt(0)')
    a('v_mov_b32 v120, s94')
    a('v_mov_b32 v121, s95')
    a('s_lshl_b32 s96, s2, 7')
    a(f's_add_u32 s96, s96, {DBGW + idx*8}')
    a('v_mov_b32 v122, 0')
    a('s_mov_b64 s[98:99], exec')
    a('s_mov_b64 exec, 1')
    a('buffer_store_dwordx2 v[120:121], v122, s[40:43], s96 offen')
    a('s_mov_b64 exec, s[98:99]')
    a.label(f'st_skip{idx}')

def desc(a, sig, o_n, o_sub, o_fl, o_valid, tag):
    a(f's_mov_b32 s{o_sub}, 0')
    a('s_mov_b32 s88, s73')
    for k in range(1, 5):
        a(f's_cmp_ge_u32 s{sig}, s{72+k}')
        a(f's_cselect_b32 s{o_sub}, {k}, s{o_sub}')
        a(f's_cselect_b32 s88, s{73+k}, s88')
    a('s_min_u32 s88, s88, s79')
    a(f's_sub_u32 s89, s88, s{sig}')
    a(f's_min_u32 s{o_n}, s89, 32')
    a(f's_cmp_le_u32 s89, 32')
    a(f's_cselect_b32 s{o_fl}, 1, 0')
    a(f's_cmp_lt_u32 s{sig}, s79')
    a(f's_cselect_b32 s{o_valid}, 1, 0')

def issue_rows_dma(a, srcreg):
    for q in range(4):
        a(f'v_xad_u32 v{srcreg+q}, v{V_LCD}, {q*16}, v{srcreg+q}')
    for q in range(4):
        a(f's_add_u32 m0, s87, {q*1024}')
        a(f'buffer_load_dwordx4 v{srcreg+q}, s[44:47], s86 offen lds')

def issue_wda(a, sub):
    a(f's_mul_i32 s88, s2, 5')
    a(f's_add_u32 s88, s88, s{sub}')
    a(f's_lshl_b32 s88, s88, 12')
    a(f'v_mov_b32 v{V_T0}, s88')
    a(f'v_cndmask_b32 v{V_T0}, v{V_T0}, v{V_Z}, s[64:65]')
    a(f'v_add_u32 v{V_T0}, v{V_T0}, v{V_LCA}')
    a(f'buffer_load_dwordx4 {vr(WDA,4)}, v{V_T0}, s[40:43], 0 offen')
    a(f'buffer_load_dwordx4 {vr(WDA+4,4)}, v{V_T0}, s[40:43], 0 offen offset:512')

def gen_k2(a, dbg=False):
    a.label('k2_main_kernel')
    a(f's_cmp_ge_u32 s2, {T}')
    a('s_cbranch_scc1 k2_done')
    load_kernargs(a)
    a('v_and_b32 v1, 63, v0')
    a('v_lshrrev_b32 v2, 6, v0')
    a('v_readfirstlane_b32 s3, v2')
    a('s_lshr_b32 s4, s3, 2')
    a('s_and_b32 s5, s3, 3')
    a('s_waitcnt lgkmcnt(0)')
    srd(a, 40, 36, 37, 0, 0x2000000)
    srd(a, 44, 36, 37, BT, N * 512)
    srd(a, 48, 20, 21, 0, E * 32)
    srd(a, 52, 18, 19, 0, N * 6)
    srd(a, 56, 16, 17, 0, N * 512)
    srd(a, 60, 32, 33, 0, 2590000 * 2)
    srd(a, 68, 28, 29, 0, 512)
    stamp(a, 0, dbg)
    a(f's_mov_b32 s92, {NL2E:#x}')
    a(f's_mov_b32 s93, {NL2E:#x}')
    a('s_mov_b32 s64, 0')
    a('s_mov_b32 s65, -1')
    a('s_lshl_b32 s86, s5, 7')
    a('s_lshl_b32 s87, s3, 12')
    if STG: a(f's_add_u32 s87, s87, {STG}')
    a('s_mov_b32 s66, 0')
    a('s_mov_b32 s67, 0')
    a('v_lshlrev_b32 v12, 4, v1')
    a('s_lshl_b32 s88, s5, 11')
    a(f's_add_u32 s88, s88, {W3P}')
    a(f'buffer_load_dwordx4 {vr(W3,4)}, v12, s[40:43], s88 offen')
    a(f'buffer_load_dwordx4 {vr(W3+4,4)}, v12, s[40:43], s88 offen offset:1024')
    a('v_and_b32 v13, 31, v1')
    a('v_lshrrev_b32 v14, 5, v1')
    a('s_lshl_b32 s88, s5, 7')
    a('v_lshlrev_b32 v15, 1, v13')
    a(f'buffer_load_ushort v{V_WX0}, v15, s[68:71], s88 offen')
    a(f'buffer_load_ushort v{V_WX1}, v15, s[68:71], s88 offen offset:64')
    a(f'v_mov_b32 v{V_Z}, 0')
    a(f'v_mul_u32_u24 v{V_LCX}, {SC*4}, v14')
    a(f'v_lshl_add_u32 v{V_LCX}, v13, 2, v{V_LCX}')
    a(f'v_add_u32 v{V_LCX}, {X0}, v{V_LCX}')
    a(f'v_lshrrev_b32 v{V_LCS}, 3, v1')
    a(f'v_lshlrev_b32 v{V_LCS}, 4, v{V_LCS}')
    a(f'v_add_u32 v{V_LCS}, {SRC}, v{V_LCS}')
    a('s_lshl_b32 s88, s3, 11')
    a(f's_add_u32 s88, s88, {JIT}')
    a('v_bfe_u32 v15, v13, 4, 1')
    a(f'v_lshlrev_b32 v{V_LCL}, 10, v15')
    a('v_bfe_u32 v15, v13, 2, 1')
    a(f'v_lshl_add_u32 v{V_LCL}, v15, 9, v{V_LCL}')
    a('v_bfe_u32 v15, v13, 3, 1')
    a(f'v_lshl_add_u32 v{V_LCL}, v15, 3, v{V_LCL}')
    a('v_and_b32 v15, 3, v13')
    a(f'v_lshl_add_u32 v{V_LCL}, v15, 1, v{V_LCL}')
    a(f'v_lshl_add_u32 v{V_LCL}, v14, 5, v{V_LCL}')
    a(f'v_add_u32 v{V_LCL}, s88, v{V_LCL}')
    a(f'v_lshlrev_b32 v{V_LRD}, 4, v1')
    a(f'v_add_u32 v{V_LRD}, s88, v{V_LRD}')
    a('v_and_b32 v15, 3, v13')
    a(f'v_lshlrev_b32 v{V_RB}, 10, v15')
    a('v_lshrrev_b32 v16, 2, v13')
    a(f'v_lshl_add_u32 v{V_RB}, v16, 7, v{V_RB}')
    a('v_bfe_u32 v16, v13, 3, 1')
    a('v_lshl_or_b32 v15, v16, 2, v15')
    a('v_xor_b32 v15, v15, v14')
    a(f'v_lshl_add_u32 v{V_RB}, v15, 4, v{V_RB}')
    a(f'v_add_u32 v{V_RB}, s87, v{V_RB}')
    a('v_and_b32 v15, 7, v1')
    a('v_bfe_u32 v16, v1, 4, 1')
    a('v_lshlrev_b32 v16, 2, v16')
    a('v_xor_b32 v15, v15, v16')
    a(f'v_lshlrev_b32 v{V_LCD}, 4, v15')
    a('s_lshl_b32 s88, s5, 6')
    a('v_add_u32 v15, s88, v13')
    a('v_lshlrev_b32 v15, 4, v15')
    a(f'v_mov_b32 v16, {AT}')
    a(f'v_mov_b32 v17, {WDP}')
    a('v_cndmask_b32 v16, v16, v17, s[64:65]')
    a(f'v_add_u32 v{V_LCA}, v16, v15')
    a('v_lshlrev_b32 v15, 3, v14')
    a('v_sub_u32 v15, v13, v15')
    for sidx in range(2):
        for p in range(4):
            lo, hi = 16*sidx + 2*p, 16*sidx + 2*p + 1
            a(f'v_cmp_eq_u32 vcc, {lo}, v15')
            a(f'v_mov_b32 v16, 0x3f80')
            a(f'v_cndmask_b32 v17, 0, v16, vcc')
            a(f'v_cmp_eq_u32 vcc, {hi}, v15')
            a(f'v_mov_b32 v16, 0x3f800000')
            a(f'v_cndmask_b32 v{SEL+4*sidx+p}, v17, v16, vcc')
    a('v_mov_b32 v16, 0'); a('v_mov_b32 v17, 0'); a('v_mov_b32 v18, 0'); a('v_mov_b32 v19, 0')
    a('v_lshlrev_b32 v15, 4, v0')
    a(f'v_add_u32 v15, {MACC}, v15')
    a('ds_write_b128 v15, v[16:19]')
    a('v_cmp_gt_u32 vcc, 376, v0')
    a('s_and_saveexec_b64 s[90:91], vcc')
    a('ds_write_b128 v15, v[16:19] offset:16384')
    a('s_mov_b64 exec, s[90:91]')
    a(f'ds_write_b128 v{V_LRD}, v[16:19]')
    a(f'ds_write_b128 v{V_LRD}, v[16:19] offset:1024')
    a('v_cmp_gt_u32 vcc, 64, v0')
    a('s_and_saveexec_b64 s[90:91], vcc')
    a('v_lshrrev_b32 v15, 3, v0')
    a('v_and_b32 v16, 7, v0')
    a('v_cmp_eq_u32 vcc, v15, v16')
    a('v_mov_b32 v17, 0x3f80')
    a('v_cndmask_b32 v17, 0, v17, vcc')
    a('v_lshlrev_b32 v15, 1, v0')
    a(f'v_add_u32 v15, {LUT}, v15')
    a('ds_write_b16 v15, v17')
    a('s_mov_b64 exec, s[90:91]')
    for i in range(4): a(f'v_mov_b32 v{OH+i}, 0')
    a('v_lshlrev_b32 v15, 2, v0')
    a(f'v_add_u32 v15, {OVFC}, v15')
    a('v_cmp_gt_u32 vcc, 250, v0')
    a('v_mov_b32 v20, 0')
    a('s_and_saveexec_b64 s[90:91], vcc')
    a('buffer_load_dword v20, v15, s[40:43], 0 offen')
    a('s_mov_b64 exec, s[90:91]')
    a.label('k2_batch')
    a('s_cmp_eq_u32 s66, 2')
    a('s_cbranch_scc1 k2_ld_ovf')
    a('v_lshlrev_b32 v15, 4, v0')
    a('s_mul_i32 s88, s2, 16000')
    a(f's_add_u32 s88, s88, {CELL}')
    a('v_cmp_gt_u32 vcc, 1000, v0')
    a('v_mov_b32 v27, 0')
    a('s_and_saveexec_b64 s[90:91], vcc')
    a('buffer_load_dwordx4 v[24:27], v15, s[40:43], s88 offen')
    a('s_mov_b64 exec, s[90:91]')
    a('v_lshrrev_b32 v28, 2, v0')
    a('s_branch k2_ld_done')
    a.label('k2_ld_ovf')
    a('v_lshlrev_b32 v15, 3, v0')
    a('s_mul_i32 s88, s67, 5120')
    a(f's_add_u32 s88, s88, {OVF}')
    a('v_cmp_gt_u32 vcc, s97, v0')
    a('v_mov_b32 v25, -1')
    a('s_and_saveexec_b64 s[90:91], vcc')
    a('buffer_load_dwordx2 v[24:25], v15, s[40:43], s88 offen')
    a('s_mov_b64 exec, s[90:91]')
    a('v_mov_b32 v28, s67')
    a.label('k2_ld_done')
    a(f'v_cmp_gt_u32 vcc, {SC}, v0')
    a('s_and_saveexec_b64 s[90:91], vcc')
    a('v_lshlrev_b32 v15, 2, v0')
    a(f'v_add_u32 v15, {SRC}, v15')
    a('v_mov_b32 v16, -1')
    a(f'ds_write_b32 v15, v{V_Z}')
    a(f'ds_write_b32 v15, v16 offset:{X0-SRC}')
    a(f'ds_write_b32 v15, v{V_Z} offset:{X1-SRC}')
    a('s_mov_b64 exec, s[90:91]')
    a('v_cmp_gt_u32 vcc, 16, v0')
    a('s_and_saveexec_b64 s[90:91], vcc')
    a('v_lshlrev_b32 v15, 2, v0')
    a(f'v_add_u32 v15, {CNT}, v15')
    a(f'ds_write_b32 v15, v{V_Z}')
    a('s_mov_b64 exec, s[90:91]')
    a('s_waitcnt lgkmcnt(0)')
    a('s_barrier')
    a('s_waitcnt vmcnt(0)')
    stamp(a, 1, dbg)
    a('v_cmp_ne_u32 vcc, 0, v20')
    a('s_cbranch_vccz k2_noflag')
    a(f'v_mov_b32 v15, {CNT+32}')
    a('v_mov_b32 v16, 1')
    a('ds_write_b32 v15, v16')
    a.label('k2_noflag')
    a('s_cmp_eq_u32 s66, 2')
    a('s_cbranch_scc1 k2_v_ovf')
    a('v_mov_b32_dpp v29, v27 quad_perm:[3,3,3,3] row_mask:0xf bank_mask:0xf')
    a(f'v_min_u32 v29, {CAP}, v29')
    a('v_and_b32 v15, 3, v0')
    a('v_lshlrev_b32 v15, 2, v15')
    a('v_sub_i32 v29, v29, v15')
    a('s_cmp_eq_u32 s66, 1')
    a('s_cbranch_scc0 k2_v_done')
    a('v_subrev_u32 v15, s67, v28')
    a('v_cmp_gt_u32 vcc, 48, v15')
    a('v_cndmask_b32 v29, 0, v29, vcc')
    a('s_branch k2_v_done')
    a.label('k2_v_ovf')
    a('v_cmp_eq_u32 vcc, s2, v25')
    a('v_cndmask_b32 v29, 0, 1, vcc')
    a.label('k2_v_done')
    a('v_mov_b32 v16, 1')
    for i in range(4):
        a(f'v_cmp_lt_i32 vcc, {i}, v29')
        a('s_and_saveexec_b64 s[90:91], vcc')
        a(f'v_bfe_u32 v15, v{24+i}, 17, 3')
        a('v_lshlrev_b32 v15, 2, v15')
        a(f'v_add_u32 v15, {CNT}, v15')
        a(f'ds_add_rtn_u32 v{30+i}, v15, v16')
        a('s_mov_b64 exec, s[90:91]')
    a('s_waitcnt lgkmcnt(0)')
    a('s_barrier')
    a(f'v_mov_b32 v15, {CNT}')
    a('ds_read_b128 v[36:39], v15')
    a('ds_read_b32 v40, v15 offset:16')
    a('ds_read_b32 v41, v15 offset:32')
    a('s_waitcnt lgkmcnt(0)')
    a('s_mov_b32 s72, 0')
    for k in range(5):
        a(f'v_readfirstlane_b32 s88, v{36+k}')
        a('s_add_u32 s88, s88, 7')
        a('s_and_b32 s88, s88, -8')
        a(f's_add_u32 s{73+k}, s{72+k}, s88')
    a('s_cmp_eq_u32 s66, 0')
    a('s_cbranch_scc0 k2_noflag2')
    a('v_readfirstlane_b32 s63, v41')
    a.lines.pop()
    a('v_readfirstlane_b32 s85, v41')
    a.label('k2_noflag2')
    a(f's_cmp_gt_u32 s77, {SCAP}')
    a('s_cbranch_scc0 k2_fits')
    a('s_mov_b32 s66, 1')
    a('s_mov_b32 s67, 0')
    a('s_barrier')
    a('s_branch k2_batch')
    a.label('k2_fits')
    for k in range(5):
        a(f'v_writelane_b32 v42, s{72+k}, {k}')
    a('v_mul_u32_u24 v43, 640, v28')
    for i in range(4):
        a(f'v_bfe_u32 v15, v{24+i}, 17, 3')
        a('v_lshlrev_b32 v15, 2, v15')
        a(f'ds_bpermute_b32 v{44+i}, v15, v42')
    a('s_waitcnt lgkmcnt(0)')
    for i in range(4):
        a(f'v_cmp_lt_i32 vcc, {i}, v29')
        a('s_and_saveexec_b64 s[90:91], vcc')
        a(f'v_add_u32 v15, v{44+i}, v{30+i}')
        a('v_lshlrev_b32 v15, 2, v15')
        a(f'v_add_u32 v15, {SRC}, v15')
        a(f'v_and_b32 v16, 0x3fff, v{24+i}')
        a('v_lshlrev_b32 v16, 9, v16')
        a(f'v_lshrrev_b32 v17, 20, v{24+i}')
        a('v_add_u32 v17, v17, v43')
        a('ds_write_b32 v15, v16')
        a(f'ds_write_b32 v15, v{24+i} offset:{X0-SRC}')
        a(f'ds_write_b32 v15, v17 offset:{X1-SRC}')
        a('s_mov_b64 exec, s[90:91]')
    a('s_waitcnt lgkmcnt(0)')
    a('s_barrier')
    stamp(a, 2, dbg)
    a('s_lshr_b32 s88, s77, 3')
    a('s_mul_i32 s89, s88, s4')
    a('s_lshr_b32 s89, s89, 2') if NT == 4 else None
    a('s_lshl_b32 s78, s89, 3')
    a('s_add_u32 s89, s4, 1')
    a('s_mul_i32 s89, s88, s89')
    a('s_lshr_b32 s89, s89, 2')
    a('s_lshl_b32 s79, s89, 3')
    desc(a, 78, 81, 80, 82, 83, 'p')
    a('s_cmp_eq_u32 s83, 0')
    a('s_cbranch_scc1 k2_nofirst')
    a('s_lshl_b32 s88, s78, 2')
    a(f'v_add_u32 v15, s88, v{V_LCS}')
    a(f'ds_read_b128 {vr(PRE,4)}, v15')
    a('s_waitcnt lgkmcnt(0)')
    issue_rows_dma(a, PRE)
    issue_wda(a, 80)
    a.label('k2_nofirst')
    a('s_add_u32 s88, s77, 32')
    a('s_lshl_b32 s89, s3, 6')
    a('s_cmp_ge_u32 s89, s88')
    a('s_cbranch_scc1 k2_noprep')
    a(f's_cmp_ge_u32 s89, {SC}')
    a('s_cbranch_scc1 k2_noprep')
    a('v_lshlrev_b32 v15, 2, v0')
    a(f'v_add_u32 v15, {X0}, v15')
    a(f'v_cmp_gt_u32 vcc, {SC}, v0')
    a('s_and_saveexec_b64 s[90:91], vcc')
    a('ds_read_b32 v24, v15')
    a(f'ds_read_b32 v25, v15 offset:{X1-X0}')
    a('s_waitcnt lgkmcnt(0)')
    a('v_lshlrev_b32 v16, 5, v25')
    a('s_lshl_b32 s88, s3, 10')
    a(f's_add_u32 m0, s88, {EA0}')
    a('buffer_load_dwordx4 v16, s[48:51], 0 offen lds')
    a('v_add_u32 v17, 16, v16')
    a(f's_add_u32 m0, s88, {EA1}')
    a('buffer_load_dwordx4 v17, s[48:51], 0 offen lds')
    a('v_cmp_ne_u32 vcc, -1, v24')
    a('v_and_b32 v26, 0x3fff, v24')
    a('v_bfe_u32 v27, v24, 14, 6')
    a('v_cndmask_b32 v26, 0, v26, vcc')
    a('v_cndmask_b32 v27, 0, v27, vcc')
    a('s_mov_b64 s[98:99], vcc')
    a('s_mul_i32 s88, s2, 40')
    a('v_add_u32 v28, s88, v27')
    for (idx, dst) in ((26, 30), (28, 34)):
        a(f'v_mul_u32_u24 v16, 6, v{idx}')
        a('v_and_b32 v16, -4, v16')
        a(f'buffer_load_dwordx2 v[{dst}:{dst+1}], v16, s[52:55], 0 offen')
    a('s_waitcnt vmcnt(0)')
    for (idx, dst) in ((26, 30), (28, 34)):
        a(f'v_and_b32 v16, 1, v{idx}')
        a('v_lshlrev_b32 v16, 4, v16')
        a(f'v_alignbit_b32 v{dst+2}, v{dst+1}, v{dst}, v16')
        a(f'v_lshrrev_b32 v{dst+3}, v16, v{dst+1}')
    a('v_lshlrev_b32 v38, 16, v32'); a('v_and_b32 v39, 0xffff0000, v32'); a('v_lshlrev_b32 v40, 16, v33')
    a('v_lshlrev_b32 v41, 16, v36'); a('v_and_b32 v42, 0xffff0000, v36'); a('v_lshlrev_b32 v43, 16, v37')
    a('v_sub_f32 v38, v41, v38'); a('v_sub_f32 v39, v42, v39'); a('v_sub_f32 v40, v43, v40')
    a('v_cvt_pk_bf16_f32 v44, v38, v39')
    a(f'v_cvt_pk_bf16_f32 v45, v40, v{V_Z}')
    a('v_lshlrev_b32 v38, 16, v44'); a('v_and_b32 v39, 0xffff0000, v44'); a('v_lshlrev_b32 v40, 16, v45')
    a('v_mul_f32 v38, v38, v38'); a('v_mul_f32 v39, v39, v39'); a('v_mul_f32 v40, v40, v40')
    a('v_cvt_pk_bf16_f32 v46, v38, v39')
    a(f'v_cvt_pk_bf16_f32 v47, v40, v{V_Z}')
    a('v_lshlrev_b32 v38, 16, v46'); a('v_and_b32 v39, 0xffff0000, v46'); a('v_lshlrev_b32 v40, 16, v47')
    a('v_add_f32 v38, v38, v39'); a('v_add_f32 v38, v38, v40')
    a(f'v_cvt_pk_bf16_f32 v38, v38, v{V_Z}')
    a('v_lshlrev_b32 v39, 16, v44')
    a('v_or_b32 v39, 0x3f80, v39')
    a('v_lshrrev_b32 v40, 16, v44')
    a('v_lshl_or_b32 v40, v45, 16, v40')
    a('v_and_b32 v41, 7, v27')
    a('v_lshlrev_b32 v42, 22, v41')
    a('v_lshl_or_b32 v43, v41, 4, v42')
    a('v_or_b32 v42, v42, v38')
    for r in (39, 40, 43, 42):
        a(f'v_cndmask_b32 v{r}, 0, v{r}, s[98:99]')
    a('ds_write_b32 v15, v39')
    a(f'ds_write_b32 v15, v40 offset:{X1-X0}')
    a(f'ds_write_b32 v15, v43 offset:{Y0-X0}')
    a(f'ds_write_b32 v15, v42 offset:{Y1-X0}')
    a('s_mov_b64 exec, s[90:91]')
    a.label('k2_noprep')
    a('s_waitcnt vmcnt(0) lgkmcnt(0)')
    a('s_barrier')
    stamp(a, 3, dbg)
    a(f'v_lshlrev_b32 v{V_WX0}, 16, v{V_WX0}') if False else None
    a('s_cmp_eq_u32 s83, 0')
    a('s_cbranch_scc1 k2_edge_done')
    a('s_mov_b32 s84, 1')
    a.label('k2_grp')
    a('s_add_u32 s94, s78, s81')
    desc(a, 94, 95, 96, 100, 101, 'n')
    a('s_waitcnt vmcnt(0)')
    a('s_lshl_b32 s88, s78, 2')
    a(f'v_add_u32 v{V_X}, s88, v{V_LCX}')
    a(f'ds_read_b32 v{PRE+8}, v{V_X}')
    a(f'ds_read_b32 v{PRE+9}, v{V_X} offset:{Y0-X0}')
    a(f'v_lshlrev_b32 v{V_T0}, 2, v{V_X}')
    a(f'v_add_u32 v{V_T0}, {(EA0 - 4*X0) & 0xffffffff}, v{V_T0}')
    a(f'ds_read_b128 {vr(EA,4)}, v{V_T0}')
    a(f'ds_read_b128 {vr(R,4)}, v{V_RB}')
    for k in range(1, 4):
        a(f'v_xor_b32 v{V_T1}, {k*32}, v{V_RB}')
        a(f'ds_read_b128 {vr(R+4*k,4)}, v{V_T1}')
    a('s_lshl_b32 s88, s94, 2')
    a(f'v_add_u32 v{V_T0}, s88, v{V_LCS}')
    a(f'ds_read_b128 {vr(PRE,4)}, v{V_T0}')
    a('s_waitcnt lgkmcnt(6)')
    a('s_bfm_b32 s88, s81, 0')
    a('s_cmp_eq_u32 s81, 32')
    a('s_cselect_b32 s88, -1, s88')
    a(f'v_lshrrev_b32 v{V_AL}, 16, v{PRE+9}')
    a(f'v_add_u32 v{V_AL}, v{V_AL}, v{V_LCL}')
    a(f'v_and_b32 v{V_T0}, 0xffff, v{PRE+9}')
    a(f'v_add_u32 v{V_T1}, {LUT}, v{V_T0}')
    a('s_mov_b32 exec_lo, s88')
    a('s_mov_b32 exec_hi, s88')
    a(f'ds_write_b16 v{V_AL}, v{PRE+8}')
    a(f'ds_write_b16_d16_hi v{V_AL}, v{PRE+8} offset:16')
    a('s_mov_b64 exec, -1')
    a(f'ds_read_b128 {vr(L,4)}, v{V_LRD}')
    a(f'ds_read_b128 {vr(L+4,4)}, v{V_LRD} offset:1024')
    a('s_mov_b32 exec_lo, s88')
    a('s_mov_b32 exec_hi, s88')
    a(f'ds_write_b16 v{V_AL}, v{V_Z}')
    a(f'ds_write_b16 v{V_AL}, v{V_Z} offset:16')
    a('s_mov_b32 exec_lo, -1')
    a('s_mov_b32 exec_hi, 0')
    a(f'ds_read_b128 {vr(OH,4)}, v{V_T1}')
    a('s_mov_b32 exec_lo, 0')
    a('s_mov_b32 exec_hi, -1')
    a(f'v_mov_b32 v{OH}, v{V_T0}')
    a('s_mov_b64 exec, -1')
    a('s_waitcnt lgkmcnt(0)')
    a('s_cmp_eq_u32 s101, 0')
    a('s_cbranch_scc1 k2_nodma')
    issue_rows_dma(a, PRE)
    a.label('k2_nodma')
    for b in range(2):
        d = vr(PRE, 16)
        a(f'v_mfma_f32_32x32x16_bf16 {d}, {vr(R+8*b,4)}, {vr(SEL,4)}, 0')
        a(f'v_mfma_f32_32x32x16_bf16 {d}, {vr(R+8*b+4,4)}, {vr(SEL+4,4)}, {d}')
        a(f'v_mfma_f32_32x32x16_bf16 {d}, {vr(EA,4)}, {vr(W3+4*b,4)}, {d}')
        a(f'v_mfma_f32_32x32x16_bf16 {d}, {vr(OH,4)}, {vr(WDA+4*b,4)}, {d}')
        if b == 1:
            a('s_cmp_eq_u32 s101, 0')
            a(f's_cbranch_scc1 k2_nowda')
            a('s_cmp_eq_u32 s96, s80')
            a(f's_cbranch_scc1 k2_nowda')
            issue_wda(a, 96)
            a.label('k2_nowda')
        Tm = R
        for q in range(4):
            if q > 0:
                a(f's_cmp_le_u32 s81, {8*q}')
                a(f's_cbranch_scc1 k2_sk{b}_{q}')
            y = PRE + 4 * q
            for i in range(4): a(f'v_exp_f32 v{Tm+i}, v{y+i}')
            for i in range(2): a(f'v_pk_fma_f32 {vr(Tm+2*i,2)}, {vr(Tm+2*i,2)}, s[92:93], s[92:93]')
            for i in range(4): a(f'v_rcp_f32 v{Tm+i}, v{Tm+i}')
            for i in range(2): a(f'v_pk_mul_f32 {vr(y+2*i,2)}, {vr(y+2*i,2)}, {vr(Tm+2*i,2)}')
            a(f'v_cvt_pk_bf16_f32 v{PRE+2*q}, v{y}, v{y+1}')
            a(f'v_cvt_pk_bf16_f32 v{PRE+2*q+1}, v{y+2}, v{y+3}')
        a(f's_branch k2_c{b}_full')
        a.label(f'k2_sk{b}_1')
        a(f'v_mov_b32 v{PRE+2}, 0'); a(f'v_mov_b32 v{PRE+3}, 0')
        a.label(f'k2_sk{b}_2')
        acc = vr(ACC + 16 * b, 16)
        a('s_cmp_eq_u32 s84, 1')
        a(f's_cbranch_scc1 k2_c{b}_h1')
        a(f'v_mfma_f32_32x32x16_bf16 {acc}, {vr(L,4)}, {vr(PRE,4)}, {acc}')
        a(f's_branch k2_c{b}_end')
        a.label(f'k2_c{b}_h1')
        a(f'v_mfma_f32_32x32x16_bf16 {acc}, {vr(L,4)}, {vr(PRE,4)}, 0')
        a(f's_branch k2_c{b}_end')
        a.label(f'k2_sk{b}_3')
        a(f'v_mov_b32 v{PRE+6}, 0'); a(f'v_mov_b32 v{PRE+7}, 0')
        a.label(f'k2_c{b}_full')
        a('s_cmp_eq_u32 s84, 1')
        a(f's_cbranch_scc1 k2_c{b}_f1')
        a(f'v_mfma_f32_32x32x16_bf16 {acc}, {vr(L,4)}, {vr(PRE,4)}, {acc}')
        a(f's_branch k2_c{b}_f2')
        a.label(f'k2_c{b}_f1')
        a(f'v_mfma_f32_32x32x16_bf16 {acc}, {vr(L,4)}, {vr(PRE,4)}, 0')
        a.label(f'k2_c{b}_f2')
        a(f'v_mfma_f32_32x32x16_bf16 {acc}, {vr(L+4,4)}, {vr(PRE+4,4)}, {acc}')
        a.label(f'k2_c{b}_end')
    a('s_mov_b32 s84, 0')
    a('s_cmp_eq_u32 s82, 0')
    a('s_cbranch_scc1 k2_noflush')
    TM = PRE
    a('v_and_b32 v12, 31, v1')
    a('v_lshrrev_b32 v13, 5, v1')
    a('v_lshrrev_b32 v14, 2, v12')
    a('s_lshl_b32 s88, s5, 3')
    a('v_add_u32 v14, s88, v14')
    a('v_xor_b32 v14, v14, v13')
    a('v_lshlrev_b32 v14, 4, v14')
    a('v_lshl_add_u32 v14, v13, 9, v14')
    a('v_and_b32 v15, 3, v12')
    a('v_lshl_add_u32 v14, v15, 2, v14')
    a('s_and_b32 s88, s80, 1')
    a('s_lshl_b32 s88, s88, 7')
    a('v_xor_b32 v14, s88, v14')
    a('s_lshl_b32 s88, s80, 12')
    a(f's_add_u32 s88, s88, {MACC}')
    a('v_add_u32 v14, s88, v14')
    for i in range(4):
        a(f'v_cvt_pk_bf16_f32 v{TM+i}, v{ACC+4*i}, v{ACC+16+4*i}')
        a(f'v_xor_b32 v{TM+4+i}, {i*32}, v14')
    for i in range(4):
        a(f'ds_pk_add_bf16 v{TM+4+i}, v{TM+i} offset:{i*1024}')
    idx = [(i, c) for i in range(4) for c in range(1, 4)]
    a(f'v_lshlrev_b32 v{TM+8}, 16, v{V_WX0}')
    a(f'v_lshlrev_b32 v{TM+9}, 16, v{V_WX1}')
    for k, (i, c) in enumerate(idx): a(f'v_mul_f32 v{R+k}, v{ACC+4*i+c}, v{TM+8}')
    for k, (i, c) in enumerate(idx): a(f'v_fmac_f32 v{R+k}, v{ACC+16+4*i+c}, v{TM+9}')
    for mod in ('quad_perm:[1,0,3,2]', 'quad_perm:[2,3,0,1]', 'row_half_mirror'):
        for k in range(12):
            a(f'v_add_f32_dpp v{R+k}, v{R+k}, v{R+k} {mod} row_mask:0xf bank_mask:0xf')
    a('v_mul_u32_u24 v15, 48, v13')
    a('v_lshrrev_b32 v12, 3, v12')
    a('v_lshl_add_u32 v15, v12, 2, v15')
    a('s_mul_i32 s88, s80, 384')
    a(f's_add_u32 s88, s88, {PBUF}')
    a('v_add_u32 v15, s88, v15')
    a('s_mov_b32 exec_lo, 0x01010101')
    a('s_mov_b32 exec_hi, 0x01010101')
    for k, (i, c) in enumerate(idx):
        a(f'ds_add_f32 v15, v{R+k} offset:{i*96 + (c-1)*16}')
    a('s_mov_b64 exec, -1')
    a('s_mov_b32 s84, 1')
    a.label('k2_noflush')
    a('s_mov_b32 s78, s94'); a('s_mov_b32 s81, s95'); a('s_mov_b32 s80, s96'); a('s_mov_b32 s82, s100')
    a('s_cmp_eq_u32 s101, 1')
    a('s_cbranch_scc1 k2_grp')
    a.label('k2_edge_done')
    a('s_waitcnt vmcnt(0) lgkmcnt(0)')
    a('s_barrier')
    stamp(a, 4, dbg)
    a('s_cmp_eq_u32 s66, 1')
    a('s_cbranch_scc0 k2_nb1')
    a('s_add_u32 s67, s67, 48')
    a('s_cmp_lt_u32 s67, 250')
    a('s_cbranch_scc1 k2_batch')
    a('s_mov_b32 s66, 0')
    a.label('k2_nb1')
    a('s_cmp_eq_u32 s85, 0')
    a('s_cbranch_scc1 k2_tail')
    a('s_cmp_eq_u32 s66, 2')
    a('s_cbranch_scc1 k2_ovf_next')
    a('s_mov_b32 s66, 2')
    a('s_mov_b32 s67, -1')
    a.label('k2_ovf_next')
    a('s_add_u32 s67, s67, 1')
    a('s_cmp_ge_u32 s67, 250')
    a('s_cbranch_scc1 k2_tail')
    a('s_lshl_b32 s88, s67, 2')
    a(f's_add_u32 s88, s88, {OVFC}')
    a('s_load_dword s97, s[36:37], s88')
    a('s_waitcnt lgkmcnt(0)')
    a('s_cmp_eq_u32 s97, 0')
    a('s_cbranch_scc1 k2_ovf_next')
    a('s_branch k2_batch')
    a.label('k2_tail')
    a('s_and_b32 s6, s3, 7')
    a('s_lshr_b32 s7, s3, 3')
    a('v_lshlrev_b32 v12, 4, v1')
    a('s_lshl_b32 s88, s6, 15')
    a(f's_add_u32 s88, s88, {WHP}')
    for j in range(16):
        a(f's_add_u32 s89, s88, {j*1024}')
        a(f'buffer_load_dwordx4 {vr(64+4*j,4)}, v12, s[40:43], s89 offen')
    a('s_cmp_ge_u32 s3, 12')
    a('s_cbranch_scc1 k2_noht')
    for j in range(2):
        a('v_lshrrev_b32 v13, 5, v1')
        a('s_lshl_b32 s89, s3, 2')
        a(f's_add_u32 s89, s89, {2*j}')
        a('v_add_u32 v13, s89, v13')
        a('v_and_b32 v14, 15, v13')
        a('v_and_b32 v15, 31, v1')
        a('v_xor_b32 v14, v14, v15')
        a('v_lshlrev_b32 v14, 4, v14')
        a('s_mul_i32 s90, s2, 40')
        a('v_add_u32 v13, s90, v13')
        a('v_lshl_add_u32 v14, v13, 9, v14')
        a('s_lshl_b32 s89, s89, 9')
        a(f's_add_u32 m0, s89, {HT}')
        a('buffer_load_dwordx4 v14, s[56:59], 0 offen lds')
    a.label('k2_noht')
    a('s_waitcnt vmcnt(0)')
    a('s_barrier')
    a('v_and_b32 v13, 15, v1')
    a('v_lshrrev_b32 v14, 4, v1')
    a('v_xor_b32 v15, v14, v13')
    a('v_lshlrev_b32 v15, 4, v15')
    a('v_lshl_add_u32 v15, v13, 9, v15')
    def tail_part(base_lds, ks0, first):
        for ksp in range(8):
            a(f'v_xor_b32 v12, {(4*ksp % 16)*16}, v15')
            off = base_lds + (256 if ksp >= 4 else 0)
            fr = 32 + 8 * (ksp % 2)
            a(f'ds_read_b128 {vr(fr,4)}, v12 offset:{off}')
            a(f'ds_read_b128 {vr(fr+4,4)}, v12 offset:{off + 16384}')
            a('s_waitcnt lgkmcnt(0)')
            for cb in range(2):
                wreg = vr(64 + 4 * (2 * ksp + cb), 4)
                for rbi in range(2):
                    d = vr(16 + 8 * rbi + 4 * cb, 4)
                    c = '0' if (first and ksp == 0) else d
                    a(f'v_mfma_f32_16x16x32_bf16 {d}, {vr(fr+4*rbi,4)}, {wreg}, {c}')
    a('s_lshl_b32 s88, s7, 13')
    a('v_add_u32 v15, s88, v15')
    assert HT + 8192 + 16384 + 8192 + 512 < 65536
    tail_part(HT, 0, True)
    a('v_lshlrev_b32 v12, 4, v1')
    a('s_lshl_b32 s88, s6, 15')
    a(f's_add_u32 s88, s88, {WHP + 16384}')
    for j in range(16):
        a(f's_add_u32 s89, s88, {j*1024}')
        a(f'buffer_load_dwordx4 {vr(64+4*j,4)}, v12, s[40:43], s89 offen')
    a('s_waitcnt vmcnt(0)')
    a(f'v_add_u32 v15, {MACC}, v15')
    def tail_part2():
        for ksp in range(8):
            a(f'v_xor_b32 v12, {(4*ksp % 16)*16}, v15')
            off = (256 if ksp >= 4 else 0)
            fr = 32 + 8 * (ksp % 2)
            a(f'ds_read_b128 {vr(fr,4)}, v12 offset:{off}')
            a(f'ds_read_b128 {vr(fr+4,4)}, v12 offset:{off + 16384}')
            a('s_waitcnt lgkmcnt(0)')
            for cb in range(2):
                wreg = vr(64 + 4 * (2 * ksp + cb), 4)
                for rbi in range(2):
                    d = vr(16 + 8 * rbi + 4 * cb, 4)
                    a(f'v_mfma_f32_16x16x32_bf16 {d}, {vr(fr+4*rbi,4)}, {wreg}, {d}')
    tail_part2()
    a('v_and_b32 v13, 15, v1')
    a('v_lshrrev_b32 v14, 4, v1')
    for rbi in range(2):
        if rbi == 1:
            a('s_cmp_eq_u32 s7, 1')
            a('s_cbranch_scc1 k2_epi_done')
        for r in range(4):
            a(f'v_lshlrev_b32 v32, 2, v14')
            a(f'v_add_u32 v32, {r}, v32')
            a('v_lshrrev_b32 v33, 2, v13')
            a('s_lshl_b32 s88, s6, 2')
            a('v_add_u32 v33, s88, v33')
            a('v_xor_b32 v33, v33, v32')
            a('v_lshlrev_b32 v33, 4, v33')
            a('v_and_b32 v34, 3, v13')
            a('v_lshl_add_u32 v33, v34, 2, v33')
            if rbi == 0:
                a('s_lshl_b32 s88, s7, 4')
            else:
                a('s_mov_b32 s88, 32')
            a('v_add_u32 v32, s88, v32')
            a('v_lshl_add_u32 v33, v32, 9, v33')
            a(f'ds_read_b32 v35, v33 offset:{HT}')
            x0, x1 = 16 + 8 * rbi + r, 16 + 8 * rbi + 4 + r
            for x in (x0, x1):
                a(f'v_mul_f32 v36, s92, v{x}')
                a('v_exp_f32 v36, v36')
                a('v_add_f32 v36, 1.0, v36')
                a('v_rcp_f32 v36, v36')
                a(f'v_mul_f32 v{x}, v{x}, v36')
            a('s_waitcnt lgkmcnt(0)')
            a('v_lshlrev_b32 v36, 16, v35')
            a('v_and_b32 v37, 0xffff0000, v35')
            a(f'v_add_f32 v{x0}, v{x0}, v36')
            a(f'v_add_f32 v{x1}, v{x1}, v37')
            a(f'v_cvt_pk_bf16_f32 v36, v{x0}, v{x1}')
            a('s_mul_i32 s88, s2, 40')
            a('v_add_u32 v37, s88, v32')
            a('v_lshlrev_b32 v37, 9, v37')
            a('s_lshl_b32 s88, s6, 6')
            a('v_lshl_add_u32 v37, v13, 2, v37')
            a('v_cmp_gt_u32 vcc, 40, v32')
            a('s_and_saveexec_b64 s[90:91], vcc')
            a('buffer_store_dword v36, v37, s[60:63], s88 offen')
            a('s_mov_b64 exec, s[90:91]')
    a.label('k2_epi_done')
    a('s_cmp_ge_u32 s3, 2')
    a('s_cbranch_scc1 k2_done')
    a('v_cmp_gt_u32 vcc, 120, v0')
    a('s_and_saveexec_b64 s[90:91], vcc')
    a('s_cbranch_execz k2_done')
    a('v_lshlrev_b32 v12, 4, v0')
    a(f'ds_read_b128 v[16:19], v12 offset:{PBUF}') if PBUF < 65536 else (a(f'v_add_u32 v12, {PBUF}, v12'), a('ds_read_b128 v[16:19], v12'))
    a('s_mul_i32 s88, s2, 240')
    a('v_lshlrev_b32 v13, 1, v0')
    a('buffer_load_ushort v20, v13, s[52:55], s88 offen')
    a('s_waitcnt vmcnt(0) lgkmcnt(0)')
    a('v_add_f32 v16, v16, v17'); a('v_add_f32 v18, v18, v19'); a('v_add_f32 v16, v16, v18')
    a('v_lshlrev_b32 v20, 16, v20')
    a('v_add_f32 v16, v16, v20')
    a(f'v_cvt_pk_bf16_f32 v16, v16, v{V_Z}')
    a('s_add_u32 s88, s88, 5120000')
    a('buffer_store_short v16, v13, s[60:63], s88 offen')
    a.label('k2_done')
    a('s_endpgm')

if __name__ == '__main__':
    import sys
    from gen import build, gen_k1, K1_LDS
    dbg = len(sys.argv) > 2 and sys.argv[2] == 'dbg'
    ks = [('k1_prep_kernel', 256, 256, K1_LDS, gen_k1, 256),
          ('k2_main_kernel', T, NW * 64, K2_LDS, lambda a: gen_k2(a, dbg), 128)]
    build(ks, sys.argv[1])
    print('K2_LDS', K2_LDS, file=sys.stderr)
```

```python
import struct, sys
from asmdsl import Asm
from layout import *

def f32bits(x): return struct.unpack('<I', struct.pack('<f', x))[0]
NL2E = f32bits(NLOG2E)

def srd(a, d, lo, hi, off, size):
    if off:
        a(f's_add_u32 s{d}, s{lo}, {off}')
        a(f's_addc_u32 s{d+1}, s{hi}, 0')
    else:
        a(f's_mov_b32 s{d}, s{lo}')
        a(f's_mov_b32 s{d+1}, s{hi}')
    a(f's_mov_b32 s{d+2}, {size}')
    a(f's_mov_b32 s{d+3}, 0x20000')

def load_kernargs(a):
    a('s_load_dwordx16 s[16:31], s[0:1], 0')
    a('s_load_dwordx4 s[32:35], s[0:1], 64')
    a('s_load_dwordx2 s[36:37], s[0:1], 80')

K1_H = 0
K1_W = 81920
K1_IMG = 147456
K1_OVC = K1_IMG + 16000
K1_LDS = 163840

import os
FL1 = set(os.environ.get('FL', '').split(','))
def stamp1(a, idx, dbg):
    if not dbg: return
    a(f's_cmp_lg_u32 s3, 0')
    a(f's_cbranch_scc1 k1st_skip{idx}')
    a('s_memrealtime s[94:95]')
    a('s_waitcnt lgkmcnt(0)')
    a('v_mov_b32 v250, s94')
    a('v_mov_b32 v251, s95')
    a('s_lshl_b32 s96, s2, 7')
    a(f's_add_u32 s96, s96, {DBGW + 0x10000 + idx*8}')
    a('v_mov_b32 v252, 0')
    a('s_mov_b64 s[98:99], exec')
    a('s_mov_b64 exec, 1')
    a('buffer_store_dwordx2 v[250:251], v252, s[60:63], s96 offen')
    a('s_mov_b64 exec, s[98:99]')
    a.label(f'k1st_skip{idx}')

def gen_k1(a, dbg=False):
    a.label('k1_prep_kernel')
    a('s_cmp_ge_u32 s2, 256')
    a('s_cbranch_scc1 k1_done')
    load_kernargs(a)
    a('v_and_b32 v1, 63, v0')
    a('v_lshrrev_b32 v2, 6, v0')
    a('v_readfirstlane_b32 s3, v2')
    a('s_and_b32 s4, s2, 7')
    a('s_lshr_b32 s5, s2, 3')
    a('s_and_b32 s6, s5, 3')
    a('s_lshr_b32 s5, s5, 2')
    a('s_lshl_b32 s5, s5, 3')
    a('s_add_u32 s7, s4, s5')
    a('s_waitcnt lgkmcnt(0)')
    srd(a, 40, 24, 25, 0, E * 4)
    srd(a, 44, 22, 23, 0, E * 4)
    srd(a, 48, 16, 17, 0, N * 512)
    srd(a, 52, 26, 27, 0, 529 * 512)
    srd(a, 56, 30, 31, 0, 512 * 512)
    srd(a, 60, 36, 37, 0, 0x2000000)
    srd(a, 64, 36, 37, BT, N * 512)
    stamp1(a, 0, dbg)
    a('s_mul_i32 s8, s2, 2560')
    a('v_lshlrev_b32 v3, 2, v0')
    a('s_cmp_ge_u32 s2, 250')
    a('s_cbranch_scc1 k1_nopl')
    for i in range(3):
        a(f'buffer_load_dword v{10+i}, v3, s[40:43], s8 offen offset:{i*1024}')
        a(f'buffer_load_dword v{13+i}, v3, s[44:47], s8 offen offset:{i*1024}')
    a.label('k1_nopl')
    a('s_cmp_eq_u32 s3, 1')
    a('s_cbranch_scc0 k1_nopk1')
    a('s_lshr_b32 s9, s2, 5')
    a('s_lshr_b32 s10, s2, 1')
    a('s_and_b32 s10, s10, 15')
    a('s_and_b32 s11, s2, 1')
    a('s_lshl_b32 s9, s9, 5')
    a('s_add_u32 s9, s9, s11')
    a('v_and_b32 v4, 15, v1')
    a('v_lshrrev_b32 v5, 4, v1')
    a('v_lshlrev_b32 v4, 1, v4')
    a('v_add_u32 v4, s9, v4')
    a('v_lshlrev_b32 v4, 1, v4')
    a('s_cmp_lt_u32 s10, 8')
    a('s_cbranch_scc0 k1_pk_m')
    a('s_lshl_b32 s12, s10, 5')
    a('v_lshlrev_b32 v5, 3, v5')
    a('v_add_u32 v5, s12, v5')
    a('v_lshl_add_u32 v4, v5, 9, v4')
    for j in range(8):
        a(f'buffer_load_ushort v{16+j}, v4, s[56:59], 0 offen offset:{j*512}')
    a('s_branch k1_nopk')
    a.label('k1_pk_m')
    a('s_sub_u32 s12, s10, 8')
    a('s_lshl_b32 s12, s12, 4')
    a('v_lshlrev_b32 v5, 2, v5')
    a('v_add_u32 v5, s12, v5')
    a('v_and_b32 v6, 31, v5')
    a('v_and_b32 v5, 0xffe0, v5')
    a('v_lshl_add_u32 v5, v5, 1, v6')
    a('v_add_u32 v5, 256, v5')
    a('v_lshl_add_u32 v4, v5, 9, v4')
    a('v_add_u32 v6, 16384, v4')
    for j in range(8):
        vb = 4 if j % 2 == 0 else 6
        a(f'buffer_load_ushort v{16+j}, v{vb}, s[56:59], 0 offen offset:{(j//2)*512}')
    a('s_branch k1_nopk')
    a.label('k1_nopk1')
    a('s_cmp_eq_u32 s3, 2')
    a('s_cbranch_scc0 k1_nopk')
    a('s_cmp_lt_u32 s2, 12')
    a('s_cbranch_scc0 k1_nopk')
    a('s_cmp_lt_u32 s2, 8')
    a('s_cbranch_scc0 k1_pk_wd')
    a('v_and_b32 v4, 31, v1')
    a('v_lshrrev_b32 v5, 5, v1')
    a('s_lshl_b32 s9, s2, 5')
    a('v_add_u32 v4, s9, v4')
    a('v_lshlrev_b32 v4, 1, v4')
    a('v_lshlrev_b32 v5, 3, v5')
    a('v_add_u32 v5, 513, v5')
    a('v_lshl_add_u32 v4, v5, 9, v4')
    for j in range(8):
        a(f'buffer_load_ushort v{16+j}, v4, s[52:55], 0 offen offset:{j*512}')
    a('s_branch k1_nopk')
    a.label('k1_pk_wd')
    a('s_sub_u32 s9, s2, 8')
    a('s_lshl_b32 s9, s9, 6')
    a('v_add_u32 v4, s9, v1')
    a('v_lshlrev_b32 v4, 1, v4')
    a('v_add_u32 v4, 0x40000, v4')
    a('buffer_load_ushort v16, v4, s[52:55], 0 offen')
    a.label('k1_nopk')
    a('s_cmp_ge_u32 s7, 63')
    a('s_cbranch_scc1 k1_nodma')
    a('v_lshrrev_b32 v4, 4, v1')
    a('v_and_b32 v5, 15, v1')
    a('v_lshlrev_b32 v6, 2, v4')
    a('v_xor_b32 v5, v5, v6')
    a('v_lshlrev_b32 v5, 4, v5')
    a('v_lshl_add_u32 v30, v4, 9, v5')
    a('v_lshrrev_b32 v4, 3, v1')
    a('v_and_b32 v5, 7, v1')
    a('v_lshrrev_b32 v6, 1, v4')
    a('v_xor_b32 v5, v5, v6')
    a('v_lshlrev_b32 v5, 4, v5')
    a('v_lshl_add_u32 v31, v4, 9, v5')
    a('v_xor_b32 v32, 64, v31')
    a('s_lshr_b32 s9, s6, 1')
    a('s_lshl_b32 s9, s9, 17')
    a('s_and_b32 s10, s6, 1')
    a('s_lshl_b32 s10, s10, 8')
    a('s_add_u32 s9, s9, s10')
    a('s_lshl_b32 s10, s3, 13')
    a('s_add_u32 s9, s9, s10')
    a('s_lshl_b32 s10, s3, 12')
    a(f's_add_u32 s10, s10, {K1_W}')
    a('s_mul_i32 s11, s7, 160')
    a('s_mul_i32 s12, s3, 40')
    a('s_add_u32 s11, s11, s12')
    a('s_lshl_b32 s11, s11, 9')
    a('s_mul_i32 s12, s3, 5120')
    a('s_and_b32 s13, s3, 1')
    a('s_lshl_b32 s13, s13, 6')
    a('v_xor_b32 v33, s13, v31')
    a('v_xor_b32 v34, 64, v33')
    for kc in range(4):
        for q in range(4):
            a(f's_add_u32 s14, s9, {kc*32768 + q*2048}')
            a(f's_add_u32 m0, s10, {kc*16384 + q*1024}')
            a(f'buffer_load_dwordx4 v30, s[52:55], s14 offen lds')
        for i in range(5):
            a(f's_add_u32 s14, s11, {kc*128 + i*4096}')
            a(f's_add_u32 m0, s12, {K1_H + kc*20480 + i*1024}')
            a(f'buffer_load_dwordx4 v{33 + (i%2)}, s[48:51], s14 offen lds')
    a.label('k1_nodma')
    if 'nopf' not in FL1:
        srd(a, 68, 20, 21, 0, E * 32)
        a('s_mul_i32 s38, s2, 20000')
        a('v_lshlrev_b32 v4, 4, v0')
        a('v_add_u32 v4, s38, v4')
        for i in range(5):
            a(f'buffer_load_dwordx4 v[{200+4*i}:{203+4*i}], v4, s[68:71], 0 offen offset:{0}')
            if i < 4: a('v_add_u32 v4, 4096, v4')
    a('v_lshlrev_b32 v4, 6, v0')
    a(f'v_add_u32 v4, {K1_IMG + 60}, v4')
    a('v_mov_b32 v5, 0')
    a('v_cmp_eq_u32 vcc, 250, v0')
    a(f'v_mov_b32 v6, {K1_OVC}')
    a('v_cndmask_b32 v4, v4, v6, vcc')
    a('v_cmp_gt_u32 vcc, 251, v0')
    a('s_and_saveexec_b64 s[14:15], vcc')
    a('ds_write_b32 v4, v5')
    a('s_mov_b64 exec, s[14:15]')
    a('s_waitcnt lgkmcnt(0)')
    a('s_barrier')
    a('s_cmp_ge_u32 s2, 250')
    a('s_cbranch_scc1 k1_nopart')
    a('s_cmp_ge_u32 s7, 63')
    a('s_cbranch_scc1 k1_pw0')
    a('s_waitcnt vmcnt(36)')
    a('s_branch k1_pw1')
    a.label('k1_pw0')
    a('s_waitcnt vmcnt(0)')
    a.label('k1_pw1')
    for i in range(3):
        if i == 2:
            a('s_cmp_ge_u32 s3, 2')
            a('s_cbranch_scc1 k1_pdone')
        d, s = 10 + i, 13 + i
        a(f'v_mul_u32_u24 v4, 52429, v{d}')
        a('v_lshrrev_b32 v4, 21, v4')
        a(f'v_mul_u32_u24 v5, 40, v4')
        a(f'v_sub_u32 v5, v{d}, v5')
        a(f'v_lshl_or_b32 v6, v5, 14, v{s}')
        a(f'v_add_u32 v7, {i*256}, v0')
        a('v_lshl_or_b32 v6, v7, 20, v6')
        a('v_lshlrev_b32 v7, 6, v4')
        a(f'v_add_u32 v7, {K1_IMG}, v7')
        a('v_mov_b32 v8, 1')
        a('ds_add_rtn_u32 v9, v7, v8 offset:60')
        a('s_waitcnt lgkmcnt(0)')
        a(f'v_cmp_gt_u32 vcc, {CAP}, v9')
        a('v_lshl_add_u32 v7, v9, 2, v7')
        a('s_and_saveexec_b64 s[14:15], vcc')
        a('ds_write_b32 v7, v6')
        a('s_andn2_b64 exec, s[14:15], exec')
        a(f's_cbranch_execz k1_noovf{i}')
        a(f'v_mov_b32 v7, {K1_OVC}')
        a('ds_add_rtn_u32 v9, v7, v8')
        a('s_waitcnt lgkmcnt(0)')
        a('v_mov_b32 v7, v4')
        a('s_mul_i32 s38, s2, 5120')
        a(f's_add_u32 s38, s38, {OVF}')
        a('v_lshlrev_b32 v9, 3, v9')
        a('buffer_store_dwordx2 v[6:7], v9, s[60:63], s38 offen sc0 sc1')
        a.label(f'k1_noovf{i}')
        a('s_mov_b64 exec, s[14:15]')
    a.label('k1_pdone')
    a.label('k1_nopart')
    a('s_cmp_eq_u32 s3, 1')
    a('s_cbranch_scc0 k1_nops1')
    a('s_cmp_ge_u32 s7, 63')
    a('s_cbranch_scc1 k1_w1a')
    a('s_waitcnt vmcnt(36)')
    a('s_branch k1_w1b')
    a.label('k1_w1a')
    a('s_waitcnt vmcnt(0)')
    a.label('k1_w1b')
    a('s_lshl_b32 s38, s2, 10')
    a(f's_add_u32 s38, s38, {WHP}')
    a('v_lshlrev_b32 v4, 4, v1')
    for j in range(4):
        a(f'v_lshl_or_b32 v{16+j}, v{17+2*j}, 16, v{16+2*j}')
    a('buffer_store_dwordx4 v[16:19], v4, s[60:63], s38 offen sc0 sc1')
    a('s_branch k1_nops')
    a.label('k1_nops1')
    a('s_cmp_eq_u32 s3, 2')
    a('s_cbranch_scc0 k1_nops')
    a('s_cmp_lt_u32 s2, 12')
    a('s_cbranch_scc0 k1_nops')
    a('s_waitcnt vmcnt(36)')
    a(f's_mov_b32 s38, {NL2E:#x}')
    a('s_cmp_lt_u32 s2, 8')
    a('s_cbranch_scc0 k1_ps_wd')
    for j in range(8):
        a(f'v_lshlrev_b32 v{16+j}, 16, v{16+j}')
        a(f'v_mul_f32 v{16+j}, s38, v{16+j}')
    for j in range(4):
        a(f'v_cvt_pk_bf16_f32 v{16+j}, v{16+2*j}, v{17+2*j}')
    a('s_lshl_b32 s39, s2, 10')
    a(f's_add_u32 s39, s39, {W3P}')
    a('v_lshlrev_b32 v4, 4, v1')
    a('buffer_store_dwordx4 v[16:19], v4, s[60:63], s39 offen sc0 sc1')
    a('s_branch k1_nops')
    a.label('k1_ps_wd')
    a('v_lshlrev_b32 v16, 16, v16')
    a('v_mul_f32 v16, s38, v16')
    a('v_mov_b32 v17, 0')
    a('v_cvt_pk_bf16_f32 v16, v16, v17')
    a('v_mov_b32 v18, 0')
    a('v_mov_b32 v19, 0')
    a('s_sub_u32 s39, s2, 8')
    a('s_lshl_b32 s39, s39, 10')
    a(f's_add_u32 s39, s39, {WDP}')
    a('v_lshlrev_b32 v4, 4, v1')
    a('buffer_store_dwordx4 v[16:19], v4, s[60:63], s39 offen sc0 sc1')
    a.label('k1_nops')
    stamp1(a, 1, dbg)
    a('s_waitcnt lgkmcnt(0)')
    a('s_cmp_ge_u32 s7, 63')
    a('s_cbranch_scc1 k1_b1a')
    a('s_waitcnt vmcnt(27)')
    a.label('k1_b1a')
    a('s_barrier')
    a('s_cmp_ge_u32 s2, 250')
    a('s_cbranch_scc1 k1_noimg')
    a('v_lshlrev_b32 v4, 4, v0')
    a(f'v_add_u32 v4, {K1_IMG}, v4')
    for i in range(4):
        a(f'ds_read_b128 v[{16+4*i}:{19+4*i}], v4 offset:{i*4096}')
    a(f'v_mov_b32 v6, {K1_OVC}')
    a('ds_read_b32 v8, v6')
    a('v_lshrrev_b32 v5, 2, v0')
    a('v_mul_u32_u24 v5, 16000, v5')
    a('v_and_b32 v6, 3, v0')
    a('v_lshl_add_u32 v5, v6, 4, v5')
    a('s_lshl_b32 s38, s2, 6')
    a(f's_add_u32 s38, s38, {CELL}')
    a('s_waitcnt lgkmcnt(0)')
    for i in range(4):
        if i == 3:
            a('v_cmp_gt_u32 vcc, 232, v0')
            a('s_and_saveexec_b64 s[14:15], vcc')
        a(f'buffer_store_dwordx4 v[{16+4*i}:{19+4*i}], v5, s[60:63], s38 offen sc0 sc1')
        if i < 3:
            a(f'v_add_u32 v5, {64*16000}, v5')
    a('s_mov_b64 exec, s[14:15]')
    a('v_cmp_eq_u32 vcc, 0, v0')
    a('s_and_saveexec_b64 s[14:15], vcc')
    a('s_lshl_b32 s38, s2, 2')
    a(f's_add_u32 s38, s38, {OVFC}')
    a('v_mov_b32 v6, 0')
    a('buffer_store_dword v8, v6, s[60:63], s38 offen sc0 sc1')
    a('s_mov_b64 exec, s[14:15]')
    a.label('k1_noimg')
    stamp1(a, 2, dbg)
    a('s_cmp_ge_u32 s7, 63')
    a('s_cbranch_scc1 k1_done')
    a('v_and_b32 v4, 31, v1')
    a('v_lshrrev_b32 v5, 5, v1')
    a('s_cmp_lt_u32 s6, 2')
    a('s_cbranch_scc0 k1_rho_id')
    a('v_lshrrev_b32 v6, 4, v4')
    a('v_lshlrev_b32 v6, 4, v6')
    a('v_bfe_u32 v7, v4, 2, 1')
    a('v_lshl_add_u32 v6, v7, 3, v6')
    a('v_bfe_u32 v7, v4, 3, 1')
    a('v_lshl_add_u32 v6, v7, 2, v6')
    a('v_and_b32 v7, 3, v4')
    a('v_add_u32 v4, v6, v7')
    a.label('k1_rho_id')
    a('v_bfe_u32 v6, v4, 1, 3')
    a('v_xor_b32 v6, v6, v5')
    a('v_lshlrev_b32 v6, 4, v6')
    a('v_lshl_add_u32 v40, v4, 7, v6')
    for j in range(1, 4):
        a(f'v_xor_b32 v{40+j}, {2*j*16}, v40')
    a('v_bfe_u32 v6, v1, 4, 1')
    a('v_bfe_u32 v7, v1, 2, 2')
    a('v_bfe_u32 v8, v1, 1, 1')
    a('v_lshl_add_u32 v8, v6, 1, v8')
    a('s_lshl_b32 s38, s3, 2')
    a('v_add_u32 v8, s38, v8')
    a('v_lshlrev_b32 v9, 2, v7')
    a('v_xor_b32 v8, v8, v9')
    a('v_lshlrev_b32 v8, 4, v8')
    a('v_lshl_add_u32 v9, v5, 3, v7')
    a('v_lshl_add_u32 v8, v9, 8, v8')
    a('v_and_b32 v9, 1, v1')
    a('v_lshl_add_u32 v8, v9, 3, v8')
    a(f'v_add_u32 v44, {K1_W}, v8')
    ACC = 64
    FR = [144, 168]
    def issue_reads(ks, fs):
        kc, j = ks // 4, ks % 4
        base = FR[fs]
        a(f'ds_read_b64_tr_b16 v[{base+20}:{base+21}], v44 offset:{ks*4096}')
        a(f'ds_read_b64_tr_b16 v[{base+22}:{base+23}], v44 offset:{ks*4096+1024}')
        for rb in range(5):
            off = (kc % 2) * 20480 + rb * 4096
            a(f'ds_read_b128 v[{base+4*rb}:{base+4*rb+3}], v{40+j} offset:{off}')
    for variant in ('A', 'B'):
        if variant == 'A':
            a('s_cmp_lt_u32 s6, 2')
            a('s_cbranch_scc0 k1_gemmB')
        else:
            a.label('k1_gemmB')
        for ks in range(16):
            kc = ks // 4
            fs = ks % 2
            if ks % 4 == 0:
                if kc > 0:
                    a(f's_waitcnt vmcnt({(3-kc)*9})')
                    a('s_barrier')
                if kc == 2:
                    for j in range(4): a(f'v_add_u32 v{40+j}, 40960, v{40+j}')
                issue_reads(ks, fs)
            if ks % 4 != 3:
                issue_reads(ks + 1, 1 - fs)
                a('s_waitcnt lgkmcnt(7)')
            else:
                a('s_waitcnt lgkmcnt(0)')
            base = FR[fs]
            for rb in range(5):
                d = f'v[{ACC+16*rb}:{ACC+16*rb+15}]'
                c = '0' if ks == 0 else d
                hf = f'v[{base+4*rb}:{base+4*rb+3}]'; wf = f'v[{base+20}:{base+23}]'
                if variant == 'A': a(f'v_mfma_f32_32x32x16_bf16 {d}, {hf}, {wf}, {c}')
                else: a(f'v_mfma_f32_32x32x16_bf16 {d}, {wf}, {hf}, {c}')
        stamp1(a, 3 if variant == 'A' else 4, dbg)
        a(f's_mov_b32 s38, {NL2E:#x}')
        a(f's_mov_b32 s39, {NL2E:#x}')
        if variant == 'A':
            a('v_and_b32 v4, 31, v1')
            a('v_lshrrev_b32 v5, 5, v1')
            a('s_and_b32 s8, s6, 1')
            a('s_lshl_b32 s8, s8, 7')
            a('s_lshl_b32 s9, s3, 5')
            a('s_add_u32 s8, s8, s9')
            a('v_add_u32 v4, s8, v4')
            a('v_lshlrev_b32 v4, 4, v4')
            a('v_lshl_add_u32 v4, v5, 12, v4')
            a('s_mul_i32 s8, s7, 81920')
            a(f's_add_u32 s8, s8, {AT}')
            for rb in range(5):
                for half in range(2):
                    r0 = ACC + 16 * rb + 8 * half
                    for p in range(4):
                        a(f'v_pk_mul_f32 v[{r0+2*p}:{r0+2*p+1}], v[{r0+2*p}:{r0+2*p+1}], s[38:39]')
                    t0 = 144 + 4 * ((2 * rb + half) % 4)
                    for p in range(4):
                        a(f'v_cvt_pk_bf16_f32 v{t0+p}, v{r0+2*p}, v{r0+2*p+1}')
                    a(f's_add_u32 s9, s8, {(4*rb + 2*half)*4096}')
                    a(f'buffer_store_dwordx4 v[{t0}:{t0+3}], v4, s[60:63], s9 offen sc0 sc1')
            if dbg: a('s_waitcnt vmcnt(0)')
            stamp1(a, 5, dbg)
            a('s_endpgm')
        else:
            a('s_barrier')
            a('v_and_b32 v4, 31, v1')
            a('v_lshrrev_b32 v5, 5, v1')
            a('v_and_b32 v6, 15, v1')
            a('s_lshl_b32 s8, s3, 2')
            a('v_xor_b32 v6, s8, v6')
            a('v_lshlrev_b32 v6, 4, v6')
            a('v_lshl_add_u32 v6, v4, 8, v6')
            a('v_lshl_add_u32 v6, v5, 3, v6')
            for i in range(1, 4):
                a(f'v_xor_b32 v{6+i}, {i*16}, v6')
            for rb in range(5):
                for i in range(4):
                    r0 = ACC + 16 * rb + 4 * i
                    for p in range(2):
                        a(f'v_pk_mul_f32 v[{r0+2*p}:{r0+2*p+1}], v[{r0+2*p}:{r0+2*p+1}], s[38:39]')
                    t0 = 144 + 2 * ((4 * rb + i) % 8)
                    a(f'v_cvt_pk_bf16_f32 v{t0}, v{r0}, v{r0+1}')
                    a(f'v_cvt_pk_bf16_f32 v{t0+1}, v{r0+2}, v{r0+3}')
                    a(f'ds_write_b64 v{6+i}, v[{t0}:{t0+1}] offset:{rb*8192}')
            a('s_waitcnt lgkmcnt(0)')
            a('s_barrier')
            a('v_lshlrev_b32 v4, 4, v0')
            a('v_lshrrev_b32 v5, 4, v0')
            a('v_and_b32 v6, 15, v0')
            a('v_xor_b32 v6, v6, v5')
            a('v_lshlrev_b32 v6, 4, v6')
            a('v_lshl_add_u32 v6, v5, 9, v6')
            a('s_mul_i32 s8, s7, 81920')
            a('s_and_b32 s9, s6, 1')
            a('s_lshl_b32 s9, s9, 8')
            a('s_add_u32 s8, s8, s9')
            for i in range(10):
                a(f'ds_read_b128 v[{64+4*i}:{67+4*i}], v4 offset:{i*4096}')
            for i in range(10):
                a(f's_waitcnt lgkmcnt({9-i})')
                a(f's_add_u32 s9, s8, {i*8192}')
                a(f'buffer_store_dwordx4 v[{64+4*i}:{67+4*i}], v6, s[64:67], s9 offen sc0 sc1')
            if dbg: a('s_waitcnt vmcnt(0)')
            stamp1(a, 6, dbg)
            a('s_endpgm')
    a.label('k1_done')
    a('s_endpgm')

def kernel_desc(name, vgpr, sgpr=102, accum=None):
    if accum is None: accum = (vgpr + 3) // 4 * 4
    return f'''.amdhsa_kernel {name}
  .amdhsa_next_free_vgpr {vgpr}
  .amdhsa_next_free_sgpr {sgpr}
  .amdhsa_accum_offset {accum}
  .amdhsa_group_segment_fixed_size 0
  .amdhsa_kernarg_size 88
  .amdhsa_user_sgpr_count 2
  .amdhsa_user_sgpr_kernarg_segment_ptr 1
  .amdhsa_system_sgpr_workgroup_id_x 1
  .amdhsa_float_denorm_mode_32 3
  .amdhsa_float_denorm_mode_16_64 3
.end_amdhsa_kernel
'''

def build(kernels, out):
    hdr = ['; generated by dev/gen.py (hand-designed CDNA4 assembly, own generator)']
    for name, grid, block, lds, fn, vg in kernels:
        hdr.append(f'; @launch kernel={name} grid=({grid},1,1) block=({block},1,1) lds={lds}')
    txt = '\n'.join(hdr) + '\n.amdgcn_target "amdgcn-amd-amdhsa--gfx950"\n.text\n'
    seen = set()
    descs = ''
    for name, grid, block, lds, fn, vg in kernels:
        if name in seen: continue
        seen.add(name)
        a = Asm()
        fn(a)
        body = a.finalize()
        txt += f'.globl {name}\n.p2align 8\n.type {name},@function\n' + body + '\n'
        descs += kernel_desc(name, vg)
        print(name, 'lines', len(a.lines), 'nops', a.nnop, file=sys.stderr)
    txt += '.section .rodata,"a"\n.p2align 6\n' + descs.replace('.amdhsa_kernel', '.p2align 6\n.amdhsa_kernel', 100).replace('.end_.p2align 6\n', '.end_')
    open(out, 'w').write(txt)

if __name__ == '__main__':
    ks = [('k1_prep_kernel', 256, 256, K1_LDS, gen_k1, 256)]
    build(ks, sys.argv[1] if len(sys.argv) > 1 else 'k.s')
```

```python
import os, sys
from asmdsl import Asm
from layout import *
from gen import srd, load_kernargs, NL2E, f32bits
FL = set(os.environ.get('FL', '').split(','))
T_ = T
NW = 8
CAPS = 192
SC = 5 * CAPS + 32
STG = 0
EAP = STG + NW * 8192
JIT = EAP + NW * 1024
SRC = JIT + NW * 2048
W0 = SRC + SC * 4
W1 = W0 + SC * 4
ATL = (W1 + SC * 4 + 255) // 256 * 256
MACC = ATL + 20480
SIDE = MACC + 40 * 512
PBO = SIDE + 3 * 4096
PBS = PBO + 5 * 2 * 96
PACC = PBS + 3 * 2 * 96
LUT = PACC + 480
CNT = LUT + 128
POST = CNT + 64
K2_LDS = POST + 320
HT = MACC
assert K2_LDS <= 163840, K2_LDS
NLN2 = f32bits(-0.6931471805599453)

V_LCS, V_LCL, V_LRD, V_RB, V_LCD, V_Z, V_LCE, V_LCA = 2, 3, 4, 5, 6, 7, 8, 9
V_A, V_B, V_C, V_D, V_AL = 10, 11, 12, 13, 14
V_E4 = 243
ACC, PRE, R, W3, WDA, SEL, L, OH, EAr, T, SRCr = 16, 80, 112, 144, 160, 176, 184, 192, 196, 200, 208
XY, ENT, EID, POS, DPOS, V_WX, H1 = 216, 218, 219, 220, 222, 224, 228
V_PO0, V_PO1, V_EI = 240, 241, 242
def vr(b, n): return f'v[{b}:{b+n-1}]'
uid = [0]
DEFER = []
PROF = 'prof' in FL

def stamp(a, idx, dbg, vb=252, op='s_memrealtime'):
    if not dbg: return
    a(f's_cmp_lg_u32 s3, 0')
    a(f's_cbranch_scc1 st_skip{idx}')
    a(f'{op} s[98:99]')
    a('s_waitcnt lgkmcnt(0)')
    a(f'v_mov_b32 v{vb}, s98')
    a(f'v_mov_b32 v{vb+1}, s99')
    a('s_lshl_b32 s88, s2, 7')
    a(f's_add_u32 s88, s88, {DBGW + idx*8}')
    a(f'v_mov_b32 v{vb+2}, 0')
    a('s_mov_b64 s[98:99], exec')
    a('s_mov_b64 exec, 1')
    a(f'buffer_store_dwordx2 v[{vb}:{vb+1}], v{vb+2}, s[40:43], s88 offen')
    a('s_mov_b64 exec, s[98:99]')
    a.label(f'st_skip{idx}')
PTR = [16, 18, 32, 34, 64, 98]
def PT(a, i):
    if PROF: a(f's_memtime s[{PTR[i]}:{PTR[i]+1}]')

CP = 22
def desc(a, gam, o_sig, o_n, o_sub, o_fl, o_valid):
    a(f's_mov_b32 s{o_sub}, 0')
    a('s_mov_b32 s88, s72')
    a('s_mov_b32 s89, s73')
    a(f's_mov_b32 s90, s{CP}')
    for k in range(1, 5):
        a(f's_cmp_ge_u32 s{gam}, s{72+k}')
        a(f's_cselect_b32 s{o_sub}, {k}, s{o_sub}')
        a(f's_cselect_b32 s88, s{72+k}, s88')
        a(f's_cselect_b32 s89, s{73+k}, s89')
        a(f's_cselect_b32 s90, s{CP+k}, s90')
    a(f's_sub_u32 s88, s{gam}, s88')
    a('s_lshl_b32 s88, s88, 5')
    a(f's_sub_u32 s90, s90, s88')
    a(f's_min_u32 s{o_n}, s90, 32')
    a(f's_mul_i32 s{o_sig}, s{o_sub}, {CAPS}')
    a(f's_add_u32 s{o_sig}, s{o_sig}, s88')
    a('s_min_u32 s89, s89, s79')
    a(f's_add_u32 s88, s{gam}, 1')
    a('s_cmp_ge_u32 s88, s89')
    a(f's_cselect_b32 s{o_fl}, 1, 0')
    a(f's_cmp_lt_u32 s{gam}, s79')
    a(f's_cselect_b32 s{o_valid}, 1, 0')
    a(f's_cselect_b32 s{o_sig}, s{o_sig}, 0')
    a(f's_cselect_b32 s{o_n}, s{o_n}, 32')

def read_lists(a, sig):
    a(f's_lshl_b32 s88, s{sig}, 2')
    a(f'v_add_u32 v{V_A}, s88, v{V_LCS}')
    a(f'ds_read_b128 {vr(SRCr,4)}, v{V_A}')
    a(f'ds_read_b128 {vr(SRCr+4,4)}, v{V_A} offset:16')
    a(f'v_add_u32 v{V_B}, s88, v{V_E4}')
    a(f'ds_read_b32 v{ENT}, v{V_B}')
    a(f'v_add_u32 v{V_C}, s88, v{V_EI}')
    a(f'ds_read_b32 v{EID}, v{V_C}')

def issue_loads(a):
    a(f'v_and_b32 v{V_A}, 0x3fff, v{ENT}')
    a(f'v_mul_u32_u24 v{V_A}, 6, v{V_A}')
    a(f'v_and_b32 v{V_A}, -4, v{V_A}')
    a('s_mov_b32 exec_hi, 0')
    a(f'buffer_load_dwordx2 {vr(POS,2)}, v{V_A}, s[52:55], 0 offen')
    a('s_mov_b32 exec_hi, -1')
    a(f'v_and_b32 v{V_B}, 1, v1')
    a(f'v_lshlrev_b32 v{V_B}, 4, v{V_B}')
    a(f'v_lshl_add_u32 v{V_B}, v{EID}, 5, v{V_B}')
    a('s_mov_b32 m0, s39')
    a(f'buffer_load_dwordx4 v{V_B}, s[48:51], 0 offen lds')
    a(f'v_bfe_u32 v{V_C}, v{ENT}, 14, 6')
    a(f'v_lshlrev_b32 v{V_C}, 3, v{V_C}')
    a(f'v_add_u32 v{V_C}, {POST}, v{V_C}')
    a(f'ds_read_b64 {vr(DPOS,2)}, v{V_C}')
    for q in range(8):
        if q <= 4: a(f'v_xad_u32 v{SRCr+q}, v{V_LCD}, {q*16}, v{SRCr+q}')
        else:
            a(f's_mov_b32 s88, {q*16}')
            a(f'v_xad_u32 v{SRCr+q}, v{V_LCD}, s88, v{SRCr+q}')
    for q in range(8):
        a(f's_add_u32 m0, s87, {q*1024}')
        if 'nodma' not in FL: a(f'buffer_load_dwordx4 v{SRCr+q}, s[44:47], s86 offen lds')

def geometry(a):
    t = T
    a(f'v_and_b32 v{V_A}, 1, v{ENT}')
    a(f'v_lshlrev_b32 v{V_A}, 4, v{V_A}')
    a(f'v_alignbit_b32 v{t}, v{POS+1}, v{POS}, v{V_A}')
    a(f'v_lshrrev_b32 v{t+1}, v{V_A}, v{POS+1}')
    a(f'v_lshlrev_b32 v{t+2}, 16, v{t}'); a(f'v_and_b32 v{t+3}, 0xffff0000, v{t}'); a(f'v_lshlrev_b32 v{t+4}, 16, v{t+1}')
    a(f'v_lshlrev_b32 v{t+5}, 16, v{DPOS}'); a(f'v_and_b32 v{t+6}, 0xffff0000, v{DPOS}'); a(f'v_lshlrev_b32 v{t+7}, 16, v{DPOS+1}')
    a(f'v_sub_f32 v{t+2}, v{t+5}, v{t+2}'); a(f'v_sub_f32 v{t+3}, v{t+6}, v{t+3}'); a(f'v_sub_f32 v{t+4}, v{t+7}, v{t+4}')
    a(f'v_cvt_pk_bf16_f32 v{t}, v{t+2}, v{t+3}')
    a(f'v_cvt_pk_bf16_f32 v{t+1}, v{t+4}, v{V_Z}')
    a(f'v_lshlrev_b32 v{t+2}, 16, v{t}'); a(f'v_and_b32 v{t+3}, 0xffff0000, v{t}'); a(f'v_lshlrev_b32 v{t+4}, 16, v{t+1}')
    a(f'v_mul_f32 v{t+2}, v{t+2}, v{t+2}'); a(f'v_mul_f32 v{t+3}, v{t+3}, v{t+3}'); a(f'v_mul_f32 v{t+4}, v{t+4}, v{t+4}')
    a(f'v_cvt_pk_bf16_f32 v{t+5}, v{t+2}, v{t+3}')
    a(f'v_cvt_pk_bf16_f32 v{t+6}, v{t+4}, v{V_Z}')
    a(f'v_lshlrev_b32 v{t+2}, 16, v{t+5}'); a(f'v_and_b32 v{t+3}, 0xffff0000, v{t+5}'); a(f'v_lshlrev_b32 v{t+4}, 16, v{t+6}')
    a(f'v_add_f32 v{t+2}, v{t+2}, v{t+3}'); a(f'v_add_f32 v{t+2}, v{t+2}, v{t+4}')
    a(f'v_cvt_pk_bf16_f32 v{t+2}, v{t+2}, v{V_Z}')
    a(f'v_lshlrev_b32 v{XY}, 16, v{t}')
    a(f'v_or_b32 v{XY}, 0x3f80, v{XY}')
    a(f'v_alignbit_b32 v{t+3}, v{t+1}, v{t}, 16')
    a(f'v_bfe_u32 v{t+4}, v{ENT}, 14, 3')
    a(f'v_lshlrev_b32 v{t+5}, 22, v{t+4}')
    a(f'v_lshl_or_b32 v{XY+1}, v{t+4}, 4, v{t+5}')
    a(f'v_or_b32 v{t+5}, v{t+5}, v{t+2}')
    a(f'v_cmp_le_i32 vcc, 0, v{ENT}')
    a(f'v_cndmask_b32 v{XY}, 0, v{XY}, vcc')
    a(f'v_cndmask_b32 v{t+3}, 0, v{t+3}, vcc')
    a(f'v_permlane32_swap_b32 v{XY}, v{t+3}')
    a(f'v_permlane32_swap_b32 v{XY+1}, v{t+5}')

def read_rows(a):
    a(f'ds_read_b128 {vr(R,4)}, v{V_RB}')
    for k in range(1, 8):
        t = V_A + (k % 2)
        a(f'v_xor_b32 v{t}, {k*32}, v{V_RB}')
        a(f'ds_read_b128 {vr(R+4*k,4)}, v{t}')

def read_ea_oh(a):
    a(f'ds_read_b128 {vr(EAr,4)}, v{V_LCE}')
    a(f'v_and_b32 v{V_B}, 0xffff, v{XY+1}')
    a(f'v_add_u32 v{V_C}, {LUT}, v{V_B}')
    a('s_mov_b32 exec_hi, 0')
    a(f'ds_read_b128 {vr(OH,4)}, v{V_C}')
    a('s_mov_b32 exec_lo, 0')
    a('s_mov_b32 exec_hi, -1')
    a(f'v_mov_b32 v{OH}, v{V_B}')
    a('s_mov_b64 exec, -1')

def read_wda(a, sub):
    a(f's_lshl_b32 s88, s{sub}, 12')
    a(f'v_add_u32 v{V_A}, s88, v{V_LCA}')
    a('s_mov_b32 exec_hi, 0')
    for b in range(4):
        a(f'ds_read_b128 {vr(WDA+4*b,4)}, v{V_A} offset:{512*b}')
    a('s_mov_b32 exec_hi, -1')

def jit_l(a, n):
    a(f's_bfm_b32 s88, s{n}, 0')
    a(f's_cmp_eq_u32 s{n}, 32')
    a('s_cselect_b32 s88, -1, s88')
    a(f'v_lshrrev_b32 v{V_AL}, 16, v{XY+1}')
    a(f'v_add_u32 v{V_AL}, v{V_AL}, v{V_LCL}')
    a('s_mov_b32 exec_lo, s88')
    a('s_mov_b32 exec_hi, s88')
    a(f'ds_write_b16 v{V_AL}, v{XY}')
    a(f'ds_write_b16_d16_hi v{V_AL}, v{XY} offset:16')
    a('s_mov_b64 exec, -1')
    a(f'ds_read_b128 {vr(L,4)}, v{V_LRD}')
    a(f'ds_read_b128 {vr(L+4,4)}, v{V_LRD} offset:1024')
    a('s_mov_b32 exec_lo, s88')
    a('s_mov_b32 exec_hi, s88')
    a(f'ds_write_b16 v{V_AL}, v{V_Z}')
    a(f'ds_write_b16 v{V_AL}, v{V_Z} offset:16')
    a('s_mov_b64 exec, -1')

def mf(d, x, y, c): return f'v_mfma_f32_32x32x16_bf16 {d}, {x}, {y}, {c}'
def A_ops(b, buf):
    d = vr(PRE + 16 * buf, 16)
    return [[mf(d, vr(R+8*b,4), vr(SEL,4), '0')], [mf(d, vr(R+8*b+4,4), vr(SEL+4,4), d)],
            [mf(d, vr(EAr,4), vr(W3+4*b,4), d)], [mf(d, vr(OH,4), vr(WDA+4*b,4), d)]]
def C_ops(b, buf, firstreg):
    acc = vr(ACC + 16 * b, 16); p = PRE + 16 * buf
    uid[0] += 1; u = uid[0]
    c0 = [f's_cmp_eq_u32 s{firstreg}, 1', f's_cbranch_scc1 k2_cz{u}', mf(acc, vr(L,4), vr(p,4), acc), f'k2_ce{u}:']
    DEFER.extend([f'k2_cz{u}:', mf(acc, vr(L,4), vr(p,4), '0'), f's_branch k2_ce{u}'])
    c1 = [mf(acc, vr(L+4,4), vr(p+4,4), acc)]
    return [c0, c1]

def quarter(a, buf, q, mk, nreg):
    y = PRE + 16 * buf + 4 * q
    t = T + 4 * (q % 2)
    uid[0] += 1; u = uid[0]
    if q > 0:
        a(f's_cmp_le_u32 s{nreg}, {8*q}')
        a(f's_cbranch_scc1 k2_qs{u}')
    seq = [f'v_exp_f32 v{t+i}, v{y+i}' for i in range(4)]
    seq += [f'v_add_f32 v{t+i}, 1.0, v{t+i}' for i in range(4)]
    seq += [f'v_rcp_f32 v{t+i}, v{t+i}' for i in range(4)]
    seq += [f'v_pk_mul_f32 {vr(y+2*i,2)}, {vr(y+2*i,2)}, {vr(t+2*i,2)}' for i in range(2)]
    pk = PRE + 16 * buf + 2 * q
    seq += [f'v_cvt_pk_bf16_f32 v{pk}, v{y}, v{y+1}', f'v_cvt_pk_bf16_f32 v{pk+1}, v{y+2}, v{y+3}']
    mops = mk(); pos = [2, 9]; k = 0
    for i, s in enumerate(seq):
        if k < len(mops) and i == pos[k]:
            for x in mops[k]: a(x)
            k += 1
        a(s)
    if q > 0:
        a.label(f'k2_qe{u}')
        DEFER.append(f'k2_qs{u}:')
        DEFER.extend([f'v_mov_b32 v{pk}, 0', f'v_mov_b32 v{pk+1}, 0'])
        for m in mk(): DEFER.extend(m)
        DEFER.append(f's_branch k2_qe{u}')

def flush(a, sub, cont, tag):
    n_, kh_, ad, t0 = V_A, V_B, V_C, V_D
    a(f'v_and_b32 v{n_}, 31, v1')
    a(f'v_lshrrev_b32 v{kh_}, 5, v1')
    a(f'v_lshrrev_b32 v{ad}, 2, v{n_}')
    a('s_lshl_b32 s88, s5, 4')
    a(f'v_add_u32 v{ad}, s88, v{ad}')
    a(f'v_xor_b32 v{ad}, v{ad}, v{kh_}')
    a(f'v_lshlrev_b32 v{ad}, 4, v{ad}')
    a(f'v_lshl_add_u32 v{ad}, v{kh_}, 9, v{ad}')
    a(f'v_and_b32 v{t0}, 3, v{n_}')
    a(f'v_lshl_add_u32 v{ad}, v{t0}, 2, v{ad}')
    a(f's_and_b32 s88, s{sub}, 1')
    a('s_lshl_b32 s88, s88, 7')
    a(f'v_xor_b32 v{ad}, s88, v{ad}')
    a(f's_lshl_b32 s88, s{sub}, 12')
    a(f's_add_u32 s88, s88, {MACC}')
    a('s_lshl_b32 s89, s4, 12')
    a(f's_add_u32 s89, s89, {SIDE - 4096}')
    a(f's_cmp_eq_u32 s{cont}, 1')
    a('s_cselect_b32 s88, s89, s88')
    a(f'v_add_u32 v{ad}, s88, v{ad}')
    a(f's_mov_b32 s89, {NLN2:#x}')
    for bp in range(2):
        for i in range(4):
            a(f'v_mul_f32 v{ACC + 32*bp + 4*i}, s89, v{ACC + 32*bp + 4*i}')
            a(f'v_mul_f32 v{ACC + 32*bp + 16 + 4*i}, s89, v{ACC + 32*bp + 16 + 4*i}')
    for i in range(4):
        a(f'v_xor_b32 v{T+i}, {i*32}, v{ad}')
        a(f'v_xor_b32 v{T+4+i}, {i*32 ^ 128}, v{ad}')
    a(f's_cmp_eq_u32 s{cont}, 1')
    a(f's_cbranch_scc1 k2_fl_w{tag}')
    a('s_cmp_eq_u32 s27, 0')
    a(f's_cbranch_scc0 k2_fl_rmw{tag}')
    a.label(f'k2_fl_w{tag}')
    D = []
    D.append(f'k2_fl_rmw{tag}:')
    for bp in range(2):
        for i in range(4):
            D.append(f'ds_read_b32 v{SRCr+4*bp+i}, v{T+4*bp+i} offset:{i*1024}')
    D.append('s_waitcnt lgkmcnt(0)')
    for bp in range(2):
        for i in range(4):
            o = SRCr + 4 * bp + i
            x0, x1 = ACC + 32 * bp + 4 * i, ACC + 32 * bp + 16 + 4 * i
            D += [f'v_lshlrev_b32 v{t0}, 16, v{o}', f'v_add_f32 v{x0}, v{x0}, v{t0}', f'v_and_b32 v{t0}, 0xffff0000, v{o}', f'v_add_f32 v{x1}, v{x1}, v{t0}']
    D.append(f's_branch k2_fl_w{tag}')
    DEFER.extend(D)
    for bp in range(2):
        for i in range(4):
            x0, x1 = ACC + 32 * bp + 4 * i, ACC + 32 * bp + 16 + 4 * i
            a(f'v_cvt_pk_bf16_f32 v{x0}, v{x0}, v{x1}')
    for bp in range(2):
        for i in range(4):
            a(f'ds_write_b32 v{T+4*bp+i}, v{ACC + 32*bp + 4*i} offset:{i*1024}')
    P = [ACC + 4 * (k // 3) + (k % 3) + 1 for k in range(12)]
    for k in range(12): a(f'v_mul_f32 v{P[k]}, v{P[k]}, v{V_WX}')
    for b in range(1, 4):
        for k in range(12): a(f'v_fmac_f32 v{P[k]}, v{P[k]+16*b}, v{V_WX+b}')
    for j in range(6): a(f'v_permlane16_swap_b32 v{P[2*j]}, v{P[2*j+1]}')
    for j in range(6): a(f'v_add_f32 v{P[2*j]}, v{P[2*j]}, v{P[2*j+1]}')
    S = [P[2*j] for j in range(6)]
    U = [P[1], P[3], P[5]]
    for j in range(3):
        a(f'v_add_f32_dpp v{U[j]}, v{S[2*j]}, v{S[2*j]} row_ror:8 row_mask:0xf bank_mask:0x3')
    for j in range(3):
        a(f'v_add_f32_dpp v{U[j]}, v{S[2*j+1]}, v{S[2*j+1]} row_ror:8 row_mask:0xf bank_mask:0xc')
    V0, V1 = P[7], P[9]
    a(f'v_add_f32_dpp v{V0}, v{U[0]}, v{U[0]} row_half_mirror row_mask:0xf bank_mask:0x5')
    a(f'v_add_f32_dpp v{V1}, v{U[2]}, v{U[2]} row_half_mirror row_mask:0xf bank_mask:0xf')
    a(f'v_add_f32_dpp v{V0}, v{U[1]}, v{U[1]} row_half_mirror row_mask:0xf bank_mask:0xa')
    for mod in ('quad_perm:[1,0,3,2]', 'quad_perm:[2,3,0,1]'):
        for v in (V0, V1):
            a(f'v_add_f32_dpp v{v}, v{v}, v{v} {mod} row_mask:0xf bank_mask:0xf')
    a(f's_mul_i32 s88, s{sub}, 192')
    a(f's_add_u32 s88, s88, {PBO}')
    a('s_mul_i32 s89, s4, 192')
    a(f's_add_u32 s89, s89, {PBS - 192}')
    a(f's_cmp_eq_u32 s{cont}, 1')
    a('s_cselect_b32 s88, s89, s88')
    a('s_mul_i32 s89, s5, 96')
    a('s_add_u32 s88, s88, s89')
    a(f'v_add_u32 v{ad}, s88, v{V_PO0}')
    a(f'v_add_u32 v{t0}, s88, v{V_PO1}')
    a('s_mov_b32 exec_lo, 0x11111111')
    a('s_mov_b32 exec_hi, 0x11111111')
    a(f'ds_write_b32 v{ad}, v{V0}')
    a('s_mov_b32 exec_lo, 0x01010101')
    a('s_mov_b32 exec_hi, 0x01010101')
    a(f'ds_write_b32 v{t0}, v{V1}')
    a('s_mov_b64 exec, -1')

def gen_k2(a, dbg=False):
    a.label('k2_main_kernel')
    a(f's_cmp_ge_u32 s2, {T_}')
    a('s_cbranch_scc1 k2_done')
    load_kernargs(a)
    a('v_and_b32 v1, 63, v0')
    a('v_lshrrev_b32 v2, 6, v0')
    a('v_readfirstlane_b32 s3, v2')
    a('s_lshr_b32 s4, s3, 1')
    a('s_sub_u32 s88, 5, s4')
    a('s_cmp_ge_u32 s3, 4')
    a('s_cselect_b32 s4, s88, s4')
    a('s_and_b32 s5, s3, 1')
    a('s_waitcnt lgkmcnt(0)')
    srd(a, 40, 36, 37, 0, 0x2000000)
    srd(a, 44, 36, 37, BT, N * 512)
    srd(a, 48, 20, 21, 0, E * 32)
    srd(a, 52, 18, 19, 0, N * 6)
    srd(a, 56, 16, 17, 0, N * 512)
    srd(a, 60, 32, 33, 0, 2590000 * 2)
    srd(a, 68, 28, 29, 0, 512)
    stamp(a, 0, dbg)
    stamp(a, 8, dbg, 252, 's_memtime')
    a('s_mov_b32 s66, 0')
    a('s_mov_b32 s67, 0')
    a('s_mov_b32 s27, 0')
    a('v_lshlrev_b32 v15, 4, v0')
    a('s_mul_i32 s88, s2, 16000')
    a(f's_add_u32 s88, s88, {CELL}')
    a('buffer_load_dwordx4 v[24:27], v15, s[40:43], s88 offen')
    a('v_cmp_gt_u32 vcc, 488, v0')
    a('v_mov_b32 v31, 0')
    a('s_and_saveexec_b64 s[90:91], vcc')
    a('v_add_u32 v16, 8192, v15')
    a('buffer_load_dwordx4 v[28:31], v16, s[40:43], s88 offen')
    a('s_mov_b64 exec, s[90:91]')
    a('v_lshlrev_b32 v15, 2, v0')
    a(f'v_add_u32 v15, {OVFC}, v15')
    a('v_cmp_gt_u32 vcc, 250, v0')
    a('v_mov_b32 v20, 0')
    a('s_and_saveexec_b64 s[90:91], vcc')
    a('buffer_load_dword v20, v15, s[40:43], 0 offen')
    a('s_mov_b64 exec, s[90:91]')
    a('s_mul_i32 s88, s2, 40')
    a('v_add_u32 v16, s88, v0')
    a('v_mul_u32_u24 v17, 6, v16')
    a('v_and_b32 v17, -4, v17')
    a('v_cmp_gt_u32 vcc, 40, v0')
    a('s_and_saveexec_b64 s[90:91], vcc')
    a('buffer_load_dwordx2 v[18:19], v17, s[52:55], 0 offen')
    a('s_mov_b64 exec, s[90:91]')
    NV0 = 4
    a('v_lshlrev_b32 v12, 4, v1')
    a('s_mul_i32 s88, s2, 20480')
    a(f's_add_u32 s88, s88, {AT}')
    for j in range(3):
        a(f's_lshl_b32 s89, s3, 10')
        a(f's_add_u32 s89, s89, {j*8192}')
        if j == 2:
            a('s_cmp_ge_u32 s3, 4')
            a('s_cbranch_scc1 k2_noat')
        a(f's_add_u32 m0, s89, {ATL}')
        a('s_add_u32 s89, s89, s88')
        a('buffer_load_dwordx4 v12, s[40:43], s89 offen lds')
    a.label('k2_noat')
    for j in range(3):
        a('v_lshrrev_b32 v13, 5, v1')
        a('s_mul_i32 s89, s3, 6')
        a(f's_add_u32 s89, s89, {2*j}')
        a('v_add_u32 v13, s89, v13')
        a('v_and_b32 v14, 15, v13')
        a('v_and_b32 v15, 31, v1')
        a('v_xor_b32 v14, v14, v15')
        a('v_lshlrev_b32 v14, 4, v14')
        a('s_mul_i32 s90, s2, 40')
        a('v_add_u32 v13, s90, v13')
        a('v_lshl_add_u32 v14, v13, 9, v14')
        a('s_lshl_b32 s89, s89, 9')
        a(f's_add_u32 m0, s89, {HT}')
        a('buffer_load_dwordx4 v14, s[56:59], 0 offen lds')
    a('s_lshl_b32 s88, s5, 12')
    a(f's_add_u32 s88, s88, {W3P}')
    for b in range(4):
        a(f'buffer_load_dwordx4 {vr(W3+4*b,4)}, v12, s[40:43], s88 offen offset:{1024*b}')
    a('v_and_b32 v13, 31, v1')
    a('v_lshrrev_b32 v14, 5, v1')
    a('s_lshl_b32 s88, s5, 8')
    a('v_lshlrev_b32 v15, 1, v13')
    for b in range(4):
        a(f'buffer_load_ushort v{V_WX+b}, v15, s[68:71], s88 offen offset:{64*b}')
    a('s_lshl_b32 s88, s5, 11')
    a(f's_add_u32 s88, s88, {WDP}')
    a('v_lshlrev_b32 v15, 4, v13')
    for b in range(4):
        a(f'buffer_load_dwordx4 {vr(WDA+4*b,4)}, v15, s[40:43], s88 offen offset:{512*b}')
    WH = 32
    a(f's_mov_b32 s92, {NL2E:#x}')
    a('s_lshl_b32 s86, s5, 8')
    a('s_lshl_b32 s87, s3, 13')
    a('s_lshl_b32 s39, s3, 10')
    a(f's_add_u32 s39, s39, {EAP}')
    a(f'v_mov_b32 v{V_Z}, 0')
    a(f'v_lshlrev_b32 v{V_E4}, 2, v13')
    a(f'v_add_u32 v{V_E4}, {W0}, v{V_E4}')
    a(f'v_lshrrev_b32 v{V_EI}, 1, v1')
    a(f'v_lshlrev_b32 v{V_EI}, 2, v{V_EI}')
    a(f'v_add_u32 v{V_EI}, {W1}, v{V_EI}')
    a(f'v_lshlrev_b32 v{V_LCE}, 5, v13')
    a(f'v_lshl_add_u32 v{V_LCE}, v14, 4, v{V_LCE}')
    a(f'v_add_u32 v{V_LCE}, s39, v{V_LCE}')
    a(f'v_lshrrev_b32 v{V_LCS}, 4, v1')
    a(f'v_lshlrev_b32 v{V_LCS}, 5, v{V_LCS}')
    a(f'v_add_u32 v{V_LCS}, {SRC}, v{V_LCS}')
    a('s_lshl_b32 s88, s3, 11')
    a(f's_add_u32 s88, s88, {JIT}')
    a('v_bfe_u32 v16, v13, 4, 1')
    a(f'v_lshlrev_b32 v{V_LCL}, 10, v16')
    a('v_bfe_u32 v16, v13, 2, 1')
    a(f'v_lshl_add_u32 v{V_LCL}, v16, 9, v{V_LCL}')
    a('v_bfe_u32 v16, v13, 3, 1')
    a(f'v_lshl_add_u32 v{V_LCL}, v16, 3, v{V_LCL}')
    a('v_and_b32 v16, 3, v13')
    a(f'v_lshl_add_u32 v{V_LCL}, v16, 1, v{V_LCL}')
    a(f'v_lshl_add_u32 v{V_LCL}, v14, 5, v{V_LCL}')
    a(f'v_add_u32 v{V_LCL}, s88, v{V_LCL}')
    a(f'v_lshlrev_b32 v{V_LRD}, 4, v1')
    a(f'v_add_u32 v{V_LRD}, s88, v{V_LRD}')
    a('v_and_b32 v16, 7, v13')
    a(f'v_lshlrev_b32 v{V_RB}, 10, v16')
    a('v_lshrrev_b32 v16, 3, v13')
    a(f'v_lshl_add_u32 v{V_RB}, v16, 8, v{V_RB}')
    a('v_and_b32 v16, 15, v13')
    a('v_xor_b32 v16, v16, v14')
    a(f'v_lshl_add_u32 v{V_RB}, v16, 4, v{V_RB}')
    a(f'v_add_u32 v{V_RB}, s87, v{V_RB}')
    a('v_and_b32 v16, 15, v1')
    a('v_bfe_u32 v17, v1, 4, 1')
    a('v_lshlrev_b32 v17, 3, v17')
    a('v_xor_b32 v16, v16, v17')
    a(f'v_lshlrev_b32 v{V_LCD}, 4, v16')
    a('s_lshl_b32 s88, s5, 7')
    a('v_add_u32 v16, s88, v13')
    a('v_lshlrev_b32 v16, 4, v16')
    a(f'v_add_u32 v{V_LCA}, {ATL}, v16')
    a('v_lshrrev_b32 v16, 4, v1')
    a('v_bfe_u32 v17, v1, 2, 2')
    a('v_and_b32 v21, 1, v17')
    a('v_lshrrev_b32 v22, 1, v17')
    a('v_lshl_add_u32 v21, v21, 1, v22')
    a('v_and_b32 v23, 1, v16')
    a('v_lshl_add_u32 v21, v21, 1, v23')
    a('v_lshl_add_u32 v22, v22, 1, v23')
    a('v_add_u32 v22, 8, v22')
    a('v_lshrrev_b32 v16, 1, v16')
    a('v_mul_u32_u24 v16, 12, v16')
    a('v_add_u32 v21, v21, v16'); a('v_add_u32 v22, v22, v16')
    a(f'v_lshlrev_b32 v{V_PO0}, 2, v21'); a(f'v_lshlrev_b32 v{V_PO1}, 2, v22')
    a('v_lshlrev_b32 v16, 3, v14')
    a('v_sub_u32 v16, v13, v16')
    for sidx in range(2):
        for p in range(4):
            lo, hi = 16*sidx + 2*p, 16*sidx + 2*p + 1
            a(f'v_cmp_eq_u32 vcc, {lo}, v16')
            a(f'v_mov_b32 v17, 0x3f80')
            a(f'v_cndmask_b32 v21, 0, v17, vcc')
            a(f'v_cmp_eq_u32 vcc, {hi}, v16')
            a(f'v_mov_b32 v17, 0x3f800000')
            a(f'v_cndmask_b32 v{SEL+4*sidx+p}, v21, v17, vcc')
    z = T
    for i in range(4): a(f'v_mov_b32 v{z+i}, 0')
    a(f'ds_write_b128 v{V_LRD}, v[{z}:{z+3}]')
    a(f'ds_write_b128 v{V_LRD}, v[{z}:{z+3}] offset:1024')
    a('v_cmp_gt_u32 vcc, 120, v0')
    a('s_and_saveexec_b64 s[90:91], vcc')
    a('v_lshlrev_b32 v16, 2, v0')
    a(f'v_add_u32 v16, {PACC}, v16')
    a(f'ds_write_b32 v16, v{V_Z}')
    a('s_mov_b64 exec, s[90:91]')
    a('v_cmp_gt_u32 vcc, 64, v0')
    a('s_and_saveexec_b64 s[90:91], vcc')
    a('v_lshrrev_b32 v16, 3, v0')
    a('v_and_b32 v17, 7, v0')
    a('v_cmp_eq_u32 vcc, v16, v17')
    a('v_mov_b32 v17, 0x3f80')
    a('v_cndmask_b32 v17, 0, v17, vcc')
    a('v_lshlrev_b32 v16, 1, v0')
    a(f'v_add_u32 v16, {LUT}, v16')
    a('ds_write_b16 v16, v17')
    a('s_mov_b64 exec, s[90:91]')
    for i in range(4): a(f'v_mov_b32 v{OH+i}, 0')
    a('s_branch k2_ld_done')
    a.label('k2_batch')
    a('s_cmp_eq_u32 s66, 2')
    a('s_cbranch_scc1 k2_ld_ovf')
    a('v_lshlrev_b32 v15, 4, v0')
    a('s_mul_i32 s88, s2, 16000')
    a(f's_add_u32 s88, s88, {CELL}')
    a('buffer_load_dwordx4 v[24:27], v15, s[40:43], s88 offen')
    a('v_cmp_gt_u32 vcc, 488, v0')
    a('v_mov_b32 v31, 0')
    a('s_and_saveexec_b64 s[90:91], vcc')
    a('v_add_u32 v16, 8192, v15')
    a('buffer_load_dwordx4 v[28:31], v16, s[40:43], s88 offen')
    a('s_mov_b64 exec, s[90:91]')
    a('s_waitcnt vmcnt(0)')
    a('s_branch k2_ld_done')
    a.label('k2_ld_ovf')
    a('v_add_u32 v16, s21, v0')
    a('v_lshlrev_b32 v15, 3, v16')
    a('s_mul_i32 s88, s67, 5120')
    a(f's_add_u32 s88, s88, {OVF}')
    a('v_mov_b32 v25, -1')
    a('v_cmp_gt_u32 vcc, s97, v16')
    a('s_mov_b32 s89, 160')
    a('v_cmp_gt_u32 s[90:91], s89, v0')
    a('s_and_b64 vcc, vcc, s[90:91]')
    a('s_and_saveexec_b64 s[90:91], vcc')
    a('buffer_load_dwordx2 v[24:25], v15, s[40:43], s88 offen')
    a('s_mov_b64 exec, s[90:91]')
    a('s_waitcnt vmcnt(0)')
    a.label('k2_ld_done')
    for rep in range(2):
        a(f'v_add_u32 v16, {rep*512}, v0')
        a(f'v_cmp_gt_u32 vcc, {SC}, v16')
        a('s_and_saveexec_b64 s[90:91], vcc')
        a('v_lshlrev_b32 v15, 2, v16')
        a(f'v_add_u32 v15, {SRC}, v15')
        a('v_mov_b32 v16, 0x80000000')
        a(f'ds_write_b32 v15, v{V_Z}')
        a(f'ds_write_b32 v15, v16 offset:{W0-SRC}')
        a(f'ds_write_b32 v15, v{V_Z} offset:{W1-SRC}')
        a('s_mov_b64 exec, s[90:91]')
    a('v_cmp_gt_u32 vcc, 16, v0')
    a('s_and_saveexec_b64 s[90:91], vcc')
    a('v_lshlrev_b32 v15, 2, v0')
    a(f'v_add_u32 v15, {CNT}, v15')
    a(f'ds_write_b32 v15, v{V_Z}')
    a('s_mov_b64 exec, s[90:91]')
    a('s_waitcnt lgkmcnt(0)')
    a('s_barrier')
    a('s_cmp_eq_u32 s66, 0')
    a('s_cbranch_scc0 k2_later')
    a('s_waitcnt vmcnt(17)')
    stamp(a, 1, dbg)
    a('s_mul_i32 s88, s2, 40')
    a('v_add_u32 v16, s88, v0')
    a('v_and_b32 v16, 1, v16')
    a('v_lshlrev_b32 v16, 4, v16')
    a('v_alignbit_b32 v22, v19, v18, v16')
    a('v_lshrrev_b32 v23, v16, v19')
    a('v_lshlrev_b32 v15, 3, v0')
    a(f'v_add_u32 v15, {POST}, v15')
    a('v_cmp_gt_u32 vcc, 40, v0')
    a('s_and_saveexec_b64 s[90:91], vcc')
    a('ds_write_b64 v15, v[22:23]')
    a('s_mov_b64 exec, s[90:91]')
    a('v_cmp_ne_u32 vcc, 0, v20')
    a('s_cbranch_vccz k2_later')
    a(f'v_mov_b32 v15, {CNT+32}')
    a('v_mov_b32 v16, 1')
    a('ds_write_b32 v15, v16')
    a.label('k2_later')
    CI0, CI1, VC0, VC1 = 21, 22, 18, 19
    a('s_cmp_eq_u32 s66, 2')
    a('s_cbranch_scc1 k2_v_ovf')
    a(f'v_lshrrev_b32 v{CI0}, 2, v0')
    a(f'v_add_u32 v{CI1}, 128, v{CI0}')
    a(f'v_mov_b32_dpp v{VC0}, v27 quad_perm:[3,3,3,3] row_mask:0xf bank_mask:0xf')
    a(f'v_mov_b32_dpp v{VC1}, v31 quad_perm:[3,3,3,3] row_mask:0xf bank_mask:0xf')
    a('v_and_b32 v15, 3, v0')
    a('v_lshlrev_b32 v15, 2, v15')
    for r in (VC0, VC1):
        a(f'v_min_u32 v{r}, {CAP}, v{r}')
        a(f'v_sub_i32 v{r}, v{r}, v15')
    a('s_cmp_eq_u32 s66, 1')
    a('s_cbranch_scc0 k2_v_done')
    for r, c in ((VC0, CI0), (VC1, CI1)):
        a(f'v_subrev_u32 v15, s67, v{c}')
        a('v_cmp_gt_u32 vcc, 12, v15')
        a(f'v_cndmask_b32 v{r}, 0, v{r}, vcc')
    a('s_branch k2_v_done')
    a.label('k2_v_ovf')
    a(f'v_mov_b32 v{CI0}, s67'); a(f'v_mov_b32 v{CI1}, s67')
    a(f'v_cmp_eq_u32 vcc, s2, v25')
    a(f'v_cndmask_b32 v{VC0}, 0, 1, vcc')
    a(f'v_mov_b32 v{VC1}, 0')
    a.label('k2_v_done')
    a(f'v_mul_u32_u24 v{CI0}, 640, v{CI0}')
    a(f'v_mul_u32_u24 v{CI1}, 640, v{CI1}')
    a('v_mov_b32 v16, 1')
    for i in range(8):
        vc = VC0 if i < 4 else VC1
        a(f'v_cmp_lt_i32 vcc, {i%4}, v{vc}')
        a('s_and_saveexec_b64 s[90:91], vcc')
        a(f's_cbranch_execz k2_rk{i}')
        a(f'v_bfe_u32 v15, v{24+i}, 17, 3')
        a('v_lshlrev_b32 v15, 2, v15')
        a(f'v_add_u32 v15, {CNT}, v15')
        a(f'ds_add_rtn_u32 v{T+i}, v15, v16')
        a.label(f'k2_rk{i}')
        a('s_mov_b64 exec, s[90:91]')
    a('s_waitcnt lgkmcnt(0)')
    for i in range(8):
        vc = VC0 if i < 4 else VC1
        ci = CI0 if i < 4 else CI1
        a(f'v_cmp_gt_u32 vcc, {CAPS}, v{T+i}')
        a(f'v_cmp_lt_i32 s[88:89], {i%4}, v{vc}')
        a('s_and_b64 vcc, vcc, s[88:89]')
        a('s_and_saveexec_b64 s[90:91], vcc')
        a(f's_cbranch_execz k2_sc{i}')
        a(f'v_bfe_u32 v15, v{24+i}, 17, 3')
        a(f'v_mul_u32_u24 v15, {CAPS}, v15')
        a(f'v_add_u32 v15, v15, v{T+i}')
        a('v_lshlrev_b32 v15, 2, v15')
        a(f'v_add_u32 v15, {SRC}, v15')
        a(f'v_and_b32 v16, 0x3fff, v{24+i}')
        a('v_lshlrev_b32 v16, 9, v16')
        a(f'v_lshrrev_b32 v17, 20, v{24+i}')
        a(f'v_add_u32 v17, v17, v{ci}')
        a('ds_write_b32 v15, v16')
        a(f'ds_write_b32 v15, v{24+i} offset:{W0-SRC}')
        a(f'ds_write_b32 v15, v17 offset:{W1-SRC}')
        a.label(f'k2_sc{i}')
        a('s_mov_b64 exec, s[90:91]')
    a('s_waitcnt lgkmcnt(0)')
    a('s_barrier')
    stamp(a, 2, dbg)
    a(f'v_mov_b32 v15, {CNT}')
    a('ds_read_b128 v[24:27], v15')
    a('ds_read_b32 v28, v15 offset:16')
    a('ds_read_b32 v29, v15 offset:32')
    a('s_waitcnt lgkmcnt(0)')
    a('s_mov_b32 s72, 0')
    a('s_mov_b32 s77, 0')
    for k in range(5):
        a(f'v_readfirstlane_b32 s88, v{24+k}')
        a('s_max_u32 s91, s91, s88') if k else a('s_mov_b32 s91, s88')
        a('s_add_u32 s89, s88, 7')
        a(f's_and_b32 s{CP+k}, s89, -8')
        a('s_add_u32 s89, s88, 31')
        a('s_lshr_b32 s89, s89, 5')
        a(f's_add_u32 s{73+k}, s{72+k}, s89')
    a('s_cmp_eq_u32 s66, 0')
    a('s_cbranch_scc0 k2_noflag2')
    a('v_readfirstlane_b32 s85, v29')
    a.label('k2_noflag2')
    a(f's_cmp_gt_u32 s91, {CAPS}')
    a('s_cbranch_scc0 k2_fits')
    a('s_mov_b32 s66, 1')
    a('s_mov_b32 s67, 0')
    a('s_waitcnt vmcnt(0)')
    a('s_barrier')
    a('s_branch k2_split_entry')
    a.label('k2_fits')
    a('s_mul_i32 s89, s77, s4')
    a('s_lshr_b32 s21, s89, 2')
    a('s_add_u32 s89, s4, 1')
    a('s_mul_i32 s89, s77, s89')
    a('s_lshr_b32 s79, s89, 2')
    a('s_mov_b32 s28, s21')
    desc(a, 28, 78, 81, 80, 82, 83)
    a('s_add_u32 s29, s28, 1')
    desc(a, 29, 94, 95, 96, 100, 101)
    a('s_add_u32 s30, s28, 2')
    desc(a, 30, 6, 7, 8, 9, 10)
    a('s_mov_b32 s38, s72')
    for k in range(1, 5):
        a(f's_cmp_eq_u32 s80, {k}')
        a(f's_cselect_b32 s38, s{72+k}, s38')
    a('s_cmp_gt_u32 s28, s38')
    a('s_cselect_b32 s38, 1, 0')
    read_lists(a, 78)
    a('s_waitcnt lgkmcnt(0)')
    issue_loads(a)
    stamp(a, 12, dbg)
    a('s_cmp_eq_u32 s66, 0')
    a('s_cbranch_scc0 k2_noh')
    a('s_cmp_eq_u32 s27, 0')
    a('s_cbranch_scc0 k2_noh')
    a('v_lshlrev_b32 v12, 4, v1')
    a('s_lshl_b32 s88, s3, 15')
    a(f's_add_u32 s88, s88, {WHP}')
    for j in range(16):
        a(f's_add_u32 s89, s88, {j*1024}')
        a(f'buffer_load_dwordx4 {vr(WH+4*j,4)}, v12, s[40:43], s89 offen')
    a('s_waitcnt vmcnt(26)')
    a('s_barrier')
    a(f's_mov_b32 s89, {NLN2:#x}')
    for b in range(4):
        a(f'v_lshlrev_b32 v{V_WX+b}, 16, v{V_WX+b}')
        a(f'v_mul_f32 v{V_WX+b}, s89, v{V_WX+b}')
    a('v_and_b32 v13, 15, v1')
    a('v_lshrrev_b32 v14, 4, v1')
    a('v_xor_b32 v15, v14, v13')
    a('v_lshlrev_b32 v15, 4, v15')
    a('v_lshl_add_u32 v15, v13, 9, v15')
    a(f'v_add_u32 v15, {HT}, v15')
    HA, HF = 112, 136
    HF = [96, 16]
    for ksp in range(8):
        a(f'v_xor_b32 v12, {(4*ksp % 16)*16}, v15')
        off = (256 if ksp >= 4 else 0)
        fr = HF[ksp % 2]
        for rb in range(3):
            a(f'ds_read_b128 {vr(fr+4*rb,4)}, v12 offset:{off + rb*8192}')
        a(f's_waitcnt vmcnt({14 - 2*ksp}) lgkmcnt(0)')
        for cb in range(2):
            wreg = vr(WH + 4 * (2 * ksp + cb), 4)
            for rb in range(3):
                d = vr(HA + 8 * rb + 4 * cb, 4)
                c = '0' if ksp == 0 else d
                a(f'v_mfma_f32_16x16x32_bf16 {d}, {vr(fr+4*rb,4)}, {wreg}, {c}')
    for rb in range(3):
        for r in range(4):
            a(f'v_cvt_pk_bf16_f32 v{H1+4*rb+r}, v{HA+8*rb+r}, v{HA+8*rb+4+r}')
    a('s_barrier')
    a.label('k2_noh')
    stamp(a, 3, dbg)
    a('s_cmp_eq_u32 s83, 0')
    a('s_cbranch_scc1 k2_edge_done')
    a('s_waitcnt vmcnt(0) lgkmcnt(0)')
    geometry(a)
    read_rows(a)
    read_wda(a, 80)
    read_ea_oh(a)
    read_lists(a, 94)
    a('s_waitcnt lgkmcnt(0)')
    a('s_cmp_eq_u32 s101, 0')
    a('s_cbranch_scc1 k2_p_nodma')
    issue_loads(a)
    a.label('k2_p_nodma')
    for m in A_ops(0, 0):
        for x in m: a(x)
    a('s_mov_b32 s84, 1')
    a('s_mov_b32 s15, 0')
    a('s_mov_b32 s12, 0')
    if PROF:
        for i in range(8): a(f'v_mov_b32 v{244+i}, 0')
    a.label('k2_grp')
    PT(a, 0)
    def cprev():
        uid[0] += 1; u = uid[0]
        c = C_ops(3, 1, 11)
        return [[f's_cmp_eq_u32 s15, 0', f's_cbranch_scc1 k2_np{u}a'] + c[0] + [f'k2_np{u}a:'],
                [f's_cmp_eq_u32 s15, 0', f's_cbranch_scc1 k2_np{u}b'] + c[1] + [f'k2_np{u}b:']]
    quarter(a, 0, 0, cprev, 81)
    jit_l(a, 81)
    quarter(a, 0, 1, lambda: A_ops(1, 1)[0:2], 81)
    quarter(a, 0, 2, lambda: A_ops(1, 1)[2:3], 81)
    quarter(a, 0, 3, lambda: A_ops(1, 1)[3:4], 81)
    PT(a, 1)
    a('s_cmp_eq_u32 s12, 0')
    a('s_cbranch_scc1 k2_nofl')
    flush(a, 13, 14, 'a')
    a.label('k2_nofl')
    PT(a, 2)
    a('s_waitcnt lgkmcnt(0)')
    quarter(a, 1, 0, lambda: C_ops(0, 0, 84), 81)
    quarter(a, 1, 1, lambda: A_ops(2, 0)[0:2], 81)
    quarter(a, 1, 2, lambda: A_ops(2, 0)[2:3], 81)
    quarter(a, 1, 3, lambda: A_ops(2, 0)[3:4], 81)
    PT(a, 3)
    quarter(a, 0, 0, lambda: C_ops(1, 1, 84), 81)
    quarter(a, 0, 1, lambda: A_ops(3, 1)[0:2], 81)
    a('s_cmp_eq_u32 s101, 0')
    a('s_cbranch_scc1 k2_nx1')
    a('s_waitcnt vmcnt(0)')
    read_rows(a)
    geometry(a)
    a.label('k2_nx1')
    quarter(a, 0, 2, lambda: A_ops(3, 1)[2:3], 81)
    quarter(a, 0, 3, lambda: A_ops(3, 1)[3:4], 81)
    a('s_cmp_eq_u32 s101, 0')
    a('s_cbranch_scc1 k2_nx2')
    read_ea_oh(a)
    read_lists(a, 6)
    a('s_cmp_eq_u32 s96, s80')
    a('s_cbranch_scc1 k2_nx2')
    read_wda(a, 96)
    a.label('k2_nx2')
    PT(a, 4)
    def mkA0(ks):
        uid[0] += 1; uu = uid[0]
        A0 = A_ops(0, 0)
        return [[f's_cmp_eq_u32 s101, 0', f's_cbranch_scc1 k2_na{uu}_{k}'] + A0[k] + [f'k2_na{uu}_{k}:'] for k in ks]
    quarter(a, 1, 0, lambda: C_ops(2, 0, 84), 81)
    a('s_waitcnt lgkmcnt(0)')
    a('s_cmp_eq_u32 s10, 0')
    a('s_cbranch_scc1 k2_nx3')
    issue_loads(a)
    a.label('k2_nx3')
    quarter(a, 1, 1, lambda: mkA0([0, 1]), 81)
    quarter(a, 1, 2, lambda: mkA0([2]), 81)
    quarter(a, 1, 3, lambda: mkA0([3]), 81)
    PT(a, 5)
    if PROF:
        a('s_waitcnt lgkmcnt(0)')
        for i in range(5):
            a(f's_sub_u32 s88, s{PTR[i+1]}, s{PTR[i]}')
            a(f'v_add_u32 v{244+i}, s88, v{244+i}')
        a(f'v_add_u32 v249, 1, v249')
    a('s_mov_b32 s11, s84'); a('s_mov_b32 s12, s82'); a('s_mov_b32 s13, s80'); a('s_mov_b32 s14, s38'); a('s_mov_b32 s15, 1')
    a('s_mov_b32 s84, s82')
    a('s_cmp_eq_u32 s82, 1')
    a('s_cselect_b32 s38, 0, s38')
    a('s_mov_b32 s78, s94'); a('s_mov_b32 s81, s95'); a('s_mov_b32 s80, s96'); a('s_mov_b32 s82, s100'); a('s_mov_b32 s83, s101')
    a('s_mov_b32 s94, s6'); a('s_mov_b32 s95, s7'); a('s_mov_b32 s96, s8'); a('s_mov_b32 s100, s9'); a('s_mov_b32 s101, s10')
    a('s_add_u32 s30, s30, 1')
    desc(a, 30, 6, 7, 8, 9, 10)
    a('s_cmp_eq_u32 s83, 1')
    a('s_cbranch_scc1 k2_grp')
    for m in C_ops(3, 1, 11):
        for x in m: a(x)
    flush(a, 13, 14, 'b')
    if PROF:
        a('s_lshl_b32 s88, s2, 3'); a('s_add_u32 s88, s88, s3'); a('s_lshl_b32 s88, s88, 5')
        a(f's_add_u32 s88, s88, {DBGW + 0x20000}')
        a(f'v_mov_b32 v{V_A}, 0')
        a('s_mov_b64 exec, 1')
        a(f'buffer_store_dwordx4 v[244:247], v{V_A}, s[40:43], s88 offen')
        a(f'buffer_store_dwordx2 v[248:249], v{V_A}, s[40:43], s88 offen offset:16')
        a('s_mov_b64 exec, -1')
    a.label('k2_edge_done')
    a('v_lshlrev_b32 v12, 4, v1')
    a('s_lshl_b32 s88, s3, 15')
    a(f's_add_u32 s88, s88, {WHP + 16384}')
    WM = 96
    for j in range(16):
        a(f's_add_u32 s89, s88, {j*1024}')
        a(f'buffer_load_dwordx4 {vr(WM+4*j,4)}, v12, s[40:43], s89 offen')
    a('s_waitcnt lgkmcnt(0)')
    a('s_barrier')
    stamp(a, 4, dbg)
    for k in range(1, 4):
        a(f's_mul_i32 s7, s77, {k}')
        a('s_lshr_b32 s7, s7, 2')
        a(f's_mul_i32 s8, s77, {k+1}')
        a('s_lshr_b32 s8, s8, 2')
        a('s_mov_b32 s9, 0'); a('s_mov_b32 s10, s72')
        for j in range(1, 5):
            a(f's_cmp_ge_u32 s7, s{72+j}')
            a(f's_cselect_b32 s9, {j}, s9')
            a(f's_cselect_b32 s10, s{72+j}, s10')
        a('s_cmp_lt_u32 s7, s8')
        a(f's_cbranch_scc0 k2_mg{k}')
        a('s_cmp_gt_u32 s7, s10')
        a(f's_cbranch_scc0 k2_mg{k}')
        a('v_lshlrev_b32 v16, 3, v0')
        a('s_lshl_b32 s11, s9, 12')
        a(f's_add_u32 s11, s11, {MACC}')
        a('v_add_u32 v17, s11, v16')
        a(f'v_add_u32 v18, {SIDE + (k-1)*4096}, v16')
        a('ds_read_b64 v[20:21], v17')
        a('ds_read_b64 v[22:23], v18')
        a('v_cmp_gt_u32 vcc, 24, v0')
        a('s_and_saveexec_b64 s[90:91], vcc')
        a('v_lshlrev_b32 v24, 2, v0')
        a(f'v_add_u32 v25, {PBS + (k-1)*192}, v24')
        a('ds_read_b32 v26, v25')
        a('ds_read_b32 v27, v25 offset:96')
        a('s_mul_i32 s11, s9, 96')
        a(f's_add_u32 s11, s11, {PACC}')
        a('v_add_u32 v25, s11, v24')
        a('ds_read_b32 v28, v25')
        a('s_waitcnt lgkmcnt(0)')
        a('v_add_f32 v26, v26, v27'); a('v_add_f32 v28, v28, v26')
        a('ds_write_b32 v25, v28')
        a('s_mov_b64 exec, s[90:91]')
        a('s_waitcnt lgkmcnt(0)')
        for j in range(2):
            a(f'v_lshlrev_b32 v24, 16, v{20+j}'); a(f'v_lshlrev_b32 v25, 16, v{22+j}'); a('v_add_f32 v24, v24, v25')
            a(f'v_and_b32 v26, 0xffff0000, v{20+j}'); a(f'v_and_b32 v27, 0xffff0000, v{22+j}'); a('v_add_f32 v26, v26, v27')
            a(f'v_cvt_pk_bf16_f32 v{20+j}, v24, v26')
        a('ds_write_b64 v17, v[20:21]')
        a('s_waitcnt lgkmcnt(0)')
        a('s_barrier')
        a.label(f'k2_mg{k}')
    a('v_cmp_gt_u32 vcc, 120, v0')
    a('s_and_saveexec_b64 s[90:91], vcc')
    a('s_cbranch_execz k2_mgdone')
    a('v_mul_u32_u24 v16, 2731, v0')
    a('v_lshrrev_b32 v16, 16, v16')
    a('v_mul_u32_u24 v17, 24, v16')
    a('v_sub_u32 v17, v0, v17')
    a('v_mul_u32_u24 v18, 192, v16')
    a('v_lshl_add_u32 v18, v17, 2, v18')
    a(f'v_add_u32 v18, {PBO}, v18')
    a('ds_read_b32 v20, v18')
    a('ds_read_b32 v21, v18 offset:96')
    a('v_lshlrev_b32 v19, 2, v0')
    a(f'v_add_u32 v19, {PACC}, v19')
    a('ds_read_b32 v22, v19')
    a('v_lshlrev_b32 v23, 2, v16')
    a(f'v_add_u32 v23, {CNT}, v23')
    a('ds_read_b32 v23, v23')
    a('s_waitcnt lgkmcnt(0)')
    a('v_add_f32 v20, v20, v21')
    a('v_cmp_ne_u32 vcc, 0, v23')
    a('v_cndmask_b32 v20, 0, v20, vcc')
    a('v_add_f32 v22, v22, v20')
    a('ds_write_b32 v19, v22')
    a.label('k2_mgdone')
    a('s_mov_b64 exec, s[90:91]')
    a('s_cmp_eq_u32 s27, 0')
    a('s_cbranch_scc0 k2_nozero')
    for k in range(5):
        a(f's_cmp_eq_u32 s{CP+k}, 0')
        a(f's_cbranch_scc0 k2_nz{k}')
        a('v_lshlrev_b32 v16, 3, v0')
        a(f'v_add_u32 v16, {MACC + k*4096}, v16')
        a(f'v_mov_b32 v20, 0'); a('v_mov_b32 v21, 0')
        a('ds_write_b64 v16, v[20:21]')
        a.label(f'k2_nz{k}')
    a.label('k2_nozero')
    a('s_mov_b32 s27, 1')
    a('s_waitcnt lgkmcnt(0)')
    a('s_barrier')
    a('s_cmp_eq_u32 s66, 1')
    a('s_cbranch_scc0 k2_nb1')
    a('s_add_u32 s67, s67, 12')
    a('s_cmp_lt_u32 s67, 250')
    a('s_cbranch_scc1 k2_batch_w')
    a('s_mov_b32 s66, 3')
    a.label('k2_nb1')
    a('s_cmp_eq_u32 s85, 0')
    a('s_cbranch_scc1 k2_tail')
    a('s_cmp_eq_u32 s66, 2')
    a('s_cbranch_scc1 k2_ovf_more')
    a('s_mov_b32 s66, 2')
    a('s_mov_b32 s67, -1')
    a('s_branch k2_ovf_next')
    a.label('k2_ovf_more')
    a('s_add_u32 s21, s21o, 160'.replace('s21o', 's31'))
    a('s_mov_b32 s31, s21')
    a('s_cmp_lt_u32 s21, s97')
    a('s_cbranch_scc1 k2_batch_w')
    a.label('k2_ovf_next')
    a('s_add_u32 s67, s67, 1')
    a('s_cmp_ge_u32 s67, 250')
    a('s_cbranch_scc1 k2_tail')
    a('s_lshl_b32 s88, s67, 2')
    a(f's_add_u32 s88, s88, {OVFC}')
    a('s_load_dword s97, s[36:37], s88')
    a('s_waitcnt lgkmcnt(0)')
    a('s_cmp_eq_u32 s97, 0')
    a('s_cbranch_scc1 k2_ovf_next')
    a('s_mov_b32 s21, 0'); a('s_mov_b32 s31, 0')
    a.label('k2_batch_w')
    a('s_waitcnt vmcnt(0)')
    a('s_branch k2_batch')
    a.label('k2_split_entry')
    a('v_lshlrev_b32 v12, 4, v1')
    a('s_lshl_b32 s88, s3, 15')
    a(f's_add_u32 s88, s88, {WHP}')
    for j in range(16):
        a(f's_add_u32 s89, s88, {j*1024}')
        a(f'buffer_load_dwordx4 {vr(WH+4*j,4)}, v12, s[40:43], s89 offen')
    a('s_waitcnt vmcnt(0)')
    a(f's_mov_b32 s89, {NLN2:#x}')
    for b in range(4):
        a(f'v_lshlrev_b32 v{V_WX+b}, 16, v{V_WX+b}')
        a(f'v_mul_f32 v{V_WX+b}, s89, v{V_WX+b}')
    a('v_and_b32 v13, 15, v1')
    a('v_lshrrev_b32 v14, 4, v1')
    a('v_xor_b32 v15, v14, v13')
    a('v_lshlrev_b32 v15, 4, v15')
    a('v_lshl_add_u32 v15, v13, 9, v15')
    a(f'v_add_u32 v15, {HT}, v15')
    for ksp in range(8):
        a(f'v_xor_b32 v12, {(4*ksp % 16)*16}, v15')
        off = (256 if ksp >= 4 else 0)
        fr = HF[ksp % 2]
        for rb in range(3):
            a(f'ds_read_b128 {vr(fr+4*rb,4)}, v12 offset:{off + rb*8192}')
        a('s_waitcnt lgkmcnt(0)')
        for cb in range(2):
            wreg = vr(WH + 4 * (2 * ksp + cb), 4)
            for rb in range(3):
                d = vr(HA + 8 * rb + 4 * cb, 4)
                c = '0' if ksp == 0 else d
                a(f'v_mfma_f32_16x16x32_bf16 {d}, {vr(fr+4*rb,4)}, {wreg}, {c}')
    for rb in range(3):
        for r in range(4):
            a(f'v_cvt_pk_bf16_f32 v{H1+4*rb+r}, v{HA+8*rb+r}, v{HA+8*rb+4+r}')
    a('s_barrier')
    a('s_branch k2_batch')
    a.label('k2_tail')
    a('v_and_b32 v13, 15, v1')
    a('v_lshrrev_b32 v14, 4, v1')
    a('s_mul_i32 s88, s2, 40')
    a('v_lshlrev_b32 v15, 2, v14')
    a('v_add_u32 v15, s88, v15')
    a('v_lshlrev_b32 v15, 9, v15')
    a('v_lshl_add_u32 v15, v13, 2, v15')
    a('s_lshl_b32 s88, s3, 6')
    a('v_add_u32 v15, s88, v15')
    HR = 64
    for rb in range(3):
        for r in range(4):
            off = (16 * rb + r) * 512
            a(f's_mov_b32 s89, {off}')
            a(f'buffer_load_dword v{HR+4*rb+r}, v15, s[56:59], s89 offen')
    stamp(a, 5, dbg)
    a('v_xor_b32 v11, v14, v13')
    a('v_lshlrev_b32 v11, 4, v11')
    a('v_lshl_add_u32 v11, v13, 9, v11')
    a(f'v_add_u32 v11, {MACC}, v11')
    TA = 16
    for rb in range(3):
        for r in range(4):
            a(f'v_lshlrev_b32 v{TA+8*rb+r}, 16, v{H1+4*rb+r}')
            a(f'v_and_b32 v{TA+8*rb+4+r}, 0xffff0000, v{H1+4*rb+r}')
    for ksp in range(8):
        a(f'v_xor_b32 v12, {(4*ksp % 16)*16}, v11')
        off = (256 if ksp >= 4 else 0)
        fr = 40 + 12 * (ksp % 2)
        for rb in range(3):
            a(f'ds_read_b128 {vr(fr+4*rb,4)}, v12 offset:{off + rb*8192}')
        a(f's_waitcnt vmcnt({12 + 14 - 2*ksp}) lgkmcnt(0)')
        for cb in range(2):
            wreg = vr(WM + 4 * (2 * ksp + cb), 4)
            for rb in range(3):
                d = vr(TA + 8 * rb + 4 * cb, 4)
                a(f'v_mfma_f32_16x16x32_bf16 {d}, {vr(fr+4*rb,4)}, {wreg}, {d}')
    stamp(a, 6, dbg)
    a('s_waitcnt vmcnt(0)')
    for rb in range(3):
        if rb == 2:
            a('s_mov_b32 exec_hi, 0')
        for r in range(4):
            x0, x1 = TA + 8 * rb + r, TA + 8 * rb + 4 + r
            for k, x in enumerate((x0, x1)):
                t = 40 + k
                a(f'v_mul_f32 v{t}, s92, v{x}')
                a(f'v_exp_f32 v{t}, v{t}')
                a(f'v_add_f32 v{t}, 1.0, v{t}')
                a(f'v_rcp_f32 v{t}, v{t}')
                a(f'v_mul_f32 v{x}, v{x}, v{t}')
            h = HR + 4 * rb + r
            a(f'v_lshlrev_b32 v42, 16, v{h}')
            a(f'v_and_b32 v43, 0xffff0000, v{h}')
            a(f'v_add_f32 v{x0}, v{x0}, v42')
            a(f'v_add_f32 v{x1}, v{x1}, v43')
            a(f'v_cvt_pk_bf16_f32 v{h}, v{x0}, v{x1}')
            a(f's_mov_b32 s89, {(16 * rb + r) * 512}')
            a(f'buffer_store_dword v{h}, v15, s[60:63], s89 offen')
    a('s_mov_b64 exec, -1')
    stamp(a, 7, dbg)
    stamp(a, 9, dbg, 252, 's_memtime')
    a('s_cmp_ge_u32 s3, 2')
    a('s_cbranch_scc1 k2_done')
    a('v_cmp_gt_u32 vcc, 120, v0')
    a('s_and_saveexec_b64 s[90:91], vcc')
    a('s_cbranch_execz k2_done')
    a('v_mul_u32_u24 v16, 21846, v0')
    a('v_lshrrev_b32 v16, 16, v16')
    a('v_mul_u32_u24 v17, 3, v16')
    a('v_sub_u32 v17, v0, v17')
    a('v_lshrrev_b32 v18, 3, v16')
    a('v_mul_u32_u24 v18, 24, v18')
    a('v_and_b32 v19, 1, v16')
    a('v_mul_u32_u24 v19, 12, v19')
    a('v_add_u32 v18, v18, v19')
    a('v_bfe_u32 v19, v16, 1, 2')
    a('v_mul_u32_u24 v19, 3, v19')
    a('v_add3_u32 v18, v18, v19, v17')
    a('v_lshlrev_b32 v18, 2, v18')
    a(f'v_add_u32 v18, {PACC}, v18')
    a('ds_read_b32 v16, v18')
    a('s_mul_i32 s88, s2, 240')
    a('v_lshlrev_b32 v13, 1, v0')
    a('buffer_load_ushort v20, v13, s[52:55], s88 offen')
    a('s_waitcnt vmcnt(0) lgkmcnt(0)')
    a('v_lshlrev_b32 v20, 16, v20')
    a('v_add_f32 v16, v16, v20')
    a(f'v_cvt_pk_bf16_f32 v16, v16, v{V_Z}')
    a('s_add_u32 s88, s88, 5120000')
    a('buffer_store_short v16, v13, s[60:63], s88 offen')
    a.label('k2_done')
    a('s_endpgm')
    for x in DEFER: a(x)
    DEFER.clear()

if __name__ == '__main__':
    from gen import build, gen_k1, K1_LDS
    dbg = len(sys.argv) > 2 and sys.argv[2] == 'dbg'
    ks = [('k1_prep_kernel', 256, 256, K1_LDS, lambda a: gen_k1(a, dbg), 256),
          ('k2_main_kernel', T_, NW * 64, K2_LDS, lambda a: gen_k2(a, dbg), 256)]
    build(ks, sys.argv[1])
    print('K2_LDS', K2_LDS, file=sys.stderr)
```

```python
import struct, sys
from asmdsl import Asm
from layout import *

def f32bits(x): return struct.unpack('<I', struct.pack('<f', x))[0]
NL2E = f32bits(NLOG2E)

def srd(a, d, lo, hi, off, size):
    if off:
        a(f's_add_u32 s{d}, s{lo}, {off}')
        a(f's_addc_u32 s{d+1}, s{hi}, 0')
    else:
        a(f's_mov_b32 s{d}, s{lo}')
        a(f's_mov_b32 s{d+1}, s{hi}')
    a(f's_mov_b32 s{d+2}, {size}')
    a(f's_mov_b32 s{d+3}, 0x20000')

def load_kernargs(a):
    a('s_load_dwordx16 s[16:31], s[0:1], 0')
    a('s_load_dwordx4 s[32:35], s[0:1], 64')
    a('s_load_dwordx2 s[36:37], s[0:1], 80')

K1_H = 0
K1_W = 81920
K1_IMG = 147456
K1_OVC = K1_IMG + 16000
K1_LDS = 163840

import os
FL1 = set(os.environ.get('FL', '').split(','))
def stamp1(a, idx, dbg):
    if not dbg: return
    a(f's_cmp_lg_u32 s3, 0')
    a(f's_cbranch_scc1 k1st_skip{idx}')
    a('s_memrealtime s[94:95]')
    a('s_waitcnt lgkmcnt(0)')
    a('v_mov_b32 v250, s94')
    a('v_mov_b32 v251, s95')
    a('s_lshl_b32 s96, s2, 7')
    a(f's_add_u32 s96, s96, {DBGW + 0x10000 + idx*8}')
    a('v_mov_b32 v252, 0')
    a('s_mov_b64 s[98:99], exec')
    a('s_mov_b64 exec, 1')
    a('buffer_store_dwordx2 v[250:251], v252, s[60:63], s96 offen')
    a('s_mov_b64 exec, s[98:99]')
    a.label(f'k1st_skip{idx}')

def k1_tail(a, dbg):
    a.label('k1_part')
    if 'nopf' not in FL1:
        srd(a, 68, 20, 21, 0, E * 32)
        a('s_mul_i32 s38, s2, 20000')
        a('v_lshlrev_b32 v4, 4, v0')
        a('v_add_u32 v4, s38, v4')
        for i in range(5):
            a(f'buffer_load_dwordx4 v[{200+4*i}:{203+4*i}], v4, s[68:71], 0 offen offset:{0}')
            if i < 4: a('v_add_u32 v4, 4096, v4')
    a('s_cmp_ge_u32 s2, 250')
    a('s_cbranch_scc1 k1_nopart')
    a('s_cmp_ge_u32 s7, 63')
    a('s_cbranch_scc0 k1_pw1')
    a('s_waitcnt vmcnt(0)')
    a.label('k1_pw1')
    for i in range(3):
        if i == 2:
            a('s_cmp_ge_u32 s3, 2')
            a('s_cbranch_scc1 k1_pdone')
        d, s = 10 + i, 13 + i
        a(f'v_mul_u32_u24 v4, 52429, v{d}')
        a('v_lshrrev_b32 v4, 21, v4')
        a(f'v_mul_u32_u24 v5, 40, v4')
        a(f'v_sub_u32 v5, v{d}, v5')
        a(f'v_lshl_or_b32 v6, v5, 14, v{s}')
        a(f'v_add_u32 v7, {i*256}, v0')
        a('v_lshl_or_b32 v6, v7, 20, v6')
        a('v_lshlrev_b32 v7, 6, v4')
        a(f'v_add_u32 v7, {K1_IMG}, v7')
        a('v_mov_b32 v8, 1')
        a('ds_add_rtn_u32 v9, v7, v8 offset:60')
        a('s_waitcnt lgkmcnt(0)')
        a(f'v_cmp_gt_u32 vcc, {CAP}, v9')
        a('v_lshl_add_u32 v7, v9, 2, v7')
        a('s_and_saveexec_b64 s[14:15], vcc')
        a('ds_write_b32 v7, v6')
        a('s_andn2_b64 exec, s[14:15], exec')
        a(f's_cbranch_execz k1_noovf{i}')
        a(f'v_mov_b32 v7, {K1_OVC}')
        a('ds_add_rtn_u32 v9, v7, v8')
        a('s_waitcnt lgkmcnt(0)')
        a('v_mov_b32 v7, v4')
        a('s_mul_i32 s38, s2, 5120')
        a(f's_add_u32 s38, s38, {OVF}')
        a('v_lshlrev_b32 v9, 3, v9')
        a('buffer_store_dwordx2 v[6:7], v9, s[60:63], s38 offen sc0 sc1')
        a.label(f'k1_noovf{i}')
        a('s_mov_b64 exec, s[14:15]')
    a.label('k1_pdone')
    a.label('k1_nopart')
    a('s_waitcnt lgkmcnt(0)')
    a('s_barrier')
    a('s_cmp_ge_u32 s2, 250')
    a('s_cbranch_scc1 k1_noimg')
    a('v_lshlrev_b32 v4, 4, v0')
    a(f'v_add_u32 v4, {K1_IMG}, v4')
    for i in range(4):
        a(f'ds_read_b128 v[{16+4*i}:{19+4*i}], v4 offset:{i*4096}')
    a(f'v_mov_b32 v6, {K1_OVC}')
    a('ds_read_b32 v8, v6')
    a('v_lshrrev_b32 v5, 2, v0')
    a('v_mul_u32_u24 v5, 16000, v5')
    a('v_and_b32 v6, 3, v0')
    a('v_lshl_add_u32 v5, v6, 4, v5')
    a('s_lshl_b32 s38, s2, 6')
    a(f's_add_u32 s38, s38, {CELL}')
    a('s_waitcnt lgkmcnt(0)')
    for i in range(4):
        if i == 3:
            a('v_cmp_gt_u32 vcc, 232, v0')
            a('s_and_saveexec_b64 s[14:15], vcc')
        a(f'buffer_store_dwordx4 v[{16+4*i}:{19+4*i}], v5, s[60:63], s38 offen sc0 sc1')
        if i < 3:
            a(f'v_add_u32 v5, {64*16000}, v5')
    a('s_mov_b64 exec, s[14:15]')
    a('v_cmp_eq_u32 vcc, 0, v0')
    a('s_and_saveexec_b64 s[14:15], vcc')
    a('s_lshl_b32 s38, s2, 2')
    a(f's_add_u32 s38, s38, {OVFC}')
    a('v_mov_b32 v6, 0')
    a('buffer_store_dword v8, v6, s[60:63], s38 offen sc0 sc1')
    a('s_mov_b64 exec, s[14:15]')
    a.label('k1_noimg')
    if dbg: a('s_waitcnt vmcnt(0)')
    stamp1(a, 7, dbg)
    a('s_endpgm')

def gen_k1(a, dbg=False):
    a.label('k1_prep_kernel')
    a('s_cmp_ge_u32 s2, 256')
    a('s_cbranch_scc1 k1_done')
    load_kernargs(a)
    a('v_and_b32 v1, 63, v0')
    a('v_lshrrev_b32 v2, 6, v0')
    a('v_readfirstlane_b32 s3, v2')
    a('s_and_b32 s4, s2, 7')
    a('s_lshr_b32 s5, s2, 3')
    a('s_and_b32 s6, s5, 3')
    a('s_lshr_b32 s5, s5, 2')
    a('s_lshl_b32 s5, s5, 3')
    a('s_add_u32 s7, s4, s5')
    a('s_waitcnt lgkmcnt(0)')
    srd(a, 40, 24, 25, 0, E * 4)
    srd(a, 44, 22, 23, 0, E * 4)
    srd(a, 48, 16, 17, 0, N * 512)
    srd(a, 52, 26, 27, 0, 529 * 512)
    srd(a, 56, 30, 31, 0, 512 * 512)
    srd(a, 60, 36, 37, 0, 0x2000000)
    srd(a, 64, 36, 37, BT, N * 512)
    stamp1(a, 0, dbg)
    a('s_mul_i32 s8, s2, 2560')
    a('v_lshlrev_b32 v3, 2, v0')
    a('s_cmp_ge_u32 s2, 250')
    a('s_cbranch_scc1 k1_nopl')
    for i in range(3):
        a(f'buffer_load_dword v{10+i}, v3, s[40:43], s8 offen offset:{i*1024}')
        a(f'buffer_load_dword v{13+i}, v3, s[44:47], s8 offen offset:{i*1024}')
    a.label('k1_nopl')
    a('s_cmp_eq_u32 s3, 1')
    a('s_cbranch_scc0 k1_nopk1')
    a('s_lshr_b32 s9, s2, 5')
    a('s_lshr_b32 s10, s2, 1')
    a('s_and_b32 s10, s10, 15')
    a('s_and_b32 s11, s2, 1')
    a('s_lshl_b32 s9, s9, 5')
    a('s_add_u32 s9, s9, s11')
    a('v_and_b32 v4, 15, v1')
    a('v_lshrrev_b32 v5, 4, v1')
    a('v_lshlrev_b32 v4, 1, v4')
    a('v_add_u32 v4, s9, v4')
    a('v_lshlrev_b32 v4, 1, v4')
    a('s_cmp_lt_u32 s10, 8')
    a('s_cbranch_scc0 k1_pk_m')
    a('s_lshl_b32 s12, s10, 5')
    a('v_lshlrev_b32 v5, 3, v5')
    a('v_add_u32 v5, s12, v5')
    a('v_lshl_add_u32 v4, v5, 9, v4')
    for j in range(8):
        a(f'buffer_load_ushort v{16+j}, v4, s[56:59], 0 offen offset:{j*512}')
    a('s_branch k1_nopk')
    a.label('k1_pk_m')
    a('s_sub_u32 s12, s10, 8')
    a('s_lshl_b32 s12, s12, 4')
    a('v_lshlrev_b32 v5, 2, v5')
    a('v_add_u32 v5, s12, v5')
    a('v_and_b32 v6, 31, v5')
    a('v_and_b32 v5, 0xffe0, v5')
    a('v_lshl_add_u32 v5, v5, 1, v6')
    a('v_add_u32 v5, 256, v5')
    a('v_lshl_add_u32 v4, v5, 9, v4')
    a('v_add_u32 v6, 16384, v4')
    for j in range(8):
        vb = 4 if j % 2 == 0 else 6
        a(f'buffer_load_ushort v{16+j}, v{vb}, s[56:59], 0 offen offset:{(j//2)*512}')
    a('s_branch k1_nopk')
    a.label('k1_nopk1')
    a('s_cmp_eq_u32 s3, 2')
    a('s_cbranch_scc0 k1_nopk')
    a('s_cmp_lt_u32 s2, 12')
    a('s_cbranch_scc0 k1_nopk')
    a('s_cmp_lt_u32 s2, 8')
    a('s_cbranch_scc0 k1_pk_wd')
    a('v_and_b32 v4, 31, v1')
    a('v_lshrrev_b32 v5, 5, v1')
    a('s_lshl_b32 s9, s2, 5')
    a('v_add_u32 v4, s9, v4')
    a('v_lshlrev_b32 v4, 1, v4')
    a('v_lshlrev_b32 v5, 3, v5')
    a('v_add_u32 v5, 513, v5')
    a('v_lshl_add_u32 v4, v5, 9, v4')
    for j in range(8):
        a(f'buffer_load_ushort v{16+j}, v4, s[52:55], 0 offen offset:{j*512}')
    a('s_branch k1_nopk')
    a.label('k1_pk_wd')
    a('s_sub_u32 s9, s2, 8')
    a('s_lshl_b32 s9, s9, 6')
    a('v_add_u32 v4, s9, v1')
    a('v_lshlrev_b32 v4, 1, v4')
    a('v_add_u32 v4, 0x40000, v4')
    a('buffer_load_ushort v16, v4, s[52:55], 0 offen')
    a.label('k1_nopk')
    a('s_cmp_ge_u32 s7, 63')
    a('s_cbranch_scc1 k1_nodma')
    a('v_lshrrev_b32 v4, 4, v1')
    a('v_and_b32 v5, 15, v1')
    a('v_lshlrev_b32 v6, 2, v4')
    a('v_xor_b32 v5, v5, v6')
    a('v_lshlrev_b32 v5, 4, v5')
    a('v_lshl_add_u32 v30, v4, 9, v5')
    a('v_lshrrev_b32 v4, 3, v1')
    a('v_and_b32 v5, 7, v1')
    a('v_lshrrev_b32 v6, 1, v4')
    a('v_xor_b32 v5, v5, v6')
    a('v_lshlrev_b32 v5, 4, v5')
    a('v_lshl_add_u32 v31, v4, 9, v5')
    a('v_xor_b32 v32, 64, v31')
    a('s_lshr_b32 s9, s6, 1')
    a('s_lshl_b32 s9, s9, 17')
    a('s_and_b32 s10, s6, 1')
    a('s_lshl_b32 s10, s10, 8')
    a('s_add_u32 s9, s9, s10')
    a('s_lshl_b32 s10, s3, 13')
    a('s_add_u32 s9, s9, s10')
    a('s_lshl_b32 s10, s3, 12')
    a(f's_add_u32 s10, s10, {K1_W}')
    a('s_mul_i32 s11, s7, 160')
    a('s_mul_i32 s12, s3, 40')
    a('s_add_u32 s11, s11, s12')
    a('s_lshl_b32 s11, s11, 9')
    a('s_mul_i32 s12, s3, 5120')
    a('s_and_b32 s13, s3, 1')
    a('s_lshl_b32 s13, s13, 6')
    a('v_xor_b32 v33, s13, v31')
    a('v_xor_b32 v34, 64, v33')
    for kc in range(4):
        for q in range(4):
            a(f's_add_u32 s14, s9, {kc*32768 + q*2048}')
            a(f's_add_u32 m0, s10, {kc*16384 + q*1024}')
            a(f'buffer_load_dwordx4 v30, s[52:55], s14 offen lds')
        for i in range(5):
            a(f's_add_u32 s14, s11, {kc*128 + i*4096}')
            a(f's_add_u32 m0, s12, {K1_H + kc*20480 + i*1024}')
            a(f'buffer_load_dwordx4 v{33 + (i%2)}, s[48:51], s14 offen lds')
    a.label('k1_nodma')
    a('v_lshlrev_b32 v4, 6, v0')
    a(f'v_add_u32 v4, {K1_IMG + 60}, v4')
    a('v_mov_b32 v5, 0')
    a('v_cmp_eq_u32 vcc, 250, v0')
    a(f'v_mov_b32 v6, {K1_OVC}')
    a('v_cndmask_b32 v4, v4, v6, vcc')
    a('v_cmp_gt_u32 vcc, 251, v0')
    a('s_and_saveexec_b64 s[14:15], vcc')
    a('ds_write_b32 v4, v5')
    a('s_mov_b64 exec, s[14:15]')
    a('s_cmp_eq_u32 s3, 1')
    a('s_cbranch_scc0 k1_nops1')
    a('s_cmp_ge_u32 s7, 63')
    a('s_cbranch_scc1 k1_w1a')
    a('s_waitcnt vmcnt(36)')
    a('s_branch k1_w1b')
    a.label('k1_w1a')
    a('s_waitcnt vmcnt(0)')
    a.label('k1_w1b')
    a('s_lshl_b32 s38, s2, 10')
    a(f's_add_u32 s38, s38, {WHP}')
    a('v_lshlrev_b32 v4, 4, v1')
    for j in range(4):
        a(f'v_lshl_or_b32 v{16+j}, v{17+2*j}, 16, v{16+2*j}')
    a('buffer_store_dwordx4 v[16:19], v4, s[60:63], s38 offen sc0 sc1')
    a('s_branch k1_nops')
    a.label('k1_nops1')
    a('s_cmp_eq_u32 s3, 2')
    a('s_cbranch_scc0 k1_nops')
    a('s_cmp_lt_u32 s2, 12')
    a('s_cbranch_scc0 k1_nops')
    a('s_waitcnt vmcnt(36)')
    a(f's_mov_b32 s38, {NL2E:#x}')
    a('s_cmp_lt_u32 s2, 8')
    a('s_cbranch_scc0 k1_ps_wd')
    for j in range(8):
        a(f'v_lshlrev_b32 v{16+j}, 16, v{16+j}')
        a(f'v_mul_f32 v{16+j}, s38, v{16+j}')
    for j in range(4):
        a(f'v_cvt_pk_bf16_f32 v{16+j}, v{16+2*j}, v{17+2*j}')
    a('s_lshl_b32 s39, s2, 10')
    a(f's_add_u32 s39, s39, {W3P}')
    a('v_lshlrev_b32 v4, 4, v1')
    a('buffer_store_dwordx4 v[16:19], v4, s[60:63], s39 offen sc0 sc1')
    a('s_branch k1_nops')
    a.label('k1_ps_wd')
    a('v_lshlrev_b32 v16, 16, v16')
    a('v_mul_f32 v16, s38, v16')
    a('v_mov_b32 v17, 0')
    a('v_cvt_pk_bf16_f32 v16, v16, v17')
    a('v_mov_b32 v18, 0')
    a('v_mov_b32 v19, 0')
    a('s_sub_u32 s39, s2, 8')
    a('s_lshl_b32 s39, s39, 10')
    a(f's_add_u32 s39, s39, {WDP}')
    a('v_lshlrev_b32 v4, 4, v1')
    a('buffer_store_dwordx4 v[16:19], v4, s[60:63], s39 offen sc0 sc1')
    a.label('k1_nops')
    stamp1(a, 1, dbg)
    a('s_waitcnt lgkmcnt(0)')
    a('s_cmp_ge_u32 s7, 63')
    a('s_cbranch_scc1 k1_b1a')
    a('s_waitcnt vmcnt(27)')
    a.label('k1_b1a')
    a('s_barrier')
    a('s_cmp_ge_u32 s7, 63')
    a('s_cbranch_scc1 k1_part')
    a('v_and_b32 v4, 31, v1')
    a('v_lshrrev_b32 v5, 5, v1')
    a('s_cmp_lt_u32 s6, 2')
    a('s_cbranch_scc0 k1_rho_id')
    a('v_lshrrev_b32 v6, 4, v4')
    a('v_lshlrev_b32 v6, 4, v6')
    a('v_bfe_u32 v7, v4, 2, 1')
    a('v_lshl_add_u32 v6, v7, 3, v6')
    a('v_bfe_u32 v7, v4, 3, 1')
    a('v_lshl_add_u32 v6, v7, 2, v6')
    a('v_and_b32 v7, 3, v4')
    a('v_add_u32 v4, v6, v7')
    a.label('k1_rho_id')
    a('v_bfe_u32 v6, v4, 1, 3')
    a('v_xor_b32 v6, v6, v5')
    a('v_lshlrev_b32 v6, 4, v6')
    a('v_lshl_add_u32 v40, v4, 7, v6')
    for j in range(1, 4):
        a(f'v_xor_b32 v{40+j}, {2*j*16}, v40')
    a('v_bfe_u32 v6, v1, 4, 1')
    a('v_bfe_u32 v7, v1, 2, 2')
    a('v_bfe_u32 v8, v1, 1, 1')
    a('v_lshl_add_u32 v8, v6, 1, v8')
    a('s_lshl_b32 s38, s3, 2')
    a('v_add_u32 v8, s38, v8')
    a('v_lshlrev_b32 v9, 2, v7')
    a('v_xor_b32 v8, v8, v9')
    a('v_lshlrev_b32 v8, 4, v8')
    a('v_lshl_add_u32 v9, v5, 3, v7')
    a('v_lshl_add_u32 v8, v9, 8, v8')
    a('v_and_b32 v9, 1, v1')
    a('v_lshl_add_u32 v8, v9, 3, v8')
    a(f'v_add_u32 v44, {K1_W}, v8')
    ACC = 64
    FR = [144, 168]
    def issue_reads(ks, fs):
        kc, j = ks // 4, ks % 4
        base = FR[fs]
        a(f'ds_read_b64_tr_b16 v[{base+20}:{base+21}], v44 offset:{ks*4096}')
        a(f'ds_read_b64_tr_b16 v[{base+22}:{base+23}], v44 offset:{ks*4096+1024}')
        for rb in range(5):
            off = (kc % 2) * 20480 + rb * 4096
            a(f'ds_read_b128 v[{base+4*rb}:{base+4*rb+3}], v{40+j} offset:{off}')
    for variant in ('A', 'B'):
        if variant == 'A':
            a('s_cmp_lt_u32 s6, 2')
            a('s_cbranch_scc0 k1_gemmB')
        else:
            a.label('k1_gemmB')
        for ks in range(16):
            kc = ks // 4
            fs = ks % 2
            if ks % 4 == 0:
                if kc > 0:
                    a(f's_waitcnt vmcnt({(3-kc)*9})')
                    a('s_barrier')
                if kc == 2:
                    for j in range(4): a(f'v_add_u32 v{40+j}, 40960, v{40+j}')
                issue_reads(ks, fs)
            if ks % 4 != 3:
                issue_reads(ks + 1, 1 - fs)
                a('s_waitcnt lgkmcnt(7)')
            else:
                a('s_waitcnt lgkmcnt(0)')
            base = FR[fs]
            for rb in range(5):
                d = f'v[{ACC+16*rb}:{ACC+16*rb+15}]'
                c = '0' if ks == 0 else d
                hf = f'v[{base+4*rb}:{base+4*rb+3}]'; wf = f'v[{base+20}:{base+23}]'
                if variant == 'A': a(f'v_mfma_f32_32x32x16_bf16 {d}, {hf}, {wf}, {c}')
                else: a(f'v_mfma_f32_32x32x16_bf16 {d}, {wf}, {hf}, {c}')
        stamp1(a, 3 if variant == 'A' else 4, dbg)
        a(f's_mov_b32 s38, {NL2E:#x}')
        a(f's_mov_b32 s39, {NL2E:#x}')
        if variant == 'A':
            a('v_and_b32 v4, 31, v1')
            a('v_lshrrev_b32 v5, 5, v1')
            a('s_and_b32 s8, s6, 1')
            a('s_lshl_b32 s8, s8, 7')
            a('s_lshl_b32 s9, s3, 5')
            a('s_add_u32 s8, s8, s9')
            a('v_add_u32 v4, s8, v4')
            a('v_lshlrev_b32 v4, 4, v4')
            a('v_lshl_add_u32 v4, v5, 12, v4')
            a('s_mul_i32 s8, s7, 81920')
            a(f's_add_u32 s8, s8, {AT}')
            for rb in range(5):
                for half in range(2):
                    r0 = ACC + 16 * rb + 8 * half
                    for p in range(4):
                        a(f'v_pk_mul_f32 v[{r0+2*p}:{r0+2*p+1}], v[{r0+2*p}:{r0+2*p+1}], s[38:39]')
                    t0 = 144 + 4 * ((2 * rb + half) % 4)
                    for p in range(4):
                        a(f'v_cvt_pk_bf16_f32 v{t0+p}, v{r0+2*p}, v{r0+2*p+1}')
                    a(f's_add_u32 s9, s8, {(4*rb + 2*half)*4096}')
                    a(f'buffer_store_dwordx4 v[{t0}:{t0+3}], v4, s[60:63], s9 offen sc0 sc1')
            stamp1(a, 5, dbg)
            a('s_branch k1_part')
        else:
            a('v_and_b32 v4, 31, v1')
            a('v_lshrrev_b32 v5, 5, v1')
            a('v_and_b32 v6, 15, v1')
            a('s_lshl_b32 s8, s3, 2')
            a('v_xor_b32 v6, s8, v6')
            a('v_lshlrev_b32 v6, 4, v6')
            a('v_lshl_add_u32 v6, v4, 8, v6')
            a('v_lshl_add_u32 v6, v5, 3, v6')
            for i in range(1, 4):
                a(f'v_xor_b32 v{6+i}, {i*16}, v6')
            for rb in range(5):
                for i in range(4):
                    r0 = ACC + 16 * rb + 4 * i
                    for p in range(2):
                        a(f'v_pk_mul_f32 v[{r0+2*p}:{r0+2*p+1}], v[{r0+2*p}:{r0+2*p+1}], s[38:39]')
                    t0 = 144 + 2 * ((4 * rb + i) % 8)
                    a(f'v_cvt_pk_bf16_f32 v{t0}, v{r0}, v{r0+1}')
                    a(f'v_cvt_pk_bf16_f32 v{t0+1}, v{r0+2}, v{r0+3}')
                    a(f'ds_write_b64 v{6+i}, v[{t0}:{t0+1}] offset:{rb*8192}')
            a('s_waitcnt lgkmcnt(0)')
            a('s_barrier')
            a('v_lshlrev_b32 v4, 4, v0')
            a('v_lshrrev_b32 v5, 4, v0')
            a('v_and_b32 v6, 15, v0')
            a('v_xor_b32 v6, v6, v5')
            a('v_lshlrev_b32 v6, 4, v6')
            a('v_lshl_add_u32 v6, v5, 9, v6')
            a('s_mul_i32 s8, s7, 81920')
            a('s_and_b32 s9, s6, 1')
            a('s_lshl_b32 s9, s9, 8')
            a('s_add_u32 s8, s8, s9')
            for i in range(10):
                a(f'ds_read_b128 v[{64+4*i}:{67+4*i}], v4 offset:{i*4096}')
            for i in range(10):
                a(f's_waitcnt lgkmcnt({9-i})')
                a(f's_add_u32 s9, s8, {i*8192}')
                a(f'buffer_store_dwordx4 v[{64+4*i}:{67+4*i}], v6, s[64:67], s9 offen sc0 sc1')
            stamp1(a, 6, dbg)
    k1_tail(a, dbg)
    a.label('k1_done')
    a('s_endpgm')

def kernel_desc(name, vgpr, sgpr=102, accum=None):
    if accum is None: accum = (vgpr + 3) // 4 * 4
    return f'''.amdhsa_kernel {name}
  .amdhsa_next_free_vgpr {vgpr}
  .amdhsa_next_free_sgpr {sgpr}
  .amdhsa_accum_offset {accum}
  .amdhsa_group_segment_fixed_size 0
  .amdhsa_kernarg_size 88
  .amdhsa_user_sgpr_count 2
  .amdhsa_user_sgpr_kernarg_segment_ptr 1
  .amdhsa_system_sgpr_workgroup_id_x 1
  .amdhsa_float_denorm_mode_32 3
  .amdhsa_float_denorm_mode_16_64 3
.end_amdhsa_kernel
'''

def build(kernels, out):
    hdr = ['; generated by dev/gen.py (hand-designed CDNA4 assembly, own generator)']
    for name, grid, block, lds, fn, vg in kernels:
        hdr.append(f'; @launch kernel={name} grid=({grid},1,1) block=({block},1,1) lds={lds}')
    txt = '\n'.join(hdr) + '\n.amdgcn_target "amdgcn-amd-amdhsa--gfx950"\n.text\n'
    seen = set()
    descs = ''
    for name, grid, block, lds, fn, vg in kernels:
        if name in seen: continue
        seen.add(name)
        a = Asm()
        fn(a)
        body = a.finalize()
        txt += f'.globl {name}\n.p2align 8\n.type {name},@function\n' + body + '\n'
        descs += kernel_desc(name, vg)
        print(name, 'lines', len(a.lines), 'nops', a.nnop, file=sys.stderr)
    txt += '.section .rodata,"a"\n.p2align 6\n' + descs.replace('.amdhsa_kernel', '.p2align 6\n.amdhsa_kernel', 100).replace('.end_.p2align 6\n', '.end_')
    open(out, 'w').write(txt)

if __name__ == '__main__':
    ks = [('k1_prep_kernel', 256, 256, K1_LDS, gen_k1, 256)]
    build(ks, sys.argv[1] if len(sys.argv) > 1 else 'k.s')
```

```python
import os, sys
from asmdsl import Asm
from layout import *
from gen import srd, load_kernargs, NL2E, f32bits
FL = set(os.environ.get('FL', '').split(','))
T_ = T
NW = 8
W_ = int(os.environ.get('TW', '23'))
CW = [0, W_, 2 * W_, 2 * W_ + (64 - 2 * W_) // 2, 64]
CAPS = 192
SC = 5 * CAPS + 32
STG = 0
STGW = 8 * 1040
EAP = STG + NW * STGW
JIT = EAP + NW * 1024
SRC = JIT + NW * 2048
W1 = SRC + SC * 4
XA = W1 + SC * 4
XB = XA + SC * 4
SV = XB + SC * 4
W0 = XA
ATL = (SV + SC + 255) // 256 * 256
MACC = ATL + 20480
SIDE = MACC + 40 * 512
PBO = SIDE + 3 * 4096
PBS = PBO + 5 * 2 * 96
PACC = PBS + 3 * 2 * 96
LUT = PACC + 480
CNT = LUT + 144
POST = CNT + 48
K2_LDS = POST + 320
HT = MACC
assert K2_LDS <= 163840, K2_LDS
NLN2 = f32bits(-0.6931471805599453)

V_LCS, V_LCL, V_LRD, V_RB, V_LCD, V_Z, V_LCE, V_LCA = 2, 3, 4, 5, 6, 7, 8, 9
V_A, V_B, V_C, V_D, V_AL = 10, 11, 12, 13, 14
V_E4 = 243
ACC, PRE, R, W3, WDA, SEL, L, OH, EAr, T, SRCr = 16, 80, 112, 144, 160, 176, 184, 192, 196, 200, 208
XY, GA, GB, GS, EID, V_WX, H1 = 216, 218, 219, 220, 221, 224, 228
V_E1 = 244
V_LUT0, V_LUT8 = 247, 248
V_HM = 245
V_PO0, V_PO1, V_EI = 240, 241, 242
def vr(b, n): return f'v[{b}:{b+n-1}]'
uid = [0]
DEFER = []
PROF = 'prof' in FL

def stamp(a, idx, dbg, vb=252, op='s_memrealtime'):
    if not dbg: return
    a(f's_cmp_lg_u32 s3, 0')
    a(f's_cbranch_scc1 st_skip{idx}')
    a(f'{op} s[98:99]')
    a('s_waitcnt lgkmcnt(0)')
    a(f'v_mov_b32 v{vb}, s98')
    a(f'v_mov_b32 v{vb+1}, s99')
    a('s_lshl_b32 s88, s2, 7')
    a(f's_add_u32 s88, s88, {DBGW + idx*8}')
    a(f'v_mov_b32 v{vb+2}, 0')
    a('s_mov_b64 s[98:99], exec')
    a('s_mov_b64 exec, 1')
    a(f'buffer_store_dwordx2 v[{vb}:{vb+1}], v{vb+2}, s[40:43], s88 offen')
    a('s_mov_b64 exec, s[98:99]')
    a.label(f'st_skip{idx}')
PTR = [16, 18, 32, 34, 64, 98]
def wstamp(a, i, dbg):
    if not (dbg and 'ws' in FL): return
    a('s_memrealtime s[98:99]')
    a('s_waitcnt lgkmcnt(0)')
    a('v_mov_b32 v252, s98'); a('v_mov_b32 v253, s99')
    a('s_lshl_b32 s88, s2, 3'); a('s_add_u32 s88, s88, s3'); a('s_lshl_b32 s88, s88, 6')
    a(f's_add_u32 s88, s88, {DBGW + 0x40000 + i*8}')
    a('v_mov_b32 v254, 0')
    a('s_mov_b64 exec, 1')
    a('buffer_store_dwordx2 v[252:253], v254, s[40:43], s88 offen')
    a('s_mov_b64 exec, -1')
def PT(a, i):
    if PROF: a(f's_memtime s[{PTR[i]}:{PTR[i]+1}]')

CP = 22
V_DESC = 246
V_D2 = 222
def build_desc(a):
    g, sub, go, ge, cp, t = 16, 17, 18, 19, 20, 21
    a(f'v_add_u32 v{g}, s28, v1')
    a(f'v_mov_b32 v{sub}, 0'); a(f'v_mov_b32 v{go}, s72'); a(f'v_mov_b32 v{ge}, s73'); a(f'v_mov_b32 v{cp}, s{CP}')
    for k in range(1, 5):
        a(f'v_cmp_le_u32 vcc, s{72+k}, v{g}')
        a(f'v_mov_b32 v{t}, {k}'); a(f'v_cndmask_b32 v{sub}, v{sub}, v{t}, vcc')
        a(f'v_mov_b32 v{t}, s{72+k}'); a(f'v_cndmask_b32 v{go}, v{go}, v{t}, vcc')
        a(f'v_mov_b32 v{t}, s{73+k}'); a(f'v_cndmask_b32 v{ge}, v{ge}, v{t}, vcc')
        a(f'v_mov_b32 v{t}, s{CP+k}'); a(f'v_cndmask_b32 v{cp}, v{cp}, v{t}, vcc')
    a(f'v_sub_u32 v{go}, v{g}, v{go}')
    a(f'v_lshlrev_b32 v{go}, 5, v{go}')
    a(f'v_sub_u32 v{cp}, v{cp}, v{go}')
    a(f'v_min_u32 v{cp}, 32, v{cp}')
    a(f'v_mul_u32_u24 v{t}, {CAPS}, v{sub}')
    a(f'v_add_u32 v{go}, v{go}, v{t}')
    a(f'v_min_u32 v{ge}, s79, v{ge}')
    a(f'v_add_u32 v{t}, 1, v{g}')
    a(f'v_cmp_ge_u32 vcc, v{t}, v{ge}')
    a(f'v_cndmask_b32 v{t}, 0, 1, vcc')
    a(f'v_lshl_or_b32 v{V_DESC}, v{cp}, 10, v{go}')
    a(f'v_lshl_or_b32 v{V_DESC}, v{sub}, 16, v{V_DESC}')
    a(f'v_lshl_or_b32 v{V_DESC}, v{t}, 19, v{V_DESC}')
    a(f'v_or_b32 v{V_DESC}, 0x100000, v{V_DESC}')
    a(f'v_cmp_eq_u32 vcc, 32, v{cp}')
    a(f'v_or_b32 v{t}, 0x200000, v{V_DESC}')
    a(f'v_cndmask_b32 v{V_DESC}, v{V_DESC}, v{t}, vcc')
    a(f'v_cmp_gt_u32 vcc, s79, v{g}')
    a(f'v_mov_b32 v{t}, 0x208000')
    a(f'v_cndmask_b32 v{V_DESC}, v{t}, v{V_DESC}, vcc')

def sig4(a, D):
    a(f's_and_b32 s88, s{D}, 0x3ff')
    a('s_lshl_b32 s88, s88, 2')

def read_lists(a, D):
    sig4(a, D)
    a(f'v_add_u32 v{V_A}, s88, v{V_LCS}')
    a(f'ds_read_b128 {vr(SRCr,4)}, v{V_A}')
    a(f'ds_read_b128 {vr(SRCr+4,4)}, v{V_A} offset:16')
    a(f'v_add_u32 v{V_C}, s88, v{V_EI}')
    a(f'ds_read_b32 v{EID}, v{V_C}')

def read_geo(a, D):
    a(f's_and_b32 s89, s{D}, 0x3ff')
    a('s_lshl_b32 s88, s89, 2')
    a(f'v_add_u32 v{V_B}, s88, v{V_E4}')
    a(f'ds_read_b32 v{GA}, v{V_B}')
    a(f'ds_read_b32 v{GB}, v{V_B} offset:{XB-XA}')
    a(f'v_add_u32 v{V_D}, s89, v{V_E1}')
    a(f'ds_read_u8 v{GS}, v{V_D}')

def issue_loads(a):
    a('s_mov_b32 m0, s39')
    a(f'v_lshl_add_u32 v{V_B}, v{EID}, 5, v{V_HM}')
    a(f'buffer_load_dwordx4 v{V_B}, s[48:51], 0 offen lds')
    for q in range(8):
        a(f's_add_u32 m0, s87, {q*1040}')
        a(f'v_add_u32 v{SRCr+q}, v{V_LCD}, v{SRCr+q}')
        if 'nodma' not in FL: a(f'buffer_load_dwordx4 v{SRCr+q}, s[44:47], s86 offen lds')

def build_xy(a):
    a(f'v_and_b32 v{V_A}, 0x80, v{GS}')
    a(f'v_mul_u32_u24 v{V_A}, 0x7f, v{V_A}')
    a(f'v_lshl_or_b32 v{V_A}, v{GA}, 16, v{V_A}')
    a(f'v_cndmask_b32 v{XY}, v{V_A}, v{GB}, s[64:65]')
    a(f'v_and_b32 v{V_B}, 7, v{GS}')
    a(f'v_lshl_add_u32 v{V_AL}, v{V_B}, 6, v{V_LCL}')
    a(f'v_lshl_add_u32 v{V_B}, v{V_B}, 4, v{V_LUT0}')
    a(f'v_cndmask_b32 v{XY+1}, v{V_B}, v{V_LUT8}, s[64:65]')
    a(f'v_lshrrev_b32 v{V_B}, 16, v{GA}')
    a(f'v_cndmask_b32 v{V_D2}, 0, v{V_B}, s[64:65]')

def read_rows(a):
    if 'norows' in FL: return
    for k in range(8):
        a(f'ds_read_b128 {vr(R+4*k,4)}, v{V_RB} offset:{k*32}')

def read_ea_oh(a):
    a(f'ds_read_b128 {vr(EAr,4)}, v{V_LCE}')
    a(f'ds_read_b128 {vr(OH,4)}, v{XY+1}')

def read_wda(a, D):
    a(f's_bfe_u32 s88, s{D}, 0x30010')
    a('s_lshl_b32 s88, s88, 12')
    a(f'v_add_u32 v{V_A}, s88, v{V_LCA}')
    a('s_mov_b32 exec_hi, 0')
    for b in range(4):
        a(f'ds_read_b128 {vr(WDA+4*b,4)}, v{V_A} offset:{512*b}')
    a('s_mov_b32 exec_hi, -1')

def jit_l(a, full):
    if not full:
        a('s_bfm_b32 s88, s81, 0')
        a('s_mov_b32 exec_lo, s88')
        a('s_mov_b32 exec_hi, s88')
    a(f'ds_write_b16 v{V_AL}, v{XY}')
    a(f'ds_write_b16_d16_hi v{V_AL}, v{XY} offset:16')
    if not full: a('s_mov_b64 exec, -1')
    a(f'ds_read_b128 {vr(L,4)}, v{V_LRD}')
    a(f'ds_read_b128 {vr(L+4,4)}, v{V_LRD} offset:1024')
    if not full:
        a('s_mov_b32 exec_lo, s88')
        a('s_mov_b32 exec_hi, s88')
    a(f'ds_write_b16 v{V_AL}, v{V_Z}')
    a(f'ds_write_b16 v{V_AL}, v{V_Z} offset:16')
    if not full: a('s_mov_b64 exec, -1')

def mf(d, x, y, c): return f'v_mfma_f32_32x32x16_bf16 {d}, {x}, {y}, {c}'
def A_ops(b, buf):
    d = vr(PRE + 16 * buf, 16)
    return [[mf(d, vr(R+8*b,4), vr(SEL,4), '0')], [mf(d, vr(R+8*b+4,4), vr(SEL+4,4), d)],
            [mf(d, vr(EAr,4), vr(W3+4*b,4), d)], [mf(d, vr(OH,4), vr(WDA+4*b,4), d)]]
def C_ops(b, buf):
    acc = vr(ACC + 16 * b, 16); p = PRE + 16 * buf
    return [[mf(acc, vr(L,4), vr(p,4), acc)], [mf(acc, vr(L+4,4), vr(p+4,4), acc)]]

def quarter(a, buf, q, mops, full):
    y = PRE + 16 * buf + 4 * q
    t = T + 4 * (q % 2)
    uid[0] += 1; u = uid[0]
    chk = (q > 0 and not full)
    if chk:
        a(f's_cmp_le_u32 s81, {8*q}')
        a(f's_cbranch_scc1 k2_qs{u}')
    seq = [f'v_exp_f32 v{t+i}, v{y+i}' for i in range(4)]
    seq += [f'v_add_f32 v{t+i}, 1.0, v{t+i}' for i in range(4)]
    seq += [f'v_rcp_f32 v{t+i}, v{t+i}' for i in range(4)]
    seq += ([f'v_pk_mul_f32 {vr(y+2*i,2)}, {vr(y+2*i,2)}, {vr(t+2*i,2)}' for i in range(2)] if 'pk' in FL else [f'v_mul_f32 v{y+i}, v{y+i}, v{t+i}' for i in range(4)])
    pk = PRE + 16 * buf + 2 * q
    seq += [f'v_cvt_pk_bf16_f32 v{pk}, v{y}, v{y+1}', f'v_cvt_pk_bf16_f32 v{pk+1}, v{y+2}, v{y+3}']
    pos = [1, 9] if 'pk' in FL else [2, 10]; k = 0
    for i, x in enumerate(seq):
        if k < len(mops) and i == pos[k]:
            for z in mops[k]: a(z)
            k += 1
        a(x)
    if chk:
        a.label(f'k2_qe{u}')
        DEFER.append(f'k2_qs{u}:')
        DEFER.extend([f'v_mov_b32 v{pk}, 0', f'v_mov_b32 v{pk+1}, 0'])
        for m in mops: DEFER.extend(m)
        DEFER.append(f's_branch k2_qe{u}')

def flush(a, Dp, cont, tag):
    sub = 91
    a(f's_bfe_u32 s91, s{Dp}, 0x30010')
    n_, kh_, ad, t0 = V_A, V_B, V_C, V_D
    a(f'v_and_b32 v{n_}, 31, v1')
    a(f'v_lshrrev_b32 v{kh_}, 5, v1')
    a(f'v_lshrrev_b32 v{ad}, 2, v{n_}')
    a('s_lshl_b32 s88, s5, 4')
    a(f'v_add_u32 v{ad}, s88, v{ad}')
    a(f'v_xor_b32 v{ad}, v{ad}, v{kh_}')
    a(f'v_lshlrev_b32 v{ad}, 4, v{ad}')
    a(f'v_lshl_add_u32 v{ad}, v{kh_}, 9, v{ad}')
    a(f'v_and_b32 v{t0}, 3, v{n_}')
    a(f'v_lshl_add_u32 v{ad}, v{t0}, 2, v{ad}')
    a(f's_and_b32 s88, s{sub}, 1')
    a('s_lshl_b32 s88, s88, 7')
    a(f'v_xor_b32 v{ad}, s88, v{ad}')
    a(f's_lshl_b32 s88, s{sub}, 12')
    a(f's_add_u32 s88, s88, {MACC}')
    a('s_lshl_b32 s89, s4, 12')
    a(f's_add_u32 s89, s89, {SIDE - 4096}')
    a(f's_cmp_eq_u32 s{cont}, 1')
    a('s_cselect_b32 s88, s89, s88')
    a(f'v_add_u32 v{ad}, s88, v{ad}')
    a(f's_mov_b32 s89, {NLN2:#x}')
    for bp in range(2):
        for i in range(4):
            a(f'v_mul_f32 v{ACC + 32*bp + 4*i}, s89, v{ACC + 32*bp + 4*i}')
            a(f'v_mul_f32 v{ACC + 32*bp + 16 + 4*i}, s89, v{ACC + 32*bp + 16 + 4*i}')
    for i in range(4):
        a(f'v_xor_b32 v{T+i}, {i*32}, v{ad}')
        a(f'v_xor_b32 v{T+4+i}, {i*32 ^ 128}, v{ad}')
    for bp in range(2):
        for i in range(4):
            x0, x1 = ACC + 32 * bp + 4 * i, ACC + 32 * bp + 16 + 4 * i
            a(f'v_cvt_pk_bf16_f32 v{x0}, v{x0}, v{x1}')
    for bp in range(2):
        for i in range(4):
            a(f'ds_write_b32 v{T+4*bp+i}, v{ACC + 32*bp + 4*i} offset:{i*1024}')
    P = [ACC + 4 * (k // 3) + (k % 3) + 1 for k in range(12)]
    for k in range(12): a(f'v_mul_f32 v{P[k]}, v{P[k]}, v{V_WX}')
    for b in range(1, 4):
        for k in range(12): a(f'v_fmac_f32 v{P[k]}, v{P[k]+16*b}, v{V_WX+b}')
    for j in range(6): a(f'v_permlane16_swap_b32 v{P[2*j]}, v{P[2*j+1]}')
    for j in range(6): a(f'v_add_f32 v{P[2*j]}, v{P[2*j]}, v{P[2*j+1]}')
    S = [P[2*j] for j in range(6)]
    U = [P[1], P[3], P[5]]
    for j in range(3):
        a(f'v_add_f32_dpp v{U[j]}, v{S[2*j]}, v{S[2*j]} row_ror:8 row_mask:0xf bank_mask:0x3')
    for j in range(3):
        a(f'v_add_f32_dpp v{U[j]}, v{S[2*j+1]}, v{S[2*j+1]} row_ror:8 row_mask:0xf bank_mask:0xc')
    V0, V1 = P[7], P[9]
    a(f'v_add_f32_dpp v{V0}, v{U[0]}, v{U[0]} row_half_mirror row_mask:0xf bank_mask:0x5')
    a(f'v_add_f32_dpp v{V1}, v{U[2]}, v{U[2]} row_half_mirror row_mask:0xf bank_mask:0xf')
    a(f'v_add_f32_dpp v{V0}, v{U[1]}, v{U[1]} row_half_mirror row_mask:0xf bank_mask:0xa')
    for mod in ('quad_perm:[1,0,3,2]', 'quad_perm:[2,3,0,1]'):
        for v in (V0, V1):
            a(f'v_add_f32_dpp v{v}, v{v}, v{v} {mod} row_mask:0xf bank_mask:0xf')
    a(f's_mul_i32 s88, s{sub}, 192')
    a(f's_add_u32 s88, s88, {PBO}')
    a('s_mul_i32 s89, s4, 192')
    a(f's_add_u32 s89, s89, {PBS - 192}')
    a(f's_cmp_eq_u32 s{cont}, 1')
    a('s_cselect_b32 s88, s89, s88')
    a('s_mul_i32 s89, s5, 96')
    a('s_add_u32 s88, s88, s89')
    a(f'v_add_u32 v{ad}, s88, v{V_PO0}')
    a(f'v_add_u32 v{t0}, s88, v{V_PO1}')
    a('s_mov_b32 exec_lo, 0x11111111')
    a('s_mov_b32 exec_hi, 0x11111111')
    a(f'ds_write_b32 v{ad}, v{V0}')
    a('s_mov_b32 exec_lo, 0x01010101')
    a('s_mov_b32 exec_hi, 0x01010101')
    a(f'ds_write_b32 v{t0}, v{V1}')
    a('s_mov_b64 exec, -1')
    if tag == 'a':
        for i in range(64): a(f'v_mov_b32 v{ACC+i}, 0')

def hpart(a, WH):
    HA = 112
    HF = [96, 16]
    a(f's_mov_b32 s89, {NLN2:#x}')
    for b in range(4):
        a(f'v_lshlrev_b32 v{V_WX+b}, 16, v{V_WX+b}')
        a(f'v_mul_f32 v{V_WX+b}, s89, v{V_WX+b}')
    a('v_and_b32 v13, 15, v1')
    a('v_lshrrev_b32 v14, 4, v1')
    a('v_xor_b32 v15, v14, v13')
    a('v_lshlrev_b32 v15, 4, v15')
    a('v_lshl_add_u32 v15, v13, 9, v15')
    a(f'v_add_u32 v15, {HT}, v15')
    for ksp in range(8):
        a(f'v_xor_b32 v12, {(4*ksp % 16)*16}, v15')
        off = (256 if ksp >= 4 else 0)
        fr = HF[ksp % 2]
        for rb in range(3):
            a(f'ds_read_b128 {vr(fr+4*rb,4)}, v12 offset:{off + rb*8192}')
        a('s_waitcnt lgkmcnt(0)')
        for cb in range(2):
            wreg = vr(WH + 4 * (2 * ksp + cb), 4)
            for rb in range(3):
                d = vr(HA + 8 * rb + 4 * cb, 4)
                c = '0' if ksp == 0 else d
                a(f'v_mfma_f32_16x16x32_bf16 {d}, {vr(fr+4*rb,4)}, {wreg}, {c}')
    for rb in range(3):
        for r in range(4):
            a(f'v_cvt_pk_bf16_f32 v{H1+4*rb+r}, v{HA+8*rb+r}, v{HA+8*rb+4+r}')

def consts(a, first):
    a('v_lshlrev_b32 v12, 4, v1')
    a('s_lshl_b32 s88, s5, 12')
    a(f's_add_u32 s88, s88, {W3P}')
    for b in range(4):
        a(f'buffer_load_dwordx4 {vr(W3+4*b,4)}, v12, s[40:43], s88 offen offset:{1024*b}')
    a('v_and_b32 v13, 31, v1')
    a('v_lshrrev_b32 v14, 5, v1')
    a('s_lshl_b32 s88, s5, 8')
    a('v_lshlrev_b32 v15, 1, v13')
    if first:
        for b in range(4):
            a(f'buffer_load_ushort v{V_WX+b}, v15, s[68:71], s88 offen offset:{64*b}')
    a('s_lshl_b32 s88, s5, 11')
    a(f's_add_u32 s88, s88, {WDP}')
    a('v_lshlrev_b32 v15, 4, v13')
    for b in range(4):
        a(f'buffer_load_dword v{WDA+4*b}, v15, s[40:43], s88 offen offset:{512*b}')
        for i in range(1, 4): a(f'v_mov_b32 v{WDA+4*b+i}, 0')
def selconst(a):
    a('v_and_b32 v13, 31, v1')
    a('v_lshrrev_b32 v14, 5, v1')
    a('v_lshlrev_b32 v16, 3, v14')
    a('v_sub_u32 v16, v13, v16')
    for sidx in range(2):
        for p in range(4):
            lo, hi = 16*sidx + 2*p, 16*sidx + 2*p + 1
            a(f'v_cmp_eq_u32 vcc, {lo}, v16')
            a(f'v_mov_b32 v17, 0x3f80')
            a(f'v_cndmask_b32 v21, 0, v17, vcc')
            a(f'v_cmp_eq_u32 vcc, {hi}, v16')
            a(f'v_mov_b32 v17, 0x3f800000')
            a(f'v_cndmask_b32 v{SEL+4*sidx+p}, v21, v17, vcc')
    for i in range(4): a(f'v_mov_b32 v{OH+i}, 0')

WH = 112
WM = 16
def tail_loads_m(a):
    a('v_lshlrev_b32 v12, 4, v1')
    a('s_lshl_b32 s88, s3, 15')
    a(f's_add_u32 s88, s88, {WHP + 16384}')
    for j in range(16):
        a(f's_add_u32 s89, s88, {j*1024}')
        a(f'buffer_load_dwordx4 {vr(WM+4*j,4)}, v12, s[40:43], s89 offen')
def tail_loads_ht(a):
    a('v_lshrrev_b32 v13, 5, v1')
    a('s_mul_i32 s89, s3, 6')
    a('v_add_u32 v13, s89, v13')
    a('v_and_b32 v10, 31, v1')
    a('s_mul_i32 s90, s2, 40')
    for j in range(3):
        a('v_and_b32 v11, 15, v13')
        a('v_xor_b32 v11, v11, v10')
        a('v_lshlrev_b32 v11, 4, v11')
        a('v_add_u32 v12, s90, v13')
        a('v_lshl_add_u32 v11, v12, 9, v11')
        a('s_and_b32 s91, s3, 1')
        a('s_lshl_b32 s91, s91, 7')
        a('s_add_u32 s91, s91, s87')
        a(f's_add_u32 m0, s91, {j*1024}')
        a('buffer_load_dwordx4 v11, s[56:59], 0 offen lds')
        if j < 2: a('v_add_u32 v13, 2, v13')
def tail_loads_wh(a):
    a('v_lshlrev_b32 v12, 4, v1')
    a('s_lshl_b32 s88, s3, 15')
    a(f's_add_u32 s88, s88, {WHP}')
    for j in range(16):
        a(f's_add_u32 s89, s88, {j*1024}')
        a(f'buffer_load_dwordx4 {vr(WH+4*j,4)}, v12, s[40:43], s89 offen')

def gen_k2(a, dbg=False):
    a.label('k2_main_kernel')
    a(f's_cmp_ge_u32 s2, {T_}')
    a('s_cbranch_scc1 k2_done')
    load_kernargs(a)
    a('v_and_b32 v1, 63, v0')
    a('v_lshrrev_b32 v2, 6, v0')
    a('v_readfirstlane_b32 s3, v2')
    a('s_lshr_b32 s4, s3, 1')
    a('s_sub_u32 s88, 5, s4')
    a('s_cmp_ge_u32 s3, 4')
    a('s_cselect_b32 s4, s88, s4')
    a('s_and_b32 s5, s3, 1')
    a('s_waitcnt lgkmcnt(0)')
    srd(a, 40, 36, 37, 0, 0x2000000)
    a('s_mov_b32 s66, 0')
    a('s_mov_b32 s67, 0')
    a('s_mov_b32 s27, 0')
    a('s_mov_b32 s15, 0')
    a('s_mov_b32 s64, 0')
    a('s_mov_b32 s65, -1')
    a.label('k2_batch')
    a('s_cmp_eq_u32 s66, 2')
    a('s_cbranch_scc1 k2_ld_ovf')
    a('v_lshlrev_b32 v15, 4, v0')
    a('s_mul_i32 s88, s2, 16000')
    a(f's_add_u32 s88, s88, {CELL}')
    a('buffer_load_dwordx4 v[24:27], v15, s[40:43], s88 offen')
    a('v_cmp_gt_u32 vcc, 488, v0')
    a('v_mov_b32 v31, 0')
    a('s_and_saveexec_b64 s[90:91], vcc')
    a('v_add_u32 v16, 8192, v15')
    a('buffer_load_dwordx4 v[28:31], v16, s[40:43], s88 offen')
    a('s_mov_b64 exec, s[90:91]')
    a('s_branch k2_ld_done')
    a.label('k2_ld_ovf')
    a('v_add_u32 v16, s21, v0')
    a('v_lshlrev_b32 v15, 3, v16')
    a('s_mul_i32 s88, s67, 5120')
    a(f's_add_u32 s88, s88, {OVF}')
    a('v_mov_b32 v25, -1')
    a('v_cmp_gt_u32 vcc, s97, v16')
    a('s_mov_b32 s89, 160')
    a('v_cmp_gt_u32 s[90:91], s89, v0')
    a('s_and_b64 vcc, vcc, s[90:91]')
    a('s_and_saveexec_b64 s[90:91], vcc')
    a('buffer_load_dwordx2 v[24:25], v15, s[40:43], s88 offen')
    a('s_mov_b64 exec, s[90:91]')
    a.label('k2_ld_done')
    a('v_mov_b32 v7, 0')
    for rep in range(2):
        a(f'v_add_u32 v16, {rep*512}, v0')
        a(f'v_cmp_gt_u32 vcc, {SC}, v16')
        a('s_and_saveexec_b64 s[90:91], vcc')
        a('v_lshlrev_b32 v15, 2, v16')
        a(f'v_add_u32 v15, {SRC}, v15')
        a('v_mov_b32 v17, 0x80000000')
        a(f'ds_write_b32 v15, v{V_Z}')
        a(f'ds_write_b32 v15, v{V_Z} offset:{W1-SRC}')
        a(f'ds_write_b32 v15, v17 offset:{XA-SRC}')
        a('s_mov_b64 exec, s[90:91]')
    a('v_cmp_gt_u32 vcc, 12, v0')
    a('s_and_saveexec_b64 s[90:91], vcc')
    a('v_lshlrev_b32 v15, 2, v0')
    a(f'v_add_u32 v15, {CNT}, v15')
    a(f'ds_write_b32 v15, v{V_Z}')
    a('s_mov_b64 exec, s[90:91]')
    a('s_cmp_eq_u32 s66, 0')
    a('s_cbranch_scc0 k2_re')
    srd(a, 44, 36, 37, BT, N * 512)
    srd(a, 48, 20, 21, 0, E * 32)
    srd(a, 52, 18, 19, 0, N * 6)
    srd(a, 56, 16, 17, 0, N * 512)
    srd(a, 60, 32, 33, 0, 2590000 * 2)
    srd(a, 68, 28, 29, 0, 512)
    stamp(a, 0, dbg)
    stamp(a, 8, dbg, 252, 's_memtime')
    a('v_lshlrev_b32 v15, 2, v0')
    a(f'v_add_u32 v15, {OVFC}, v15')
    a('v_cmp_gt_u32 vcc, 250, v0')
    a('v_mov_b32 v20, 0')
    a('s_and_saveexec_b64 s[90:91], vcc')
    a('buffer_load_dword v20, v15, s[40:43], 0 offen')
    a('s_mov_b64 exec, s[90:91]')
    a('s_mul_i32 s88, s2, 40')
    a('v_add_u32 v16, s88, v0')
    a('v_mul_u32_u24 v17, 6, v16')
    a('v_and_b32 v17, -4, v17')
    a('v_cmp_gt_u32 vcc, 40, v0')
    a('s_and_saveexec_b64 s[90:91], vcc')
    a('buffer_load_dwordx2 v[18:19], v17, s[52:55], 0 offen')
    a('s_mov_b64 exec, s[90:91]')
    a('s_lshl_b32 s88, s3, 11')
    a(f's_add_u32 s88, s88, {JIT}')
    a(f'v_lshlrev_b32 v{V_LRD}, 4, v1')
    a(f'v_add_u32 v{V_LRD}, s88, v{V_LRD}')
    z = T
    for i in range(4): a(f'v_mov_b32 v{z+i}, 0')
    a(f'ds_write_b128 v{V_LRD}, v[{z}:{z+3}]')
    a(f'ds_write_b128 v{V_LRD}, v[{z}:{z+3}] offset:1024')
    a('v_cmp_gt_u32 vcc, 120, v0')
    a('s_and_saveexec_b64 s[90:91], vcc')
    a('v_lshlrev_b32 v16, 2, v0')
    a(f'v_add_u32 v16, {PACC}, v16')
    a(f'ds_write_b32 v16, v{V_Z}')
    a('s_mov_b64 exec, s[90:91]')
    a('v_cmp_gt_u32 vcc, 72, v0')
    a('s_and_saveexec_b64 s[90:91], vcc')
    a('v_lshrrev_b32 v16, 3, v0')
    a('v_and_b32 v17, 7, v0')
    a('v_cmp_eq_u32 vcc, v16, v17')
    a('v_mov_b32 v17, 0x3f80')
    a('v_cndmask_b32 v17, 0, v17, vcc')
    a('v_lshlrev_b32 v16, 1, v0')
    a(f'v_add_u32 v16, {LUT}, v16')
    a('ds_write_b16 v16, v17')
    a('s_mov_b64 exec, s[90:91]')
    a('s_waitcnt lgkmcnt(0)')
    a('s_barrier')
    a('v_lshlrev_b32 v12, 4, v1')
    a('s_mul_i32 s88, s2, 20480')
    a(f's_add_u32 s88, s88, {AT}')
    for j in range(3):
        a(f's_lshl_b32 s89, s3, 10')
        a(f's_add_u32 s89, s89, {j*8192}')
        if j == 2:
            a('s_cmp_ge_u32 s3, 4')
            a('s_cbranch_scc1 k2_noat')
        a(f's_add_u32 m0, s89, {ATL}')
        a('s_add_u32 s89, s89, s88')
        a('buffer_load_dwordx4 v12, s[40:43], s89 offen lds')
    a.label('k2_noat')
    consts(a, True)
    a(f's_mov_b32 s92, {NL2E:#x}')
    a('s_lshl_b32 s86, s5, 8')
    a(f's_mul_i32 s87, s3, {STGW}')
    a('s_lshl_b32 s39, s3, 10')
    a(f's_add_u32 s39, s39, {EAP}')
    a(f'v_lshlrev_b32 v{V_E4}, 2, v13')
    a(f'v_add_u32 v{V_E4}, {XA}, v{V_E4}')
    a(f'v_add_u32 v{V_E1}, {SV}, v13')
    a(f'v_lshrrev_b32 v{V_EI}, 1, v1')
    a(f'v_lshlrev_b32 v{V_EI}, 2, v{V_EI}')
    a(f'v_add_u32 v{V_EI}, {W1}, v{V_EI}')
    a(f'v_and_b32 v{V_HM}, 1, v1')
    a(f'v_lshlrev_b32 v{V_HM}, 4, v{V_HM}')
    a(f'v_lshlrev_b32 v{V_LCE}, 5, v13')
    a(f'v_lshl_add_u32 v{V_LCE}, v14, 4, v{V_LCE}')
    a(f'v_add_u32 v{V_LCE}, s39, v{V_LCE}')
    a(f'v_lshrrev_b32 v{V_LCS}, 4, v1')
    a(f'v_lshlrev_b32 v{V_LCS}, 5, v{V_LCS}')
    a(f'v_add_u32 v{V_LCS}, {SRC}, v{V_LCS}')
    a('v_bfe_u32 v16, v13, 4, 1')
    a(f'v_lshlrev_b32 v{V_LCL}, 10, v16')
    a('v_bfe_u32 v16, v13, 2, 1')
    a(f'v_lshl_add_u32 v{V_LCL}, v16, 9, v{V_LCL}')
    a('v_bfe_u32 v16, v13, 3, 1')
    a(f'v_lshl_add_u32 v{V_LCL}, v16, 3, v{V_LCL}')
    a('v_and_b32 v16, 3, v13')
    a(f'v_lshl_add_u32 v{V_LCL}, v16, 1, v{V_LCL}')
    a(f'v_lshl_add_u32 v{V_LCL}, v14, 5, v{V_LCL}')
    a('s_lshl_b32 s88, s3, 11')
    a(f's_add_u32 s88, s88, {JIT}')
    a(f'v_add_u32 v{V_LCL}, s88, v{V_LCL}')
    a('v_and_b32 v16, 7, v13')
    a(f'v_mul_u32_u24 v{V_RB}, 1040, v16')
    a('v_lshrrev_b32 v16, 3, v13')
    a(f'v_lshl_add_u32 v{V_RB}, v16, 8, v{V_RB}')
    a(f'v_lshl_add_u32 v{V_RB}, v14, 4, v{V_RB}')
    a(f'v_add_u32 v{V_RB}, s87, v{V_RB}')
    a('v_and_b32 v16, 15, v1')
    a(f'v_lshlrev_b32 v{V_LCD}, 4, v16')
    a('s_lshl_b32 s88, s5, 7')
    a('v_add_u32 v16, s88, v13')
    a('v_lshlrev_b32 v16, 4, v16')
    a(f'v_add_u32 v{V_LCA}, {ATL}, v16')
    a(f'v_mov_b32 v{V_LUT0}, {LUT}')
    a(f'v_mov_b32 v{V_LUT8}, {LUT+128}')
    a('v_lshrrev_b32 v16, 4, v1')
    a('v_bfe_u32 v17, v1, 2, 2')
    a('v_and_b32 v21, 1, v17')
    a('v_lshrrev_b32 v22, 1, v17')
    a('v_lshl_add_u32 v21, v21, 1, v22')
    a('v_and_b32 v23, 1, v16')
    a('v_lshl_add_u32 v21, v21, 1, v23')
    a('v_lshl_add_u32 v22, v22, 1, v23')
    a('v_add_u32 v22, 8, v22')
    a('v_lshrrev_b32 v16, 1, v16')
    a('v_mul_u32_u24 v16, 12, v16')
    a('v_add_u32 v21, v21, v16'); a('v_add_u32 v22, v22, v16')
    a(f'v_lshlrev_b32 v{V_PO0}, 2, v21'); a(f'v_lshlrev_b32 v{V_PO1}, 2, v22')
    selconst(a)
    a('s_waitcnt vmcnt(14)')
    stamp(a, 1, dbg)
    a('s_mul_i32 s88, s2, 40')
    a('v_add_u32 v16, s88, v0')
    a('v_and_b32 v16, 1, v16')
    a('v_lshlrev_b32 v16, 4, v16')
    a('v_alignbit_b32 v22, v19, v18, v16')
    a('v_lshrrev_b32 v23, v16, v19')
    a('v_lshlrev_b32 v15, 3, v0')
    a(f'v_add_u32 v15, {POST}, v15')
    a('v_cmp_gt_u32 vcc, 40, v0')
    a('s_and_saveexec_b64 s[90:91], vcc')
    a('ds_write_b64 v15, v[22:23]')
    a('s_mov_b64 exec, s[90:91]')
    a('v_cmp_ne_u32 vcc, 0, v20')
    a('s_cbranch_vccz k2_later')
    a(f'v_mov_b32 v15, {CNT+32}')
    a('v_mov_b32 v16, 1')
    a('ds_write_b32 v15, v16')
    a('s_branch k2_later')
    a.label('k2_re')
    consts(a, False)
    selconst(a)
    a('s_waitcnt vmcnt(0) lgkmcnt(0)')
    a('s_barrier')
    a.label('k2_later')
    CI0, CI1, VC0, VC1 = 21, 22, 18, 19
    a('s_cmp_eq_u32 s66, 2')
    a('s_cbranch_scc1 k2_v_ovf')
    a(f'v_lshrrev_b32 v{CI0}, 2, v0')
    a(f'v_add_u32 v{CI1}, 128, v{CI0}')
    a(f'v_mov_b32_dpp v{VC0}, v27 quad_perm:[3,3,3,3] row_mask:0xf bank_mask:0xf')
    a(f'v_mov_b32_dpp v{VC1}, v31 quad_perm:[3,3,3,3] row_mask:0xf bank_mask:0xf')
    a('v_and_b32 v15, 3, v0')
    a('v_lshlrev_b32 v15, 2, v15')
    for r in (VC0, VC1):
        a(f'v_min_u32 v{r}, {CAP}, v{r}')
        a(f'v_sub_i32 v{r}, v{r}, v15')
    a('s_cmp_eq_u32 s66, 1')
    a('s_cbranch_scc0 k2_v_done')
    for r, c in ((VC0, CI0), (VC1, CI1)):
        a(f'v_subrev_u32 v15, s67, v{c}')
        a('v_cmp_gt_u32 vcc, 12, v15')
        a(f'v_cndmask_b32 v{r}, 0, v{r}, vcc')
    a('s_branch k2_v_done')
    a.label('k2_v_ovf')
    a(f'v_mov_b32 v{CI0}, s67'); a(f'v_mov_b32 v{CI1}, s67')
    a(f'v_cmp_eq_u32 vcc, s2, v25')
    a(f'v_cndmask_b32 v{VC0}, 0, 1, vcc')
    a(f'v_mov_b32 v{VC1}, 0')
    a.label('k2_v_done')
    a(f'v_mul_u32_u24 v{CI0}, 640, v{CI0}')
    a(f'v_mul_u32_u24 v{CI1}, 640, v{CI1}')
    MS = [72, 74, 76, 80, 82, 88, 90, 94]
    for i in range(8):
        vc = VC0 if i < 4 else VC1
        a(f'v_cmp_lt_i32 s[{MS[i]}:{MS[i]+1}], {i%4}, v{vc}')
    SB = 32
    for i in range(8):
        a(f'v_bfe_u32 v{SB+i}, v{24+i}, 17, 3')
        a(f'v_lshlrev_b32 v{SB+8+i}, 2, v{SB+i}')
        a(f'v_add_u32 v{SB+8+i}, {CNT}, v{SB+8+i}')
    a('v_mov_b32 v16, 1')
    for i in range(8):
        a(f's_mov_b64 exec, s[{MS[i]}:{MS[i]+1}]')
        a(f'ds_add_rtn_u32 v{T+i}, v{SB+8+i}, v16')
    a('s_mov_b64 exec, -1')
    for i in range(8):
        ci = CI0 if i < 4 else CI1
        a(f'v_and_b32 v{48+i}, 0x3fff, v{24+i}')
        a(f'v_lshlrev_b32 v{48+i}, 9, v{48+i}')
        a(f'v_lshrrev_b32 v{56+i}, 20, v{24+i}')
        a(f'v_add_u32 v{56+i}, v{56+i}, v{ci}')
        a(f'v_mul_u32_u24 v{SB+i}, {CAPS*4}, v{SB+i}')
        a(f'v_add_u32 v{SB+i}, {SRC}, v{SB+i}')
    a('s_waitcnt lgkmcnt(0)')
    for i in range(8):
        a(f'v_min_u32 v{T+i}, {CAPS-1}, v{T+i}')
        a(f'v_lshl_add_u32 v{SB+i}, v{T+i}, 2, v{SB+i}')
    for i in range(8):
        a(f's_mov_b64 exec, s[{MS[i]}:{MS[i]+1}]')
        a(f'ds_write_b32 v{SB+i}, v{48+i}')
        a(f'ds_write_b32 v{SB+i}, v{56+i} offset:{W1-SRC}')
        a(f'ds_write_b32 v{SB+i}, v{24+i} offset:{XA-SRC}')
    a('s_mov_b64 exec, -1')
    a('s_waitcnt lgkmcnt(0)')
    a('s_barrier')
    stamp(a, 2, dbg)
    PB_ = [48, 56]
    for rnd in range(2):
        b0 = PB_[rnd]
        if rnd == 1:
            a('s_cmp_eq_u32 s3, 7')
            a('s_cbranch_scc1 k2_nopos')
        a(f's_lshl_b32 s89, s3, 6')
        if rnd: a('s_add_u32 s89, s89, 512')
        a('v_add_u32 v16, s89, v1')
        a('v_lshlrev_b32 v15, 2, v16')
        a(f'v_add_u32 v{b0}, {XA}, v15')
        a(f'ds_read_b32 v{b0+1}, v{b0}')
        a('s_waitcnt lgkmcnt(0)')
        a(f'v_and_b32 v16, 0x3fff, v{b0+1}')
        a('v_mul_u32_u24 v16, 6, v16')
        a('v_and_b32 v16, -4, v16')
        a(f'v_cmp_le_i32 vcc, 0, v{b0+1}')
        a(f'v_mov_b32 v{b0+2}, 0'); a(f'v_mov_b32 v{b0+3}, 0')
        a('s_and_saveexec_b64 s[90:91], vcc')
        a(f'buffer_load_dwordx2 v[{b0+2}:{b0+3}], v16, s[52:55], 0 offen')
        a('s_mov_b64 exec, s[90:91]')
        a(f'v_bfe_u32 v16, v{b0+1}, 14, 6')
        a('v_lshlrev_b32 v16, 3, v16')
        a(f'v_add_u32 v16, {POST}, v16')
        a(f'ds_read_b64 v[{b0+4}:{b0+5}], v16')
    a.label('k2_nopos')
    a(f'v_mov_b32 v15, {CNT}')
    a('ds_read_b128 v[24:27], v15')
    a('ds_read_b32 v28, v15 offset:16')
    a('ds_read_b32 v29, v15 offset:32')
    a('s_waitcnt lgkmcnt(0)')
    a('s_mov_b32 s72, 0')
    for k in range(5):
        a(f'v_readfirstlane_b32 s88, v{24+k}')
        a('s_max_u32 s91, s91, s88') if k else a('s_mov_b32 s91, s88')
        a('s_add_u32 s89, s88, 7')
        a(f's_and_b32 s{CP+k}, s89, -8')
        a('s_add_u32 s89, s88, 31')
        a('s_lshr_b32 s89, s89, 5')
        a(f's_add_u32 s{73+k}, s{72+k}, s89')
    a('s_cmp_eq_u32 s66, 0')
    a('s_cbranch_scc0 k2_noflag2')
    a('v_readfirstlane_b32 s85, v29')
    a.label('k2_noflag2')
    a(f's_cmp_gt_u32 s91, {CAPS}')
    a('s_cselect_b32 s93, 1, 0')
    a('s_cbranch_scc1 k2_nofit1')
    a(f's_mov_b32 s88, {CW[0]}'); a(f's_mov_b32 s89, {CW[1]}')
    for k in range(1, 4):
        a(f's_cmp_eq_u32 s4, {k}')
        a(f's_cselect_b32 s88, {CW[k]}, s88')
        a(f's_cselect_b32 s89, {CW[k+1]}, s89')
    a('s_mul_i32 s88, s77, s88')
    a('s_lshr_b32 s28, s88, 6')
    a('s_mul_i32 s89, s77, s89')
    a('s_lshr_b32 s79, s89, 6')
    if 'solo' in FL:
        a('s_cmp_ge_u32 s3, 4')
        a('s_cselect_b32 s79, s28, s79')
    build_desc(a)
    a(f'v_readlane_b32 s78, v{V_DESC}, 0')
    a(f'v_readlane_b32 s94, v{V_DESC}, 1')
    a(f'v_readlane_b32 s6, v{V_DESC}, 2')
    a('s_mov_b32 s30, 2')
    read_lists(a, 78)
    a('s_waitcnt lgkmcnt(0)')
    issue_loads(a)
    a('s_bfe_u32 s80, s78, 0x30010')
    a('s_mov_b32 s38, s72')
    for k in range(1, 5):
        a(f's_cmp_eq_u32 s80, {k}')
        a(f's_cselect_b32 s38, s{72+k}, s38')
    a('s_cmp_gt_u32 s28, s38')
    a('s_cselect_b32 s38, 1, 0')
    a.label('k2_nofit1')
    stamp(a, 12, dbg)
    a('s_cmp_eq_u32 s93, 0')
    a('s_cbranch_scc1 k2_fits')
    a('s_mov_b32 s66, 1')
    a('s_mov_b32 s67, 0')
    a('s_waitcnt vmcnt(0) lgkmcnt(0)')
    a('s_barrier')
    a('s_branch k2_batch')
    a.label('k2_fits')
    stamp(a, 10, dbg)
    a('s_waitcnt vmcnt(9) lgkmcnt(0)')
    a('s_cmp_eq_u32 s15, 0')
    a('s_cbranch_scc0 k2_wxdone')
    a('s_mov_b32 s15, 1')
    a(f's_mov_b32 s89, {NLN2:#x}')
    for b in range(4):
        a(f'v_lshlrev_b32 v{V_WX+b}, 16, v{V_WX+b}')
        a(f'v_mul_f32 v{V_WX+b}, s89, v{V_WX+b}')
    a.label('k2_wxdone')
    for rnd in range(2):
        b0 = PB_[rnd]
        if rnd == 1:
            a('s_cmp_eq_u32 s3, 7')
            a('s_cbranch_scc1 k2_nogeo')
        e_, p0, p1, d0, d1 = b0+1, b0+2, b0+3, b0+4, b0+5
        t = 16
        a(f'v_and_b32 v15, 1, v{e_}')
        a('v_lshlrev_b32 v15, 4, v15')
        a(f'v_alignbit_b32 v{t}, v{p1}, v{p0}, v15')
        a(f'v_lshrrev_b32 v{t+1}, v15, v{p1}')
        a(f'v_lshlrev_b32 v{t+2}, 16, v{t}'); a(f'v_and_b32 v{t+3}, 0xffff0000, v{t}'); a(f'v_lshlrev_b32 v{t+4}, 16, v{t+1}')
        a(f'v_lshlrev_b32 v{t+5}, 16, v{d0}'); a(f'v_and_b32 v{t+6}, 0xffff0000, v{d0}'); a(f'v_lshlrev_b32 v{t+7}, 16, v{d1}')
        a(f'v_sub_f32 v{t+2}, v{t+5}, v{t+2}'); a(f'v_sub_f32 v{t+3}, v{t+6}, v{t+3}'); a(f'v_sub_f32 v{t+4}, v{t+7}, v{t+4}')
        a(f'v_cvt_pk_bf16_f32 v{t}, v{t+2}, v{t+3}')
        a(f'v_cvt_pk_bf16_f32 v{t+1}, v{t+4}, v{V_Z}')
        a(f'v_lshlrev_b32 v{t+2}, 16, v{t}'); a(f'v_and_b32 v{t+3}, 0xffff0000, v{t}'); a(f'v_lshlrev_b32 v{t+4}, 16, v{t+1}')
        a(f'v_mul_f32 v{t+2}, v{t+2}, v{t+2}'); a(f'v_mul_f32 v{t+3}, v{t+3}, v{t+3}'); a(f'v_mul_f32 v{t+4}, v{t+4}, v{t+4}')
        a(f'v_cvt_pk_bf16_f32 v{t+5}, v{t+2}, v{t+3}')
        a(f'v_cvt_pk_bf16_f32 v{t+6}, v{t+4}, v{V_Z}')
        a(f'v_lshlrev_b32 v{t+2}, 16, v{t+5}'); a(f'v_and_b32 v{t+3}, 0xffff0000, v{t+5}'); a(f'v_lshlrev_b32 v{t+4}, 16, v{t+6}')
        a(f'v_add_f32 v{t+2}, v{t+2}, v{t+3}'); a(f'v_add_f32 v{t+2}, v{t+2}, v{t+4}')
        a(f'v_cvt_pk_bf16_f32 v{t+2}, v{t+2}, v{V_Z}')
        a(f'v_and_b32 v{t+3}, 0xffff, v{t}')
        a(f'v_lshl_or_b32 v{t+3}, v{t+2}, 16, v{t+3}')
        a(f'v_alignbit_b32 v{t+4}, v{t+1}, v{t}, 16')
        a(f'v_bfe_u32 v{t+5}, v{e_}, 14, 3')
        a(f'v_or_b32 v{t+5}, 0x80, v{t+5}')
        a(f'v_cmp_le_i32 vcc, 0, v{e_}')
        for r in (t+3, t+4, t+5):
            a(f'v_cndmask_b32 v{r}, 0, v{r}, vcc')
        a(f'ds_write_b32 v{b0}, v{t+3}')
        a(f'ds_write_b32 v{b0}, v{t+4} offset:{XB-XA}')
        a(f'v_subrev_u32 v15, {XA}, v{b0}')
        a('v_lshrrev_b32 v15, 2, v15')
        a(f'v_add_u32 v15, {SV}, v15')
        a(f'ds_write_b8 v15, v{t+5}')
    a.label('k2_nogeo')
    a('s_cmp_eq_u32 s3, 7')
    a('s_cbranch_scc0 k2_nopad')
    a('v_lshlrev_b32 v15, 2, v1')
    a(f'v_add_u32 v15, {XA + 960*4}, v15')
    a('s_mov_b32 exec_hi, 0')
    a(f'ds_write_b32 v15, v{V_Z}')
    a(f'ds_write_b32 v15, v{V_Z} offset:{XB-XA}')
    a(f'v_add_u32 v15, {SV + 960}, v1')
    a(f'ds_write_b8 v15, v{V_Z}')
    a('s_mov_b32 exec_hi, -1')
    a.label('k2_nopad')
    a('s_waitcnt lgkmcnt(0)')
    a('s_barrier')
    stamp(a, 3, dbg)
    wstamp(a, 0, dbg)
    a('s_bitcmp1_b32 s78, 20')
    a('s_cbranch_scc0 k2_edge_done')
    a('s_waitcnt vmcnt(0)')
    read_geo(a, 78)
    read_rows(a)
    read_wda(a, 78)
    a('s_waitcnt lgkmcnt(12)')
    build_xy(a)
    read_ea_oh(a)
    a('s_waitcnt lgkmcnt(0)')
    read_lists(a, 94)
    a(f'v_or_b32 v{OH}, v{OH}, v{V_D2}')
    for i in range(64): a(f'v_mov_b32 v{ACC+i}, 0')
    for i in range(8): a(f'v_mov_b32 v{L+i}, 0'); a(f'v_mov_b32 v{PRE+16+i}, 0')
    a('s_waitcnt lgkmcnt(0)')
    a('s_bitcmp1_b32 s94, 20')
    a('s_cbranch_scc0 k2_p_nodma')
    issue_loads(a)
    a.label('k2_p_nodma')
    for m in A_ops(0, 0):
        for x in m: a(x)
    a('s_mov_b32 s13, 0')
    a('s_mov_b32 s14, 0')
    a('s_mov_b32 s12, 0')
    wstamp(a, 1, dbg)
    def body(a, full):
        tg = 'f' if full else 'g'
        quarter(a, 0, 0, C_ops(3, 1), full)
        jit_l(a, full)
        A = A_ops(1, 1)
        quarter(a, 0, 1, A[0:2], full); quarter(a, 0, 2, A[2:3], full); quarter(a, 0, 3, A[3:4], full)
        a('s_bitcmp1_b32 s13, 19')
        a('s_cbranch_scc1 k2_flush')
        a.label(f'k2_nofl{tg}')
        a('s_waitcnt lgkmcnt(0)')
        quarter(a, 1, 0, C_ops(0, 0), full)
        read_geo(a, 94)
        A = A_ops(2, 0)
        quarter(a, 1, 1, A[0:2], full); quarter(a, 1, 2, A[2:3], full); quarter(a, 1, 3, A[3:4], full)
        A = A_ops(3, 1)
        quarter(a, 0, 0, C_ops(1, 1), full)
        quarter(a, 0, 1, A[0:2], full)
        a('s_waitcnt vmcnt(0) lgkmcnt(0)')
        read_rows(a)
        build_xy(a)
        quarter(a, 0, 2, A[2:3], full); quarter(a, 0, 3, A[3:4], full)
        read_ea_oh(a)
        read_lists(a, 6)
        a('s_xor_b32 s88, s94, s78')
        a('s_and_b32 s88, s88, 0x70000')
        a(f's_cbranch_scc1 k2_wda{tg}')
        a.label(f'k2_wdar{tg}')
        D = Asm()
        D.label(f'k2_wda{tg}')
        read_wda(D, 94)
        D(f's_branch k2_wdar{tg}')
        DEFER.extend(D.lines)
        quarter(a, 1, 0, C_ops(2, 0), full)
        a('s_waitcnt lgkmcnt(0)')
        a(f'v_or_b32 v{OH}, v{OH}, v{V_D2}')
        a('s_bitcmp1_b32 s6, 20')
        a(f's_cbranch_scc0 k2_late{tg}')
        issue_loads(a)
        a.label(f'k2_nx3{tg}')
        D = Asm()
        D.label(f'k2_late{tg}')
        D('s_cmp_eq_u32 s12, 0')
        D(f's_cbranch_scc0 k2_late2{tg}')
        D('s_mov_b32 s12, 1')
        tail_loads_ht(D)
        D.label(f'k2_late2{tg}')
        D('s_bitcmp1_b32 s94, 20')
        D(f's_cbranch_scc1 k2_nx3{tg}')
        tail_loads_wh(D)
        D(f's_branch k2_nx3{tg}')
        DEFER.extend(D.lines)
        A = A_ops(0, 0)
        quarter(a, 1, 1, A[0:2], full); quarter(a, 1, 2, A[2:3], full); quarter(a, 1, 3, A[3:4], full)
    if 'priobig' in FL:
        a('s_cmp_lt_u32 s3, 4')
        a('s_cbranch_scc0 k2_np0')
        a('s_setprio 1')
        a.label('k2_np0')
    if 'prio1' in FL:
        a('s_cmp_ge_u32 s3, 4')
        a('s_cbranch_scc0 k2_np1')
        a('s_setprio 1')
        a.label('k2_np1')
    if 'prioalt' in FL:
        a('s_lshr_b32 s12, s3, 2')
    a.label('k2_grp')
    if 'prioalt' in FL:
        a('s_xor_b32 s12, s12, 1')
        a('s_cmp_eq_u32 s12, 1')
        a('s_cbranch_scc1 k2_pa1')
        a('s_setprio 0')
        a('s_branch k2_pa2')
        a.label('k2_pa1')
        a('s_setprio 1')
        a.label('k2_pa2')
    a('s_bitcmp1_b32 s78, 21')
    a('s_cbranch_scc0 k2_gen')
    body(a, True)
    a.label('k2_rot')
    a('s_mov_b32 s13, s78'); a('s_mov_b32 s14, s38')
    a('s_bitcmp1_b32 s78, 19')
    a('s_cselect_b32 s38, 0, s38')
    a('s_mov_b32 s78, s94'); a('s_mov_b32 s94, s6')
    a('s_add_u32 s30, s30, 1')
    a(f'v_readlane_b32 s6, v{V_DESC}, s30')
    a('s_bitcmp1_b32 s78, 20')
    a('s_cbranch_scc1 k2_grp')
    G = Asm()
    G.label('k2_gen')
    G('s_bfe_u32 s81, s78, 0x6000a')
    save = list(DEFER); DEFER.clear()
    body(G, False)
    G('s_branch k2_rot')
    G.label('k2_flush')
    flush(G, 13, 14, 'a')
    G('s_bitcmp1_b32 s78, 21')
    G('s_cbranch_scc1 k2_noflf')
    G('s_branch k2_noflg')
    inner = list(DEFER); DEFER.clear()
    DEFER.extend(save); DEFER.extend(G.lines); DEFER.extend(inner)
    wstamp(a, 2, dbg)
    wstamp(a, 3, dbg)
    for m in C_ops(3, 1):
        for x in m: a(x)
    flush(a, 13, 14, 'b')
    if False:
        a('s_lshl_b32 s88, s2, 3'); a('s_add_u32 s88, s88, s3'); a('s_lshl_b32 s88, s88, 5')
        a(f's_add_u32 s88, s88, {DBGW + 0x20000}')
        a(f'v_mov_b32 v{V_A}, 0')
        for i in range(6): a(f'v_mov_b32 v{T+i}, v{246+i}')
        a('s_mov_b64 exec, 1')
        a(f'buffer_store_dwordx4 {vr(T,4)}, v{V_A}, s[40:43], s88 offen')
        a(f'buffer_store_dwordx2 {vr(T+4,2)}, v{V_A}, s[40:43], s88 offen offset:16')
        a('s_mov_b64 exec, -1')
    a('s_branch k2_edge_done2')
    a.label('k2_edge_done')
    tail_loads_ht(a)
    tail_loads_wh(a)
    a.label('k2_edge_done2')
    wstamp(a, 4, dbg)
    tail_loads_m(a)
    wstamp(a, 5, dbg)
    a('s_waitcnt vmcnt(32) lgkmcnt(0)')
    wstamp(a, 6, dbg)
    a('s_barrier')
    wstamp(a, 7, dbg)
    stamp(a, 4, dbg)
    for k in range(1, 4):
        a(f's_mul_i32 s10, s77, {CW[k]}')
        a('s_lshr_b32 s10, s10, 6')
        a(f's_mul_i32 s11, s77, {CW[k+1]}')
        a('s_lshr_b32 s11, s11, 6')
        a('s_mov_b32 s12, 0'); a('s_mov_b32 s13, s72')
        for j in range(1, 5):
            a(f's_cmp_ge_u32 s10, s{72+j}')
            a(f's_cselect_b32 s12, {j}, s12')
            a(f's_cselect_b32 s13, s{72+j}, s13')
        a('s_cmp_lt_u32 s10, s11')
        a('s_cselect_b32 s12, s12, 15')
        a('s_cmp_gt_u32 s10, s13')
        a(f's_cselect_b32 s{6+k}, s12, 15')
    a('v_lshlrev_b32 v176, 3, v0')
    for k in range(1, 4):
        a(f's_cmp_eq_u32 s{6+k}, 15')
        a(f's_cbranch_scc1 k2_mg{k}')
        a(f's_lshl_b32 s11, s{6+k}, 12')
        a(f's_add_u32 s11, s11, {MACC}')
        a('v_add_u32 v177, s11, v176')
        a(f'v_add_u32 v178, {SIDE + (k-1)*4096}, v176')
        a('ds_read_b64 v[180:181], v177')
        a('ds_read_b64 v[182:183], v178')
        a('s_waitcnt lgkmcnt(0)')
        for j in range(2):
            a(f'v_lshlrev_b32 v184, 16, v{180+j}'); a(f'v_lshlrev_b32 v185, 16, v{182+j}'); a('v_add_f32 v184, v184, v185')
            a(f'v_and_b32 v186, 0xffff0000, v{180+j}'); a(f'v_and_b32 v187, 0xffff0000, v{182+j}'); a('v_add_f32 v186, v186, v187')
            a(f'v_cvt_pk_bf16_f32 v{180+j}, v184, v186')
        a('ds_write_b64 v177, v[180:181]')
        a.label(f'k2_mg{k}')
    for k in range(5):
        a(f's_cmp_eq_u32 s{CP+k}, 0')
        a(f's_cbranch_scc0 k2_nz{k}')
        a(f'v_add_u32 v177, {MACC + k*4096}, v176')
        a(f'v_mov_b32 v180, 0'); a('v_mov_b32 v181, 0')
        a('ds_write_b64 v177, v[180:181]')
        a.label(f'k2_nz{k}')
    a('s_cmp_ge_u32 s3, 2')
    a('s_cbranch_scc1 k2_mgdone')
    a('v_cmp_gt_u32 vcc, 120, v0')
    a('s_and_saveexec_b64 s[90:91], vcc')
    a('v_mul_u32_u24 v177, 2731, v0')
    a('v_lshrrev_b32 v177, 16, v177')
    a('v_mul_u32_u24 v178, 24, v177')
    a('v_sub_u32 v178, v0, v178')
    a('v_lshlrev_b32 v178, 2, v178')
    a('v_mul_u32_u24 v179, 192, v177')
    a('v_add_u32 v179, v179, v178')
    a(f'v_add_u32 v179, {PBO}, v179')
    a('ds_read_b32 v180, v179')
    a('ds_read_b32 v181, v179 offset:96')
    a('v_lshlrev_b32 v182, 2, v0')
    a(f'v_add_u32 v182, {PACC}, v182')
    a('ds_read_b32 v183, v182')
    a('v_lshlrev_b32 v184, 2, v177')
    a(f'v_add_u32 v184, {CNT}, v184')
    a('ds_read_b32 v184, v184')
    a(f'v_add_u32 v179, {PBS}, v178')
    for k in range(3):
        a(f'ds_read_b32 v{185+2*k}, v179 offset:{k*192}')
        a(f'ds_read_b32 v{186+2*k}, v179 offset:{k*192+96}')
    a('s_waitcnt lgkmcnt(0)')
    a('v_add_f32 v180, v180, v181')
    a('v_cmp_ne_u32 vcc, 0, v184')
    a('v_cndmask_b32 v180, 0, v180, vcc')
    a('v_add_f32 v183, v183, v180')
    for k in range(3):
        a(f'v_add_f32 v{185+2*k}, v{185+2*k}, v{186+2*k}')
        a(f'v_cmp_eq_u32 vcc, s{7+k}, v177')
        a(f'v_cndmask_b32 v{185+2*k}, 0, v{185+2*k}, vcc')
        a(f'v_add_f32 v183, v183, v{185+2*k}')
    a('ds_write_b32 v182, v183')
    a('s_mov_b64 exec, s[90:91]')
    a.label('k2_mgdone')
    a('s_or_b32 s10, s66, s85')
    a('s_cmp_eq_u32 s10, 0')
    a('s_cbranch_scc1 k2_tail')
    a('s_waitcnt lgkmcnt(0)')
    a('s_barrier')
    a('v_lshlrev_b32 v176, 2, v0')
    a(f'v_add_u32 v177, {MACC}, v176')
    a('v_lshlrev_b32 v178, 3, v0')
    a(f's_mul_i32 s10, s2, 40960')
    a(f's_add_u32 s10, s10, {G32}')
    a('s_mov_b32 s11, 0')
    a.label('k2_sp_loop')
    a('ds_read_b32 v180, v177')
    a('v_mov_b32 v182, 0'); a('v_mov_b32 v183, 0')
    a('s_cmp_eq_u32 s27, 0')
    a('s_cbranch_scc1 k2_sp_first')
    a('buffer_load_dwordx2 v[182:183], v178, s[40:43], s10 offen sc0 sc1')
    a.label('k2_sp_first')
    a('s_waitcnt vmcnt(0) lgkmcnt(0)')
    a('v_lshlrev_b32 v184, 16, v180')
    a('v_and_b32 v185, 0xffff0000, v180')
    a('v_add_f32 v182, v182, v184')
    a('v_add_f32 v183, v183, v185')
    a('buffer_store_dwordx2 v[182:183], v178, s[40:43], s10 offen sc0 sc1')
    a('v_add_u32 v177, 2048, v177')
    a('s_add_u32 s10, s10, 4096')
    a('s_add_u32 s11, s11, 1')
    a('s_cmp_lt_u32 s11, 10')
    a('s_cbranch_scc1 k2_sp_loop')
    a('s_mov_b32 s27, 1')
    a('s_cmp_eq_u32 s66, 1')
    a('s_cbranch_scc0 k2_nb1')
    a('s_add_u32 s67, s67, 12')
    a('s_cmp_lt_u32 s67, 250')
    a('s_cbranch_scc1 k2_batch_w')
    a('s_mov_b32 s66, 3')
    a.label('k2_nb1')
    a('s_cmp_eq_u32 s85, 0')
    a('s_cbranch_scc1 k2_tail_rare')
    a('s_cmp_eq_u32 s66, 2')
    a('s_cbranch_scc1 k2_ovf_more')
    a('s_mov_b32 s66, 2')
    a('s_mov_b32 s67, -1')
    a('s_branch k2_ovf_next')
    a.label('k2_ovf_more')
    a('s_add_u32 s21, s21o, 160'.replace('s21o', 's31'))
    a('s_mov_b32 s31, s21')
    a('s_cmp_lt_u32 s21, s97')
    a('s_cbranch_scc1 k2_batch_w')
    a.label('k2_ovf_next')
    a('s_add_u32 s67, s67, 1')
    a('s_cmp_ge_u32 s67, 250')
    a('s_cbranch_scc1 k2_tail_rare')
    a('s_lshl_b32 s88, s67, 2')
    a(f's_add_u32 s88, s88, {OVFC}')
    a('s_load_dword s97, s[36:37], s88')
    a('s_waitcnt lgkmcnt(0)')
    a('s_cmp_eq_u32 s97, 0')
    a('s_cbranch_scc1 k2_ovf_next')
    a('s_mov_b32 s21, 0'); a('s_mov_b32 s31, 0')
    a.label('k2_batch_w')
    a('s_waitcnt vmcnt(0) lgkmcnt(0)')
    a('s_barrier')
    a('s_branch k2_batch')
    a.label('k2_tail_rare')
    a('s_waitcnt vmcnt(0) lgkmcnt(0)')
    a('v_lshlrev_b32 v176, 2, v0')
    a(f'v_add_u32 v177, {MACC}, v176')
    a('v_lshlrev_b32 v178, 3, v0')
    a(f's_mul_i32 s10, s2, 40960')
    a(f's_add_u32 s10, s10, {G32}')
    a('s_mov_b32 s11, 0')
    a.label('k2_cv_loop')
    a('buffer_load_dwordx2 v[182:183], v178, s[40:43], s10 offen sc0 sc1')
    a('s_waitcnt vmcnt(0)')
    a('v_cvt_pk_bf16_f32 v180, v182, v183')
    a('ds_write_b32 v177, v180')
    a('v_add_u32 v177, 2048, v177')
    a('s_add_u32 s10, s10, 4096')
    a('s_add_u32 s11, s11, 1')
    a('s_cmp_lt_u32 s11, 10')
    a('s_cbranch_scc1 k2_cv_loop')
    a.label('k2_tail')
    a('v_and_b32 v13, 15, v1')
    a('v_lshrrev_b32 v14, 4, v1')
    a('s_mul_i32 s88, s2, 40')
    a('v_lshlrev_b32 v15, 2, v14')
    a('v_add_u32 v15, s88, v15')
    a('v_lshlrev_b32 v15, 9, v15')
    a('v_lshl_add_u32 v15, v13, 2, v15')
    a('s_lshl_b32 s88, s3, 6')
    a('v_add_u32 v15, s88, v15')
    HR = 200
    for rb in range(3):
        for r in range(4):
            off = (16 * rb + r) * 512
            a(f's_mov_b32 s89, {off}')
            a(f'buffer_load_dword v{HR+4*rb+r}, v15, s[56:59], s89 offen')
    stamp(a, 5, dbg)
    TA = 176
    FR = [212, 224]
    a('v_xor_b32 v11, v14, v13')
    a('v_lshlrev_b32 v11, 4, v11')
    for rb in range(3):
        a(f'v_add_u32 v8, {16*rb}, v13')
        a('v_mul_u32_u24 v9, 43, v8')
        a('v_lshrrev_b32 v9, 8, v9')
        a('v_mul_u32_u24 v10, 6, v9')
        a('v_sub_u32 v10, v8, v10')
        a('v_add_u32 v12, 1, v9')
        a('v_lshrrev_b32 v12, 1, v12')
        a('v_lshlrev_b32 v12, 8, v12')
        a('v_lshl_add_u32 v9, v9, 13, v12')
        a('v_lshl_add_u32 v9, v10, 9, v9')
        a(f'v_add_u32 v{2+rb}, v9, v11')
    for ksp in range(8):
        off = (256 if ksp >= 4 else 0)
        fr = FR[ksp % 2]
        for rb in range(3):
            a(f'v_xor_b32 v12, {(4*ksp % 16)*16}, v{2+rb}')
            a(f'ds_read_b128 {vr(fr+4*rb,4)}, v12 offset:{off}')
        a(f's_waitcnt vmcnt({28 + 14 - 2*ksp}) lgkmcnt(0)')
        for cb in range(2):
            wreg = vr(WH + 4 * (2 * ksp + cb), 4)
            for rb in range(3):
                d = vr(TA + 8 * rb + 4 * cb, 4)
                c = '0' if ksp == 0 else d
                a(f'v_mfma_f32_16x16x32_bf16 {d}, {vr(fr+4*rb,4)}, {wreg}, {c}')
    a('v_lshl_add_u32 v11, v13, 9, v11')
    a(f'v_add_u32 v11, {MACC}, v11')
    a('s_waitcnt lgkmcnt(0)')
    a('s_barrier')
    for ksp in range(8):
        a(f'v_xor_b32 v12, {(4*ksp % 16)*16}, v11')
        off = (256 if ksp >= 4 else 0)
        fr = FR[ksp % 2]
        for rb in range(3):
            a(f'ds_read_b128 {vr(fr+4*rb,4)}, v12 offset:{off + rb*8192}')
        a(f's_waitcnt vmcnt({12 + 14 - 2*ksp}) lgkmcnt(0)')
        for cb in range(2):
            wreg = vr(WM + 4 * (2 * ksp + cb), 4)
            for rb in range(3):
                d = vr(TA + 8 * rb + 4 * cb, 4)
                a(f'v_mfma_f32_16x16x32_bf16 {d}, {vr(fr+4*rb,4)}, {wreg}, {d}')
    stamp(a, 6, dbg)
    a('s_waitcnt vmcnt(0)')
    for rb in range(3):
        if rb == 2:
            a('s_mov_b32 exec_hi, 0')
        for r in range(4):
            x0, x1 = TA + 8 * rb + r, TA + 8 * rb + 4 + r
            for k, x in enumerate((x0, x1)):
                t = 8 + k
                a(f'v_mul_f32 v{t}, s92, v{x}')
                a(f'v_exp_f32 v{t}, v{t}')
                a(f'v_add_f32 v{t}, 1.0, v{t}')
                a(f'v_rcp_f32 v{t}, v{t}')
                a(f'v_mul_f32 v{x}, v{x}, v{t}')
            h = HR + 4 * rb + r
            a(f'v_lshlrev_b32 v10, 16, v{h}')
            a(f'v_and_b32 v11, 0xffff0000, v{h}')
            a(f'v_add_f32 v{x0}, v{x0}, v10')
            a(f'v_add_f32 v{x1}, v{x1}, v11')
            a(f'v_cvt_pk_bf16_f32 v{h}, v{x0}, v{x1}')
            a(f's_mov_b32 s89, {(16 * rb + r) * 512}')
            a(f'buffer_store_dword v{h}, v15, s[60:63], s89 offen')
    a('s_mov_b64 exec, -1')
    stamp(a, 7, dbg)
    stamp(a, 9, dbg, 252, 's_memtime')
    a('s_cmp_ge_u32 s3, 2')
    a('s_cbranch_scc1 k2_done')
    a('v_cmp_gt_u32 vcc, 120, v0')
    a('s_and_saveexec_b64 s[90:91], vcc')
    a('s_cbranch_execz k2_done')
    a('v_mul_u32_u24 v16, 21846, v0')
    a('v_lshrrev_b32 v16, 16, v16')
    a('v_mul_u32_u24 v17, 3, v16')
    a('v_sub_u32 v17, v0, v17')
    a('v_lshrrev_b32 v18, 3, v16')
    a('v_mul_u32_u24 v18, 24, v18')
    a('v_and_b32 v19, 1, v16')
    a('v_mul_u32_u24 v19, 12, v19')
    a('v_add_u32 v18, v18, v19')
    a('v_bfe_u32 v19, v16, 1, 2')
    a('v_mul_u32_u24 v19, 3, v19')
    a('v_add3_u32 v18, v18, v19, v17')
    a('v_lshlrev_b32 v18, 2, v18')
    a(f'v_add_u32 v18, {PACC}, v18')
    a('ds_read_b32 v16, v18')
    a('s_mul_i32 s88, s2, 240')
    a('v_lshlrev_b32 v13, 1, v0')
    a('buffer_load_ushort v20, v13, s[52:55], s88 offen')
    a('s_waitcnt vmcnt(0) lgkmcnt(0)')
    a('v_lshlrev_b32 v20, 16, v20')
    a('v_add_f32 v16, v16, v20')
    a(f'v_cvt_pk_bf16_f32 v16, v16, v{V_Z}')
    a('s_add_u32 s88, s88, 5120000')
    a('buffer_store_short v16, v13, s[60:63], s88 offen')
    a.label('k2_done')
    a('s_endpgm')
    for x in DEFER: a(x)
    DEFER.clear()

if __name__ == '__main__':
    from gen import build, gen_k1, K1_LDS
    dbg = len(sys.argv) > 2 and sys.argv[2] == 'dbg'
    ks = [('k1_prep_kernel', 256, 256, K1_LDS, lambda a: gen_k1(a, dbg), 256),
          ('k2_main_kernel', T_, NW * 64, K2_LDS, lambda a: gen_k2(a, dbg), 256)]
    build(ks, sys.argv[1])
    print('K2_LDS', K2_LDS, file=sys.stderr)
```

```python
import struct, sys
from asmdsl import Asm
from layout import *

def f32bits(x): return struct.unpack('<I', struct.pack('<f', x))[0]
NL2E = f32bits(NLOG2E)

def srd(a, d, lo, hi, off, size):
    if off:
        a(f's_add_u32 s{d}, s{lo}, {off}')
        a(f's_addc_u32 s{d+1}, s{hi}, 0')
    else:
        a(f's_mov_b32 s{d}, s{lo}')
        a(f's_mov_b32 s{d+1}, s{hi}')
    a(f's_mov_b32 s{d+2}, {size}')
    a(f's_mov_b32 s{d+3}, 0x20000')

def load_kernargs(a):
    a('s_load_dwordx16 s[16:31], s[0:1], 0')
    a('s_load_dwordx4 s[32:35], s[0:1], 64')
    a('s_load_dwordx2 s[36:37], s[0:1], 80')

K1_H = 0
K1_W = 81920
K1_IMG = 147456
K1_OVC = K1_IMG + 16000
K1_LDS = 163840

import os
FL1 = set(os.environ.get('FL', '').split(','))
def stamp1(a, idx, dbg):
    if not dbg: return
    a(f's_cmp_lg_u32 s3, 0')
    a(f's_cbranch_scc1 k1st_skip{idx}')
    a('s_memrealtime s[94:95]')
    a('s_waitcnt lgkmcnt(0)')
    a('v_mov_b32 v250, s94')
    a('v_mov_b32 v251, s95')
    a('s_lshl_b32 s96, s2, 7')
    a(f's_add_u32 s96, s96, {DBGW + 0x10000 + idx*8}')
    a('v_mov_b32 v252, 0')
    a('s_mov_b64 s[98:99], exec')
    a('s_mov_b64 exec, 1')
    a('buffer_store_dwordx2 v[250:251], v252, s[60:63], s96 offen')
    a('s_mov_b64 exec, s[98:99]')
    a.label(f'k1st_skip{idx}')

def k1_partition(a):
    a('s_cmp_ge_u32 s2, 250')
    a('s_cbranch_scc1 k1_nopart')
    a('s_cmp_ge_u32 s7, 63')
    a('s_cbranch_scc1 k1_pw0')
    a('s_waitcnt vmcnt(36)')
    a('s_branch k1_pw1')
    a.label('k1_pw0')
    a('s_waitcnt vmcnt(0)')
    a.label('k1_pw1')
    a('v_mov_b32 v8, 1')
    for i in range(3):
        d, s_ = 10 + i, 13 + i
        a(f'v_mul_u32_u24 v{46+i}, 52429, v{d}')
        a(f'v_lshrrev_b32 v{46+i}, 21, v{46+i}')
        a(f'v_mul_u32_u24 v5, 40, v{46+i}')
        a(f'v_sub_u32 v5, v{d}, v5')
        a(f'v_lshl_or_b32 v{50+i}, v5, 14, v{s_}')
        a(f'v_add_u32 v7, {i*256}, v0')
        a(f'v_lshl_or_b32 v{50+i}, v7, 20, v{50+i}')
        a(f'v_lshlrev_b32 v{54+i}, 6, v{46+i}')
        a(f'v_add_u32 v{54+i}, {K1_IMG}, v{54+i}')
        if i == 2:
            a('v_cmp_gt_u32 vcc, 128, v0')
            a('s_mov_b64 s[38:39], vcc')
            a('s_mov_b64 exec, vcc')
        a(f'ds_add_rtn_u32 v{58+i}, v{54+i}, v8')
    a('s_mov_b64 exec, -1')
    a('s_waitcnt lgkmcnt(0)')
    for i in range(3):
        if i == 2: a('s_mov_b64 exec, s[38:39]')
        a(f'v_cmp_gt_u32 vcc, {CAP}, v{58+i}')
        a(f'v_lshl_add_u32 v7, v{58+i}, 2, v{54+i}')
        a('s_and_saveexec_b64 s[14:15], vcc')
        a(f'ds_write_b32 v7, v{50+i} offset:4')
        a('s_andn2_b64 exec, s[14:15], exec')
        a(f's_cbranch_execz k1_noovf{i}')
        a(f'v_mov_b32 v7, {K1_OVC}')
        a('ds_add_rtn_u32 v9, v7, v8')
        a('s_waitcnt lgkmcnt(0)')
        a(f'v_mov_b32 v6, v{50+i}')
        a(f'v_mov_b32 v7, v{46+i}')
        a('s_mul_i32 s12, s2, 5120')
        a(f's_add_u32 s12, s12, {OVF}')
        a('v_lshlrev_b32 v9, 3, v9')
        a('buffer_store_dwordx2 v[6:7], v9, s[60:63], s12 offen sc0 sc1')
        a.label(f'k1_noovf{i}')
        a('s_mov_b64 exec, s[14:15]')
    a('s_mov_b64 exec, -1')
    a.label('k1_nopart')

def k1_image(a):
    a('s_cmp_ge_u32 s2, 250')
    a('s_cbranch_scc1 k1_noimg')
    a('v_lshlrev_b32 v4, 4, v0')
    a(f'v_add_u32 v4, {K1_IMG}, v4')
    for i in range(4):
        a(f'ds_read_b128 v[{16+4*i}:{19+4*i}], v4 offset:{i*4096}')
    a(f'v_mov_b32 v6, {K1_OVC}')
    a('ds_read_b32 v8, v6')
    a('v_lshrrev_b32 v5, 2, v0')
    a('v_mul_u32_u24 v5, 16000, v5')
    a('v_and_b32 v6, 3, v0')
    a('v_lshl_add_u32 v5, v6, 4, v5')
    a('s_lshl_b32 s38, s2, 6')
    a(f's_add_u32 s38, s38, {CELL}')
    a('s_mov_b32 s39, 232')
    a('s_waitcnt lgkmcnt(0)')
    a('v_and_b32 v6, 3, v0')
    a('v_lshlrev_b32 v6, 2, v6')
    for i in range(4):
        a(f'v_mov_b32_dpp v7, v{16+4*i} quad_perm:[0,0,0,0] row_mask:0xf bank_mask:0xf')
        a('v_cmp_ge_u32 vcc, v7, v6') if 'fullcell' not in FL1 else a('v_cmp_ge_u32 vcc, v6, v6')
        if i == 3:
            a('v_cmp_gt_u32 s[14:15], s39, v0')
            a('s_and_b64 vcc, vcc, s[14:15]')
        a('s_and_saveexec_b64 s[14:15], vcc')
        a(f'buffer_store_dwordx4 v[{16+4*i}:{19+4*i}], v5, s[60:63], s38 offen sc0 sc1')
        a('s_mov_b64 exec, s[14:15]')
        if i < 3:
            a(f'v_add_u32 v5, {64*16000}, v5')
    a('v_cmp_eq_u32 vcc, 0, v0')
    a('s_and_saveexec_b64 s[14:15], vcc')
    a('s_lshl_b32 s38, s2, 2')
    a(f's_add_u32 s38, s38, {OVFC}')
    a('v_mov_b32 v6, 0')
    a('buffer_store_dword v8, v6, s[60:63], s38 offen sc0 sc1')
    a('s_mov_b64 exec, s[14:15]')
    a.label('k1_noimg')

def gen_k1(a, dbg=False):
    a.label('k1_prep_kernel')
    a('s_cmp_ge_u32 s2, 256')
    a('s_cbranch_scc1 k1_done')
    load_kernargs(a)
    a('v_and_b32 v1, 63, v0')
    a('v_lshrrev_b32 v2, 6, v0')
    a('v_readfirstlane_b32 s3, v2')
    a('s_and_b32 s4, s2, 7')
    a('s_lshr_b32 s5, s2, 3')
    a('s_and_b32 s6, s5, 3')
    a('s_lshr_b32 s5, s5, 2')
    a('s_lshl_b32 s5, s5, 3')
    a('s_add_u32 s7, s4, s5')
    a('s_waitcnt lgkmcnt(0)')
    srd(a, 40, 24, 25, 0, E * 4)
    srd(a, 44, 22, 23, 0, E * 4)
    srd(a, 48, 16, 17, 0, N * 512)
    srd(a, 52, 26, 27, 0, 529 * 512)
    srd(a, 56, 30, 31, 0, 512 * 512)
    srd(a, 60, 36, 37, 0, 0x2000000)
    srd(a, 64, 36, 37, BT, N * 512)
    stamp1(a, 0, dbg)
    a('s_mul_i32 s8, s2, 2560')
    a('v_lshlrev_b32 v3, 2, v0')
    a('s_cmp_ge_u32 s2, 250')
    a('s_cbranch_scc1 k1_nopl')
    for i in range(3):
        a(f'buffer_load_dword v{10+i}, v3, s[40:43], s8 offen offset:{i*1024}')
        a(f'buffer_load_dword v{13+i}, v3, s[44:47], s8 offen offset:{i*1024}')
    a.label('k1_nopl')
    a('s_cmp_eq_u32 s3, 1')
    a('s_cbranch_scc0 k1_nopk1')
    a('s_lshr_b32 s9, s2, 5')
    a('s_lshr_b32 s10, s2, 1')
    a('s_and_b32 s10, s10, 15')
    a('s_and_b32 s11, s2, 1')
    a('s_lshl_b32 s9, s9, 5')
    a('s_add_u32 s9, s9, s11')
    a('v_and_b32 v4, 15, v1')
    a('v_lshrrev_b32 v5, 4, v1')
    a('v_lshlrev_b32 v4, 1, v4')
    a('v_add_u32 v4, s9, v4')
    a('v_lshlrev_b32 v4, 1, v4')
    a('s_cmp_lt_u32 s10, 8')
    a('s_cbranch_scc0 k1_pk_m')
    a('s_lshl_b32 s12, s10, 5')
    a('v_lshlrev_b32 v5, 3, v5')
    a('v_add_u32 v5, s12, v5')
    a('v_lshl_add_u32 v4, v5, 9, v4')
    for j in range(8):
        a(f'buffer_load_ushort v{16+j}, v4, s[56:59], 0 offen offset:{j*512}')
    a('s_branch k1_nopk')
    a.label('k1_pk_m')
    a('s_sub_u32 s12, s10, 8')
    a('s_lshl_b32 s12, s12, 4')
    a('v_lshlrev_b32 v5, 2, v5')
    a('v_add_u32 v5, s12, v5')
    a('v_and_b32 v6, 31, v5')
    a('v_and_b32 v5, 0xffe0, v5')
    a('v_lshl_add_u32 v5, v5, 1, v6')
    a('v_add_u32 v5, 256, v5')
    a('v_lshl_add_u32 v4, v5, 9, v4')
    a('v_add_u32 v6, 16384, v4')
    for j in range(8):
        vb = 4 if j % 2 == 0 else 6
        a(f'buffer_load_ushort v{16+j}, v{vb}, s[56:59], 0 offen offset:{(j//2)*512}')
    a('s_branch k1_nopk')
    a.label('k1_nopk1')
    a('s_cmp_eq_u32 s3, 2')
    a('s_cbranch_scc0 k1_nopk')
    a('s_cmp_lt_u32 s2, 12')
    a('s_cbranch_scc0 k1_nopk')
    a('s_cmp_lt_u32 s2, 8')
    a('s_cbranch_scc0 k1_pk_wd')
    a('v_and_b32 v4, 31, v1')
    a('v_lshrrev_b32 v5, 5, v1')
    a('s_lshl_b32 s9, s2, 5')
    a('v_add_u32 v4, s9, v4')
    a('v_lshlrev_b32 v4, 1, v4')
    a('v_lshlrev_b32 v5, 3, v5')
    a('v_add_u32 v5, 513, v5')
    a('v_lshl_add_u32 v4, v5, 9, v4')
    for j in range(8):
        a(f'buffer_load_ushort v{16+j}, v4, s[52:55], 0 offen offset:{j*512}')
    a('s_branch k1_nopk')
    a.label('k1_pk_wd')
    a('s_sub_u32 s9, s2, 8')
    a('s_lshl_b32 s9, s9, 6')
    a('v_add_u32 v4, s9, v1')
    a('v_lshlrev_b32 v4, 1, v4')
    a('v_add_u32 v4, 0x40000, v4')
    a('buffer_load_ushort v16, v4, s[52:55], 0 offen')
    a.label('k1_nopk')
    a('s_cmp_ge_u32 s7, 63')
    a('s_cbranch_scc1 k1_nodma')
    a('v_lshrrev_b32 v4, 4, v1')
    a('v_and_b32 v5, 15, v1')
    a('v_lshlrev_b32 v6, 2, v4')
    a('v_xor_b32 v5, v5, v6')
    a('v_lshlrev_b32 v5, 4, v5')
    a('v_lshl_add_u32 v30, v4, 9, v5')
    a('v_lshrrev_b32 v4, 3, v1')
    a('v_and_b32 v5, 7, v1')
    a('v_lshrrev_b32 v6, 1, v4')
    a('v_xor_b32 v5, v5, v6')
    a('v_lshlrev_b32 v5, 4, v5')
    a('v_lshl_add_u32 v31, v4, 9, v5')
    a('v_xor_b32 v32, 64, v31')
    a('s_lshr_b32 s9, s6, 1')
    a('s_lshl_b32 s9, s9, 17')
    a('s_and_b32 s10, s6, 1')
    a('s_lshl_b32 s10, s10, 8')
    a('s_add_u32 s9, s9, s10')
    a('s_lshl_b32 s10, s3, 13')
    a('s_add_u32 s9, s9, s10')
    a('s_lshl_b32 s10, s3, 12')
    a(f's_add_u32 s10, s10, {K1_W}')
    a('s_mul_i32 s11, s7, 160')
    a('s_mul_i32 s12, s3, 40')
    a('s_add_u32 s11, s11, s12')
    a('s_lshl_b32 s11, s11, 9')
    a('s_mul_i32 s12, s3, 5120')
    a('s_and_b32 s13, s3, 1')
    a('s_lshl_b32 s13, s13, 6')
    a('v_xor_b32 v33, s13, v31')
    a('v_xor_b32 v34, 64, v33')
    for kc in range(4):
        for q in range(4):
            a(f's_add_u32 s14, s9, {kc*32768 + q*2048}')
            a(f's_add_u32 m0, s10, {kc*16384 + q*1024}')
            a(f'buffer_load_dwordx4 v30, s[52:55], s14 offen lds')
        for i in range(5):
            a(f's_add_u32 s14, s11, {kc*128 + i*4096}')
            a(f's_add_u32 m0, s12, {K1_H + kc*20480 + i*1024}')
            a(f'buffer_load_dwordx4 v{33 + (i%2)}, s[48:51], s14 offen lds')
    a.label('k1_nodma')
    a('v_lshlrev_b32 v4, 6, v0')
    a(f'v_add_u32 v4, {K1_IMG}, v4')
    a('v_mov_b32 v5, 0')
    a('v_cmp_eq_u32 vcc, 250, v0')
    a(f'v_mov_b32 v6, {K1_OVC}')
    a('v_cndmask_b32 v4, v4, v6, vcc')
    a('v_cmp_gt_u32 vcc, 251, v0')
    a('s_and_saveexec_b64 s[14:15], vcc')
    a('ds_write_b32 v4, v5')
    a('s_mov_b64 exec, s[14:15]')
    if 'late' not in FL1:
        a('s_waitcnt lgkmcnt(0)')
        a('s_barrier')
        k1_partition(a)
    a('s_cmp_eq_u32 s3, 1')
    a('s_cbranch_scc0 k1_nops1')
    a('s_cmp_ge_u32 s7, 63')
    a('s_cbranch_scc1 k1_w1a')
    a('s_waitcnt vmcnt(36)')
    a('s_branch k1_w1b')
    a.label('k1_w1a')
    a('s_waitcnt vmcnt(0)')
    a.label('k1_w1b')
    a('s_lshl_b32 s38, s2, 10')
    a(f's_add_u32 s38, s38, {WHP}')
    a('v_lshlrev_b32 v4, 4, v1')
    for j in range(4):
        a(f'v_lshl_or_b32 v{16+j}, v{17+2*j}, 16, v{16+2*j}')
    a('buffer_store_dwordx4 v[16:19], v4, s[60:63], s38 offen sc0 sc1')
    a('s_branch k1_nops')
    a.label('k1_nops1')
    a('s_cmp_eq_u32 s3, 2')
    a('s_cbranch_scc0 k1_nops')
    a('s_cmp_lt_u32 s2, 12')
    a('s_cbranch_scc0 k1_nops')
    a('s_waitcnt vmcnt(36)')
    a(f's_mov_b32 s38, {NL2E:#x}')
    a('s_cmp_lt_u32 s2, 8')
    a('s_cbranch_scc0 k1_ps_wd')
    for j in range(8):
        a(f'v_lshlrev_b32 v{16+j}, 16, v{16+j}')
        a(f'v_mul_f32 v{16+j}, s38, v{16+j}')
    for j in range(4):
        a(f'v_cvt_pk_bf16_f32 v{16+j}, v{16+2*j}, v{17+2*j}')
    a('s_lshl_b32 s39, s2, 10')
    a(f's_add_u32 s39, s39, {W3P}')
    a('v_lshlrev_b32 v4, 4, v1')
    a('buffer_store_dwordx4 v[16:19], v4, s[60:63], s39 offen sc0 sc1')
    a('s_branch k1_nops')
    a.label('k1_ps_wd')
    a('v_lshlrev_b32 v16, 16, v16')
    a('v_mul_f32 v16, s38, v16')
    a('v_mov_b32 v17, 0')
    a('v_cvt_pk_bf16_f32 v16, v16, v17')
    a('v_mov_b32 v18, 0')
    a('v_mov_b32 v19, 0')
    a('s_sub_u32 s39, s2, 8')
    a('s_lshl_b32 s39, s39, 10')
    a(f's_add_u32 s39, s39, {WDP}')
    a('v_lshlrev_b32 v4, 4, v1')
    a('buffer_store_dwordx4 v[16:19], v4, s[60:63], s39 offen sc0 sc1')
    a.label('k1_nops')
    stamp1(a, 1, dbg)
    a('s_waitcnt lgkmcnt(0)')
    a('s_cmp_ge_u32 s7, 63')
    a('s_cbranch_scc1 k1_b1a')
    a('s_waitcnt vmcnt(27)')
    a.label('k1_b1a')
    a('s_barrier')
    if 'late' not in FL1:
        k1_image(a)
        a('s_cmp_ge_u32 s7, 63')
        a('s_cbranch_scc1 k1_done')
    else:
        a('s_cmp_ge_u32 s7, 63')
        a('s_cbranch_scc1 k1_part')
    a('v_and_b32 v4, 31, v1')
    a('v_lshrrev_b32 v5, 5, v1')
    a('s_cmp_lt_u32 s6, 2')
    a('s_cbranch_scc0 k1_rho_id')
    a('v_lshrrev_b32 v6, 4, v4')
    a('v_lshlrev_b32 v6, 4, v6')
    a('v_bfe_u32 v7, v4, 2, 1')
    a('v_lshl_add_u32 v6, v7, 3, v6')
    a('v_bfe_u32 v7, v4, 3, 1')
    a('v_lshl_add_u32 v6, v7, 2, v6')
    a('v_and_b32 v7, 3, v4')
    a('v_add_u32 v4, v6, v7')
    a.label('k1_rho_id')
    a('v_bfe_u32 v6, v4, 1, 3')
    a('v_xor_b32 v6, v6, v5')
    a('v_lshlrev_b32 v6, 4, v6')
    a('v_lshl_add_u32 v40, v4, 7, v6')
    for j in range(1, 4):
        a(f'v_xor_b32 v{40+j}, {2*j*16}, v40')
    a('v_bfe_u32 v6, v1, 4, 1')
    a('v_bfe_u32 v7, v1, 2, 2')
    a('v_bfe_u32 v8, v1, 1, 1')
    a('v_lshl_add_u32 v8, v6, 1, v8')
    a('s_lshl_b32 s38, s3, 2')
    a('v_add_u32 v8, s38, v8')
    a('v_lshlrev_b32 v9, 2, v7')
    a('v_xor_b32 v8, v8, v9')
    a('v_lshlrev_b32 v8, 4, v8')
    a('v_lshl_add_u32 v9, v5, 3, v7')
    a('v_lshl_add_u32 v8, v9, 8, v8')
    a('v_and_b32 v9, 1, v1')
    a('v_lshl_add_u32 v8, v9, 3, v8')
    a(f'v_add_u32 v44, {K1_W}, v8')
    ACC = 64
    FR = [144, 168]
    def issue_reads(ks, fs):
        kc, j = ks // 4, ks % 4
        base = FR[fs]
        a(f'ds_read_b64_tr_b16 v[{base+20}:{base+21}], v44 offset:{ks*4096}')
        a(f'ds_read_b64_tr_b16 v[{base+22}:{base+23}], v44 offset:{ks*4096+1024}')
        for rb in range(5):
            off = (kc % 2) * 20480 + rb * 4096
            a(f'ds_read_b128 v[{base+4*rb}:{base+4*rb+3}], v{40+j} offset:{off}')
    for variant in ('A', 'B'):
        if variant == 'A':
            a('s_cmp_lt_u32 s6, 2')
            a('s_cbranch_scc0 k1_gemmB')
        else:
            a.label('k1_gemmB')
        for ks in range(16):
            kc = ks // 4
            fs = ks % 2
            if ks % 4 == 0:
                if kc > 0:
                    a(f's_waitcnt vmcnt({(3-kc)*9})')
                    a('s_barrier')
                if kc == 2:
                    for j in range(4): a(f'v_add_u32 v{40+j}, 40960, v{40+j}')
                issue_reads(ks, fs)
            if ks % 4 != 3:
                issue_reads(ks + 1, 1 - fs)
                a('s_waitcnt lgkmcnt(7)')
            else:
                a('s_waitcnt lgkmcnt(0)')
            base = FR[fs]
            for rb in range(5):
                d = f'v[{ACC+16*rb}:{ACC+16*rb+15}]'
                c = '0' if ks == 0 else d
                hf = f'v[{base+4*rb}:{base+4*rb+3}]'; wf = f'v[{base+20}:{base+23}]'
                if variant == 'A': a(f'v_mfma_f32_32x32x16_bf16 {d}, {hf}, {wf}, {c}')
                else: a(f'v_mfma_f32_32x32x16_bf16 {d}, {wf}, {hf}, {c}')
        stamp1(a, 3 if variant == 'A' else 4, dbg)
        a(f's_mov_b32 s38, {NL2E:#x}')
        a(f's_mov_b32 s39, {NL2E:#x}')
        if variant == 'A':
            a('v_and_b32 v4, 31, v1')
            a('v_lshrrev_b32 v5, 5, v1')
            a('s_and_b32 s8, s6, 1')
            a('s_lshl_b32 s8, s8, 7')
            a('s_lshl_b32 s9, s3, 5')
            a('s_add_u32 s8, s8, s9')
            a('v_add_u32 v4, s8, v4')
            a('v_lshlrev_b32 v4, 4, v4')
            a('v_lshl_add_u32 v4, v5, 12, v4')
            a('s_mul_i32 s8, s7, 81920')
            a(f's_add_u32 s8, s8, {AT}')
            for rb in range(5):
                for half in range(2):
                    r0 = ACC + 16 * rb + 8 * half
                    for p in range(4):
                        a(f'v_pk_mul_f32 v[{r0+2*p}:{r0+2*p+1}], v[{r0+2*p}:{r0+2*p+1}], s[38:39]')
                    t0 = 144 + 4 * ((2 * rb + half) % 4)
                    for p in range(4):
                        a(f'v_cvt_pk_bf16_f32 v{t0+p}, v{r0+2*p}, v{r0+2*p+1}')
                    a(f's_add_u32 s9, s8, {(4*rb + 2*half)*4096}')
                    a(f'buffer_store_dwordx4 v[{t0}:{t0+3}], v4, s[60:63], s9 offen sc0 sc1')
            if 'late' in FL1:
                stamp1(a, 5, dbg)
                a('s_branch k1_part')
            else:
                if dbg: a('s_waitcnt vmcnt(0)')
                stamp1(a, 5, dbg)
                a('s_endpgm')
        else:
            a('v_and_b32 v4, 31, v1')
            a('v_lshrrev_b32 v5, 5, v1')
            a('v_and_b32 v6, 15, v1')
            a('s_lshl_b32 s8, s3, 2')
            a('v_xor_b32 v6, s8, v6')
            a('v_lshlrev_b32 v6, 4, v6')
            a('v_lshl_add_u32 v6, v4, 8, v6')
            a('v_lshl_add_u32 v6, v5, 3, v6')
            for i in range(1, 4):
                a(f'v_xor_b32 v{6+i}, {i*16}, v6')
            for rb in range(5):
                for i in range(4):
                    r0 = ACC + 16 * rb + 4 * i
                    for p in range(2):
                        a(f'v_pk_mul_f32 v[{r0+2*p}:{r0+2*p+1}], v[{r0+2*p}:{r0+2*p+1}], s[38:39]')
                    t0 = 144 + 2 * ((4 * rb + i) % 8)
                    a(f'v_cvt_pk_bf16_f32 v{t0}, v{r0}, v{r0+1}')
                    a(f'v_cvt_pk_bf16_f32 v{t0+1}, v{r0+2}, v{r0+3}')
                    a(f'ds_write_b64 v{6+i}, v[{t0}:{t0+1}] offset:{rb*8192}')
            a('s_waitcnt lgkmcnt(0)')
            a('s_barrier')
            a('v_lshlrev_b32 v4, 4, v0')
            a('v_lshrrev_b32 v5, 4, v0')
            a('v_and_b32 v6, 15, v0')
            a('v_xor_b32 v6, v6, v5')
            a('v_lshlrev_b32 v6, 4, v6')
            a('v_lshl_add_u32 v6, v5, 9, v6')
            a('s_mul_i32 s8, s7, 81920')
            a('s_and_b32 s9, s6, 1')
            a('s_lshl_b32 s9, s9, 8')
            a('s_add_u32 s8, s8, s9')
            for i in range(10):
                a(f'ds_read_b128 v[{64+4*i}:{67+4*i}], v4 offset:{i*4096}')
            for i in range(10):
                a(f's_waitcnt lgkmcnt({9-i})')
                a(f's_add_u32 s9, s8, {i*8192}')
                a(f'buffer_store_dwordx4 v[{64+4*i}:{67+4*i}], v6, s[64:67], s9 offen sc0 sc1')
            if 'late' in FL1:
                stamp1(a, 6, dbg)
                a.label('k1_part')
                k1_partition(a)
                a('s_waitcnt lgkmcnt(0)')
                a('s_barrier')
                k1_image(a)
                if dbg: a('s_waitcnt vmcnt(0)')
                stamp1(a, 7, dbg)
                a('s_endpgm')
            else:
                if dbg: a('s_waitcnt vmcnt(0)')
                stamp1(a, 6, dbg)
                a('s_endpgm')
    a.label('k1_done')
    a('s_endpgm')

def kernel_desc(name, vgpr, sgpr=102, accum=None):
    if accum is None: accum = (vgpr + 3) // 4 * 4
    return f'''.amdhsa_kernel {name}
  .amdhsa_next_free_vgpr {vgpr}
  .amdhsa_next_free_sgpr {sgpr}
  .amdhsa_accum_offset {accum}
  .amdhsa_group_segment_fixed_size 0
  .amdhsa_kernarg_size 88
  .amdhsa_user_sgpr_count 2
  .amdhsa_user_sgpr_kernarg_segment_ptr 1
  .amdhsa_system_sgpr_workgroup_id_x 1
  .amdhsa_float_denorm_mode_32 3
  .amdhsa_float_denorm_mode_16_64 3
.end_amdhsa_kernel
'''

def build(kernels, out):
    hdr = ['; generated by dev/gen.py (hand-designed CDNA4 assembly, own generator)']
    for name, grid, block, lds, fn, vg in kernels:
        hdr.append(f'; @launch kernel={name} grid=({grid},1,1) block=({block},1,1) lds={lds}')
    txt = '\n'.join(hdr) + '\n.amdgcn_target "amdgcn-amd-amdhsa--gfx950"\n.text\n'
    seen = set()
    descs = ''
    for name, grid, block, lds, fn, vg in kernels:
        if name in seen: continue
        seen.add(name)
        a = Asm()
        fn(a)
        body = a.finalize()
        txt += f'.globl {name}\n.p2align 8\n.type {name},@function\n' + body + '\n'
        descs += kernel_desc(name, vg)
        print(name, 'lines', len(a.lines), 'nops', a.nnop, file=sys.stderr)
    txt += '.section .rodata,"a"\n.p2align 6\n' + descs.replace('.amdhsa_kernel', '.p2align 6\n.amdhsa_kernel', 100).replace('.end_.p2align 6\n', '.end_')
    open(out, 'w').write(txt)

if __name__ == '__main__':
    ks = [('k1_prep_kernel', 256, 256, K1_LDS, gen_k1, 256)]
    build(ks, sys.argv[1] if len(sys.argv) > 1 else 'k.s')
```

```python
import os, sys
from asmdsl import Asm
from layout import *
from gen import srd, load_kernargs, NL2E, f32bits
FL = set(os.environ.get('FL', '').split(','))
T_ = T
NW = 8
W_ = int(os.environ.get('TW', '23'))
CW = [0, W_, 2 * W_, 2 * W_ + (64 - 2 * W_) // 2, 64]
CAPS = 192
SC = 5 * CAPS + 32
STG = 0
STGW = 8 * 1040
EAP = STG + NW * STGW
JIT = EAP + NW * 1024
SRC = JIT + NW * 2048
W1 = SRC + SC * 4
XA = W1 + SC * 4
XB = XA + SC * 4
SV = XB + SC * 4
W0 = XA
ATL = (SV + SC + 255) // 256 * 256
MACC = ATL + 20480
SIDE = MACC + 40 * 512
PBO = SIDE + 3 * 4096
PBS = PBO + 5 * 2 * 96
PACC = PBS + 3 * 2 * 96
LUT = PACC + 480
CNT = LUT + 144
POST = CNT + 48
K2_LDS = POST + 320
HT = MACC
assert K2_LDS <= 163840, K2_LDS
NLN2 = f32bits(-0.6931471805599453)

V_LCS, V_LCL, V_LRD, V_RB, V_LCD, V_Z, V_LCE, V_LCA = 2, 3, 4, 5, 6, 7, 8, 9
V_A, V_B, V_C, V_D, V_AL = 10, 11, 12, 13, 14
V_E4 = 243
ACC, PRE, R, W3, WDA, SEL, L, OH, EAr, T, SRCr = 16, 80, 112, 144, 160, 176, 184, 192, 196, 200, 208
XY, GA, GB, GS, EID, V_WX, H1 = 216, 218, 219, 220, 221, 224, 228
V_E1 = 244
V_LUT0, V_LUT8 = 247, 248
V_HM = 245
V_PO0, V_PO1, V_EI = 240, 241, 242
def vr(b, n): return f'v[{b}:{b+n-1}]'
uid = [0]
DEFER = []
PROF = 'prof' in FL

def stamp(a, idx, dbg, vb=252, op='s_memrealtime'):
    if not dbg: return
    a(f's_cmp_lg_u32 s3, 0')
    a(f's_cbranch_scc1 st_skip{idx}')
    a(f'{op} s[98:99]')
    a('s_waitcnt lgkmcnt(0)')
    a(f'v_mov_b32 v{vb}, s98')
    a(f'v_mov_b32 v{vb+1}, s99')
    a('s_lshl_b32 s88, s2, 7')
    a(f's_add_u32 s88, s88, {DBGW + idx*8}')
    a(f'v_mov_b32 v{vb+2}, 0')
    a('s_mov_b64 s[98:99], exec')
    a('s_mov_b64 exec, 1')
    a(f'buffer_store_dwordx2 v[{vb}:{vb+1}], v{vb+2}, s[40:43], s88 offen')
    a('s_mov_b64 exec, s[98:99]')
    a.label(f'st_skip{idx}')
PTR = [16, 18, 32, 34, 64, 98]
def wstamp(a, i, dbg):
    if not (dbg and 'ws' in FL): return
    a('s_memrealtime s[98:99]')
    a('s_waitcnt lgkmcnt(0)')
    a('v_mov_b32 v252, s98'); a('v_mov_b32 v253, s99')
    a('s_lshl_b32 s88, s2, 3'); a('s_add_u32 s88, s88, s3'); a('s_lshl_b32 s88, s88, 6')
    a(f's_add_u32 s88, s88, {DBGW + 0x40000 + i*8}')
    a('v_mov_b32 v254, 0')
    a('s_mov_b64 exec, 1')
    a('buffer_store_dwordx2 v[252:253], v254, s[40:43], s88 offen')
    a('s_mov_b64 exec, -1')
def PT(a, i):
    if PROF: a(f's_memtime s[{PTR[i]}:{PTR[i]+1}]')

CP = 22
V_DESC = 246
V_D2 = 222
def build_desc(a):
    g, sub, go, ge, cp, t = 16, 17, 18, 19, 20, 21
    a(f'v_add_u32 v{g}, s28, v1')
    a(f'v_mov_b32 v{sub}, 0'); a(f'v_mov_b32 v{go}, s72'); a(f'v_mov_b32 v{ge}, s73'); a(f'v_mov_b32 v{cp}, s{CP}')
    for k in range(1, 5):
        a(f'v_cmp_le_u32 vcc, s{72+k}, v{g}')
        a(f'v_mov_b32 v{t}, {k}'); a(f'v_cndmask_b32 v{sub}, v{sub}, v{t}, vcc')
        a(f'v_mov_b32 v{t}, s{72+k}'); a(f'v_cndmask_b32 v{go}, v{go}, v{t}, vcc')
        a(f'v_mov_b32 v{t}, s{73+k}'); a(f'v_cndmask_b32 v{ge}, v{ge}, v{t}, vcc')
        a(f'v_mov_b32 v{t}, s{CP+k}'); a(f'v_cndmask_b32 v{cp}, v{cp}, v{t}, vcc')
    a(f'v_sub_u32 v{go}, v{g}, v{go}')
    a(f'v_lshlrev_b32 v{go}, 5, v{go}')
    a(f'v_sub_u32 v{cp}, v{cp}, v{go}')
    a(f'v_min_u32 v{cp}, 32, v{cp}')
    a(f'v_mul_u32_u24 v{t}, {CAPS}, v{sub}')
    a(f'v_add_u32 v{go}, v{go}, v{t}')
    a(f'v_min_u32 v{ge}, s79, v{ge}')
    a(f'v_add_u32 v{t}, 1, v{g}')
    a(f'v_cmp_ge_u32 vcc, v{t}, v{ge}')
    a(f'v_cndmask_b32 v{t}, 0, 1, vcc')
    a(f'v_lshl_or_b32 v{V_DESC}, v{cp}, 10, v{go}')
    a(f'v_lshl_or_b32 v{V_DESC}, v{sub}, 16, v{V_DESC}')
    a(f'v_lshl_or_b32 v{V_DESC}, v{t}, 19, v{V_DESC}')
    a(f'v_or_b32 v{V_DESC}, 0x100000, v{V_DESC}')
    a(f'v_cmp_eq_u32 vcc, 32, v{cp}')
    a(f'v_or_b32 v{t}, 0x200000, v{V_DESC}')
    a(f'v_cndmask_b32 v{V_DESC}, v{V_DESC}, v{t}, vcc')
    a(f'v_cmp_gt_u32 vcc, s79, v{g}')
    a(f'v_mov_b32 v{t}, 0x208000')
    a(f'v_cndmask_b32 v{V_DESC}, v{t}, v{V_DESC}, vcc')

def sig4(a, D):
    a(f's_and_b32 s88, s{D}, 0x3ff')
    a('s_lshl_b32 s88, s88, 2')

def read_lists(a, D):
    sig4(a, D)
    a(f'v_add_u32 v{V_A}, s88, v{V_LCS}')
    a(f'ds_read_b128 {vr(SRCr,4)}, v{V_A}')
    a(f'ds_read_b128 {vr(SRCr+4,4)}, v{V_A} offset:16')
    a(f'v_add_u32 v{V_C}, s88, v{V_EI}')
    a(f'ds_read_b32 v{EID}, v{V_C}')

def read_geo(a, D):
    a(f's_and_b32 s89, s{D}, 0x3ff')
    a('s_lshl_b32 s88, s89, 2')
    a(f'v_add_u32 v{V_B}, s88, v{V_E4}')
    a(f'ds_read_b32 v{GA}, v{V_B}')
    a(f'ds_read_b32 v{GB}, v{V_B} offset:{XB-XA}')
    a(f'v_add_u32 v{V_D}, s89, v{V_E1}')
    a(f'ds_read_u8 v{GS}, v{V_D}')

def issue_loads(a):
    a('s_mov_b32 m0, s39')
    a(f'v_lshl_add_u32 v{V_B}, v{EID}, 5, v{V_HM}')
    a(f'buffer_load_dwordx4 v{V_B}, s[48:51], 0 offen lds')
    for q in range(8):
        a(f's_add_u32 m0, s87, {q*1040}')
        a(f'v_add_u32 v{SRCr+q}, v{V_LCD}, v{SRCr+q}')
        if 'nodma' not in FL: a(f'buffer_load_dwordx4 v{SRCr+q}, s[44:47], s86 offen lds')

def build_xy(a):
    a(f'v_and_b32 v{V_A}, 0x80, v{GS}')
    a(f'v_mul_u32_u24 v{V_A}, 0x7f, v{V_A}')
    a(f'v_lshl_or_b32 v{V_A}, v{GA}, 16, v{V_A}')
    a(f'v_cndmask_b32 v{XY}, v{V_A}, v{GB}, s[64:65]')
    a(f'v_and_b32 v{V_B}, 7, v{GS}')
    a(f'v_lshl_add_u32 v{V_AL}, v{V_B}, 6, v{V_LCL}')
    a(f'v_lshl_add_u32 v{V_B}, v{V_B}, 4, v{V_LUT0}')
    a(f'v_cndmask_b32 v{XY+1}, v{V_B}, v{V_LUT8}, s[64:65]')
    a(f'v_lshrrev_b32 v{V_B}, 16, v{GA}')
    a(f'v_cndmask_b32 v{V_D2}, 0, v{V_B}, s[64:65]')

def read_rows(a):
    if 'norows' in FL: return
    for k in range(8):
        a(f'ds_read_b128 {vr(R+4*k,4)}, v{V_RB} offset:{k*32}')

def read_ea_oh(a):
    a(f'ds_read_b128 {vr(EAr,4)}, v{V_LCE}')
    a(f'ds_read_b128 {vr(OH,4)}, v{XY+1}')

def read_wda(a, D):
    a(f's_bfe_u32 s88, s{D}, 0x30010')
    a('s_lshl_b32 s88, s88, 12')
    a(f'v_add_u32 v{V_A}, s88, v{V_LCA}')
    a('s_mov_b32 exec_hi, 0')
    for b in range(4):
        a(f'ds_read_b128 {vr(WDA+4*b,4)}, v{V_A} offset:{512*b}')
    a('s_mov_b32 exec_hi, -1')

def jit_l(a, full):
    if not full:
        a('s_bfm_b32 s88, s81, 0')
        a('s_mov_b32 exec_lo, s88')
        a('s_mov_b32 exec_hi, s88')
    a(f'ds_write_b16 v{V_AL}, v{XY}')
    a(f'ds_write_b16_d16_hi v{V_AL}, v{XY} offset:16')
    if not full: a('s_mov_b64 exec, -1')
    a(f'ds_read_b128 {vr(L,4)}, v{V_LRD}')
    a(f'ds_read_b128 {vr(L+4,4)}, v{V_LRD} offset:1024')
    if not full:
        a('s_mov_b32 exec_lo, s88')
        a('s_mov_b32 exec_hi, s88')
    a(f'ds_write_b16 v{V_AL}, v{V_Z}')
    a(f'ds_write_b16 v{V_AL}, v{V_Z} offset:16')
    if not full: a('s_mov_b64 exec, -1')

def mf(d, x, y, c): return f'v_mfma_f32_32x32x16_bf16 {d}, {x}, {y}, {c}'
def A_ops(b, buf):
    d = vr(PRE + 16 * buf, 16)
    return [[mf(d, vr(R+8*b,4), vr(SEL,4), '0')], [mf(d, vr(R+8*b+4,4), vr(SEL+4,4), d)],
            [mf(d, vr(EAr,4), vr(W3+4*b,4), d)], [mf(d, vr(OH,4), vr(WDA+4*b,4), d)]]
def C_ops(b, buf):
    acc = vr(ACC + 16 * b, 16); p = PRE + 16 * buf
    return [[mf(acc, vr(L,4), vr(p,4), acc)], [mf(acc, vr(L+4,4), vr(p+4,4), acc)]]

def quarter(a, buf, q, mops, full):
    y = PRE + 16 * buf + 4 * q
    t = T + 4 * (q % 2)
    uid[0] += 1; u = uid[0]
    chk = (q > 0 and not full)
    if chk:
        a(f's_cmp_le_u32 s81, {8*q}')
        a(f's_cbranch_scc1 k2_qs{u}')
    seq = [f'v_exp_f32 v{t+i}, v{y+i}' for i in range(4)]
    seq += [f'v_add_f32 v{t+i}, 1.0, v{t+i}' for i in range(4)]
    seq += [f'v_rcp_f32 v{t+i}, v{t+i}' for i in range(4)]
    seq += ([f'v_pk_mul_f32 {vr(y+2*i,2)}, {vr(y+2*i,2)}, {vr(t+2*i,2)}' for i in range(2)] if 'pk' in FL else [f'v_mul_f32 v{y+i}, v{y+i}, v{t+i}' for i in range(4)])
    pk = PRE + 16 * buf + 2 * q
    seq += [f'v_cvt_pk_bf16_f32 v{pk}, v{y}, v{y+1}', f'v_cvt_pk_bf16_f32 v{pk+1}, v{y+2}, v{y+3}']
    pos = [1, 9] if 'pk' in FL else [2, 10]; k = 0
    for i, x in enumerate(seq):
        if k < len(mops) and i == pos[k]:
            for z in mops[k]: a(z)
            k += 1
        a(x)
    if chk:
        a.label(f'k2_qe{u}')
        DEFER.append(f'k2_qs{u}:')
        DEFER.extend([f'v_mov_b32 v{pk}, 0', f'v_mov_b32 v{pk+1}, 0'])
        for m in mops: DEFER.extend(m)
        DEFER.append(f's_branch k2_qe{u}')

def flush(a, Dp, cont, tag):
    sub = 91
    a(f's_bfe_u32 s91, s{Dp}, 0x30010')
    n_, kh_, ad, t0 = V_A, V_B, V_C, V_D
    a(f'v_and_b32 v{n_}, 31, v1')
    a(f'v_lshrrev_b32 v{kh_}, 5, v1')
    a(f'v_lshrrev_b32 v{ad}, 2, v{n_}')
    a('s_lshl_b32 s88, s5, 4')
    a(f'v_add_u32 v{ad}, s88, v{ad}')
    a(f'v_xor_b32 v{ad}, v{ad}, v{kh_}')
    a(f'v_lshlrev_b32 v{ad}, 4, v{ad}')
    a(f'v_lshl_add_u32 v{ad}, v{kh_}, 9, v{ad}')
    a(f'v_and_b32 v{t0}, 3, v{n_}')
    a(f'v_lshl_add_u32 v{ad}, v{t0}, 2, v{ad}')
    a(f's_and_b32 s88, s{sub}, 1')
    a('s_lshl_b32 s88, s88, 7')
    a(f'v_xor_b32 v{ad}, s88, v{ad}')
    a(f's_lshl_b32 s88, s{sub}, 12')
    a(f's_add_u32 s88, s88, {MACC}')
    a('s_lshl_b32 s89, s4, 12')
    a(f's_add_u32 s89, s89, {SIDE - 4096}')
    a(f's_cmp_eq_u32 s{cont}, 1')
    a('s_cselect_b32 s88, s89, s88')
    a(f'v_add_u32 v{ad}, s88, v{ad}')
    a(f's_mov_b32 s89, {NLN2:#x}')
    for bp in range(2):
        for i in range(4):
            a(f'v_mul_f32 v{ACC + 32*bp + 4*i}, s89, v{ACC + 32*bp + 4*i}')
            a(f'v_mul_f32 v{ACC + 32*bp + 16 + 4*i}, s89, v{ACC + 32*bp + 16 + 4*i}')
    for i in range(4):
        a(f'v_xor_b32 v{T+i}, {i*32}, v{ad}')
        a(f'v_xor_b32 v{T+4+i}, {i*32 ^ 128}, v{ad}')
    for bp in range(2):
        for i in range(4):
            x0, x1 = ACC + 32 * bp + 4 * i, ACC + 32 * bp + 16 + 4 * i
            a(f'v_cvt_pk_bf16_f32 v{x0}, v{x0}, v{x1}')
    for bp in range(2):
        for i in range(4):
            a(f'ds_write_b32 v{T+4*bp+i}, v{ACC + 32*bp + 4*i} offset:{i*1024}')
    P = [ACC + 4 * (k // 3) + (k % 3) + 1 for k in range(12)]
    for k in range(12): a(f'v_mul_f32 v{P[k]}, v{P[k]}, v{V_WX}')
    for b in range(1, 4):
        for k in range(12): a(f'v_fmac_f32 v{P[k]}, v{P[k]+16*b}, v{V_WX+b}')
    for j in range(6): a(f'v_permlane16_swap_b32 v{P[2*j]}, v{P[2*j+1]}')
    for j in range(6): a(f'v_add_f32 v{P[2*j]}, v{P[2*j]}, v{P[2*j+1]}')
    S = [P[2*j] for j in range(6)]
    U = [P[1], P[3], P[5]]
    for j in range(3):
        a(f'v_add_f32_dpp v{U[j]}, v{S[2*j]}, v{S[2*j]} row_ror:8 row_mask:0xf bank_mask:0x3')
    for j in range(3):
        a(f'v_add_f32_dpp v{U[j]}, v{S[2*j+1]}, v{S[2*j+1]} row_ror:8 row_mask:0xf bank_mask:0xc')
    V0, V1 = P[7], P[9]
    a(f'v_add_f32_dpp v{V0}, v{U[0]}, v{U[0]} row_half_mirror row_mask:0xf bank_mask:0x5')
    a(f'v_add_f32_dpp v{V1}, v{U[2]}, v{U[2]} row_half_mirror row_mask:0xf bank_mask:0xf')
    a(f'v_add_f32_dpp v{V0}, v{U[1]}, v{U[1]} row_half_mirror row_mask:0xf bank_mask:0xa')
    for mod in ('quad_perm:[1,0,3,2]', 'quad_perm:[2,3,0,1]'):
        for v in (V0, V1):
            a(f'v_add_f32_dpp v{v}, v{v}, v{v} {mod} row_mask:0xf bank_mask:0xf')
    a(f's_mul_i32 s88, s{sub}, 192')
    a(f's_add_u32 s88, s88, {PBO}')
    a('s_mul_i32 s89, s4, 192')
    a(f's_add_u32 s89, s89, {PBS - 192}')
    a(f's_cmp_eq_u32 s{cont}, 1')
    a('s_cselect_b32 s88, s89, s88')
    a('s_mul_i32 s89, s5, 96')
    a('s_add_u32 s88, s88, s89')
    a(f'v_add_u32 v{ad}, s88, v{V_PO0}')
    a(f'v_add_u32 v{t0}, s88, v{V_PO1}')
    a('s_mov_b32 exec_lo, 0x11111111')
    a('s_mov_b32 exec_hi, 0x11111111')
    a(f'ds_write_b32 v{ad}, v{V0}')
    a('s_mov_b32 exec_lo, 0x01010101')
    a('s_mov_b32 exec_hi, 0x01010101')
    a(f'ds_write_b32 v{t0}, v{V1}')
    a('s_mov_b64 exec, -1')
    if tag == 'a':
        for i in range(64): a(f'v_mov_b32 v{ACC+i}, 0')

def hpart(a, WH):
    HA = 112
    HF = [96, 16]
    a(f's_mov_b32 s89, {NLN2:#x}')
    for b in range(4):
        a(f'v_lshlrev_b32 v{V_WX+b}, 16, v{V_WX+b}')
        a(f'v_mul_f32 v{V_WX+b}, s89, v{V_WX+b}')
    a('v_and_b32 v13, 15, v1')
    a('v_lshrrev_b32 v14, 4, v1')
    a('v_xor_b32 v15, v14, v13')
    a('v_lshlrev_b32 v15, 4, v15')
    a('v_lshl_add_u32 v15, v13, 9, v15')
    a(f'v_add_u32 v15, {HT}, v15')
    for ksp in range(8):
        a(f'v_xor_b32 v12, {(4*ksp % 16)*16}, v15')
        off = (256 if ksp >= 4 else 0)
        fr = HF[ksp % 2]
        for rb in range(3):
            a(f'ds_read_b128 {vr(fr+4*rb,4)}, v12 offset:{off + rb*8192}')
        a('s_waitcnt lgkmcnt(0)')
        for cb in range(2):
            wreg = vr(WH + 4 * (2 * ksp + cb), 4)
            for rb in range(3):
                d = vr(HA + 8 * rb + 4 * cb, 4)
                c = '0' if ksp == 0 else d
                a(f'v_mfma_f32_16x16x32_bf16 {d}, {vr(fr+4*rb,4)}, {wreg}, {c}')
    for rb in range(3):
        for r in range(4):
            a(f'v_cvt_pk_bf16_f32 v{H1+4*rb+r}, v{HA+8*rb+r}, v{HA+8*rb+4+r}')

def consts(a, first):
    a('v_lshlrev_b32 v12, 4, v1')
    a('s_lshl_b32 s88, s5, 12')
    a(f's_add_u32 s88, s88, {W3P}')
    for b in range(4):
        a(f'buffer_load_dwordx4 {vr(W3+4*b,4)}, v12, s[40:43], s88 offen offset:{1024*b}')
    a('v_and_b32 v13, 31, v1')
    a('v_lshrrev_b32 v14, 5, v1')
    a('s_lshl_b32 s88, s5, 8')
    a('v_lshlrev_b32 v15, 1, v13')
    if first:
        for b in range(4):
            a(f'buffer_load_ushort v{V_WX+b}, v15, s[68:71], s88 offen offset:{64*b}')
    a('s_lshl_b32 s88, s5, 11')
    a(f's_add_u32 s88, s88, {WDP}')
    a('v_lshlrev_b32 v15, 4, v13')
    for b in range(4):
        a(f'buffer_load_dword v{WDA+4*b}, v15, s[40:43], s88 offen offset:{512*b}')
        for i in range(1, 4): a(f'v_mov_b32 v{WDA+4*b+i}, 0')
def selconst(a):
    a('v_and_b32 v13, 31, v1')
    a('v_lshrrev_b32 v14, 5, v1')
    a('v_lshlrev_b32 v16, 3, v14')
    a('v_sub_u32 v16, v13, v16')
    for sidx in range(2):
        for p in range(4):
            lo, hi = 16*sidx + 2*p, 16*sidx + 2*p + 1
            a(f'v_cmp_eq_u32 vcc, {lo}, v16')
            a(f'v_mov_b32 v17, 0x3f80')
            a(f'v_cndmask_b32 v21, 0, v17, vcc')
            a(f'v_cmp_eq_u32 vcc, {hi}, v16')
            a(f'v_mov_b32 v17, 0x3f800000')
            a(f'v_cndmask_b32 v{SEL+4*sidx+p}, v21, v17, vcc')
    for i in range(4): a(f'v_mov_b32 v{OH+i}, 0')

WH = 112
WM = 16
def tail_loads_m(a):
    a('v_lshlrev_b32 v12, 4, v1')
    a('s_lshl_b32 s88, s3, 15')
    a(f's_add_u32 s88, s88, {WHP + 16384}')
    for j in range(16):
        a(f's_add_u32 s89, s88, {j*1024}')
        a(f'buffer_load_dwordx4 {vr(WM+4*j,4)}, v12, s[40:43], s89 offen')
def tail_loads_ht(a):
    a('v_lshrrev_b32 v13, 5, v1')
    a('s_mul_i32 s89, s3, 6')
    a('v_add_u32 v13, s89, v13')
    a('v_and_b32 v10, 31, v1')
    a('s_mul_i32 s90, s2, 40')
    for j in range(3):
        a('v_and_b32 v11, 15, v13')
        a('v_xor_b32 v11, v11, v10')
        a('v_lshlrev_b32 v11, 4, v11')
        a('v_add_u32 v12, s90, v13')
        a('v_lshl_add_u32 v11, v12, 9, v11')
        a('s_and_b32 s91, s3, 1')
        a('s_lshl_b32 s91, s91, 7')
        a('s_add_u32 s91, s91, s87')
        a(f's_add_u32 m0, s91, {j*1024}')
        a('buffer_load_dwordx4 v11, s[56:59], 0 offen lds')
        if j < 2: a('v_add_u32 v13, 2, v13')
def tail_loads_wh(a):
    a('v_lshlrev_b32 v12, 4, v1')
    a('s_lshl_b32 s88, s3, 15')
    a(f's_add_u32 s88, s88, {WHP}')
    for j in range(16):
        a(f's_add_u32 s89, s88, {j*1024}')
        a(f'buffer_load_dwordx4 {vr(WH+4*j,4)}, v12, s[40:43], s89 offen')

def gen_k2(a, dbg=False):
    a.label('k2_main_kernel')
    a(f's_cmp_ge_u32 s2, {T_}')
    a('s_cbranch_scc1 k2_done')
    load_kernargs(a)
    a('v_and_b32 v1, 63, v0')
    a('v_lshrrev_b32 v2, 6, v0')
    a('v_readfirstlane_b32 s3, v2')
    a('s_lshr_b32 s4, s3, 1')
    a('s_sub_u32 s88, 5, s4')
    a('s_cmp_ge_u32 s3, 4')
    a('s_cselect_b32 s4, s88, s4')
    a('s_and_b32 s5, s3, 1')
    a('s_waitcnt lgkmcnt(0)')
    srd(a, 40, 36, 37, 0, 0x2000000)
    a('s_mov_b32 s66, 0')
    a('s_mov_b32 s67, 0')
    a('s_mov_b32 s27, 0')
    a('s_mov_b32 s15, 0')
    a('s_mov_b32 s64, 0')
    a('s_mov_b32 s65, -1')
    a.label('k2_batch')
    a('s_cmp_eq_u32 s66, 2')
    a('s_cbranch_scc1 k2_ld_ovf')
    a('v_lshlrev_b32 v15, 4, v0')
    a('s_mul_i32 s88, s2, 16000')
    a(f's_add_u32 s88, s88, {CELL}')
    a('buffer_load_dwordx4 v[24:27], v15, s[40:43], s88 offen')
    a('v_cmp_gt_u32 vcc, 488, v0')
    a('v_mov_b32 v28, 0')
    a('s_and_saveexec_b64 s[90:91], vcc')
    a('v_add_u32 v16, 8192, v15')
    a('buffer_load_dwordx4 v[28:31], v16, s[40:43], s88 offen')
    a('s_mov_b64 exec, s[90:91]')
    a('s_branch k2_ld_done')
    a.label('k2_ld_ovf')
    a('v_add_u32 v16, s21, v0')
    a('v_lshlrev_b32 v15, 3, v16')
    a('s_mul_i32 s88, s67, 5120')
    a(f's_add_u32 s88, s88, {OVF}')
    a('v_mov_b32 v25, -1')
    a('v_cmp_gt_u32 vcc, s97, v16')
    a('s_mov_b32 s89, 160')
    a('v_cmp_gt_u32 s[90:91], s89, v0')
    a('s_and_b64 vcc, vcc, s[90:91]')
    a('s_and_saveexec_b64 s[90:91], vcc')
    a('buffer_load_dwordx2 v[24:25], v15, s[40:43], s88 offen')
    a('s_mov_b64 exec, s[90:91]')
    a.label('k2_ld_done')
    a('v_mov_b32 v7, 0')
    for rep in range(2):
        a(f'v_add_u32 v16, {rep*512}, v0')
        a(f'v_cmp_gt_u32 vcc, {SC}, v16')
        a('s_and_saveexec_b64 s[90:91], vcc')
        a('v_lshlrev_b32 v15, 2, v16')
        a(f'v_add_u32 v15, {SRC}, v15')
        a('v_mov_b32 v17, 0x80000000')
        a(f'ds_write_b32 v15, v{V_Z}')
        a(f'ds_write_b32 v15, v{V_Z} offset:{W1-SRC}')
        a(f'ds_write_b32 v15, v17 offset:{XA-SRC}')
        a('s_mov_b64 exec, s[90:91]')
    a('v_cmp_gt_u32 vcc, 12, v0')
    a('s_and_saveexec_b64 s[90:91], vcc')
    a('v_lshlrev_b32 v15, 2, v0')
    a(f'v_add_u32 v15, {CNT}, v15')
    a(f'ds_write_b32 v15, v{V_Z}')
    a('s_mov_b64 exec, s[90:91]')
    a('s_cmp_eq_u32 s66, 0')
    a('s_cbranch_scc0 k2_re')
    srd(a, 44, 36, 37, BT, N * 512)
    srd(a, 48, 20, 21, 0, E * 32)
    srd(a, 52, 18, 19, 0, N * 6)
    srd(a, 56, 16, 17, 0, N * 512)
    srd(a, 60, 32, 33, 0, 2590000 * 2)
    srd(a, 68, 28, 29, 0, 512)
    stamp(a, 0, dbg)
    stamp(a, 8, dbg, 252, 's_memtime')
    a('v_lshlrev_b32 v15, 2, v0')
    a(f'v_add_u32 v15, {OVFC}, v15')
    a('v_cmp_gt_u32 vcc, 250, v0')
    a('v_mov_b32 v20, 0')
    a('s_and_saveexec_b64 s[90:91], vcc')
    a('buffer_load_dword v20, v15, s[40:43], 0 offen')
    a('s_mov_b64 exec, s[90:91]')
    a('s_mul_i32 s88, s2, 40')
    a('v_add_u32 v16, s88, v0')
    a('v_mul_u32_u24 v17, 6, v16')
    a('v_and_b32 v17, -4, v17')
    a('v_cmp_gt_u32 vcc, 40, v0')
    a('s_and_saveexec_b64 s[90:91], vcc')
    a('buffer_load_dwordx2 v[18:19], v17, s[52:55], 0 offen')
    a('s_mov_b64 exec, s[90:91]')
    a('s_lshl_b32 s88, s3, 11')
    a(f's_add_u32 s88, s88, {JIT}')
    a(f'v_lshlrev_b32 v{V_LRD}, 4, v1')
    a(f'v_add_u32 v{V_LRD}, s88, v{V_LRD}')
    z = T
    for i in range(4): a(f'v_mov_b32 v{z+i}, 0')
    a(f'ds_write_b128 v{V_LRD}, v[{z}:{z+3}]')
    a(f'ds_write_b128 v{V_LRD}, v[{z}:{z+3}] offset:1024')
    a('v_cmp_gt_u32 vcc, 120, v0')
    a('s_and_saveexec_b64 s[90:91], vcc')
    a('v_lshlrev_b32 v16, 2, v0')
    a(f'v_add_u32 v16, {PACC}, v16')
    a(f'ds_write_b32 v16, v{V_Z}')
    a('s_mov_b64 exec, s[90:91]')
    a('v_cmp_gt_u32 vcc, 72, v0')
    a('s_and_saveexec_b64 s[90:91], vcc')
    a('v_lshrrev_b32 v16, 3, v0')
    a('v_and_b32 v17, 7, v0')
    a('v_cmp_eq_u32 vcc, v16, v17')
    a('v_mov_b32 v17, 0x3f80')
    a('v_cndmask_b32 v17, 0, v17, vcc')
    a('v_lshlrev_b32 v16, 1, v0')
    a(f'v_add_u32 v16, {LUT}, v16')
    a('ds_write_b16 v16, v17')
    a('s_mov_b64 exec, s[90:91]')
    a('s_waitcnt lgkmcnt(0)')
    a('s_barrier')
    a('v_lshlrev_b32 v12, 4, v1')
    a('s_mul_i32 s88, s2, 20480')
    a(f's_add_u32 s88, s88, {AT}')
    for j in range(3):
        a(f's_lshl_b32 s89, s3, 10')
        a(f's_add_u32 s89, s89, {j*8192}')
        if j == 2:
            a('s_cmp_ge_u32 s3, 4')
            a('s_cbranch_scc1 k2_noat')
        a(f's_add_u32 m0, s89, {ATL}')
        a('s_add_u32 s89, s89, s88')
        a('buffer_load_dwordx4 v12, s[40:43], s89 offen lds')
    a.label('k2_noat')
    consts(a, True)
    a(f's_mov_b32 s92, {NL2E:#x}')
    a('s_lshl_b32 s86, s5, 8')
    a(f's_mul_i32 s87, s3, {STGW}')
    a('s_lshl_b32 s39, s3, 10')
    a(f's_add_u32 s39, s39, {EAP}')
    a(f'v_lshlrev_b32 v{V_E4}, 2, v13')
    a(f'v_add_u32 v{V_E4}, {XA}, v{V_E4}')
    a(f'v_add_u32 v{V_E1}, {SV}, v13')
    a(f'v_lshrrev_b32 v{V_EI}, 1, v1')
    a(f'v_lshlrev_b32 v{V_EI}, 2, v{V_EI}')
    a(f'v_add_u32 v{V_EI}, {W1}, v{V_EI}')
    a(f'v_and_b32 v{V_HM}, 1, v1')
    a(f'v_lshlrev_b32 v{V_HM}, 4, v{V_HM}')
    a(f'v_lshlrev_b32 v{V_LCE}, 5, v13')
    a(f'v_lshl_add_u32 v{V_LCE}, v14, 4, v{V_LCE}')
    a(f'v_add_u32 v{V_LCE}, s39, v{V_LCE}')
    a(f'v_lshrrev_b32 v{V_LCS}, 4, v1')
    a(f'v_lshlrev_b32 v{V_LCS}, 5, v{V_LCS}')
    a(f'v_add_u32 v{V_LCS}, {SRC}, v{V_LCS}')
    a('v_bfe_u32 v16, v13, 4, 1')
    a(f'v_lshlrev_b32 v{V_LCL}, 10, v16')
    a('v_bfe_u32 v16, v13, 2, 1')
    a(f'v_lshl_add_u32 v{V_LCL}, v16, 9, v{V_LCL}')
    a('v_bfe_u32 v16, v13, 3, 1')
    a(f'v_lshl_add_u32 v{V_LCL}, v16, 3, v{V_LCL}')
    a('v_and_b32 v16, 3, v13')
    a(f'v_lshl_add_u32 v{V_LCL}, v16, 1, v{V_LCL}')
    a(f'v_lshl_add_u32 v{V_LCL}, v14, 5, v{V_LCL}')
    a('s_lshl_b32 s88, s3, 11')
    a(f's_add_u32 s88, s88, {JIT}')
    a(f'v_add_u32 v{V_LCL}, s88, v{V_LCL}')
    a('v_and_b32 v16, 7, v13')
    a(f'v_mul_u32_u24 v{V_RB}, 1040, v16')
    a('v_lshrrev_b32 v16, 3, v13')
    a(f'v_lshl_add_u32 v{V_RB}, v16, 8, v{V_RB}')
    a(f'v_lshl_add_u32 v{V_RB}, v14, 4, v{V_RB}')
    a(f'v_add_u32 v{V_RB}, s87, v{V_RB}')
    a('v_and_b32 v16, 15, v1')
    a(f'v_lshlrev_b32 v{V_LCD}, 4, v16')
    a('s_lshl_b32 s88, s5, 7')
    a('v_add_u32 v16, s88, v13')
    a('v_lshlrev_b32 v16, 4, v16')
    a(f'v_add_u32 v{V_LCA}, {ATL}, v16')
    a(f'v_mov_b32 v{V_LUT0}, {LUT}')
    a(f'v_mov_b32 v{V_LUT8}, {LUT+128}')
    a('v_lshrrev_b32 v16, 4, v1')
    a('v_bfe_u32 v17, v1, 2, 2')
    a('v_and_b32 v21, 1, v17')
    a('v_lshrrev_b32 v22, 1, v17')
    a('v_lshl_add_u32 v21, v21, 1, v22')
    a('v_and_b32 v23, 1, v16')
    a('v_lshl_add_u32 v21, v21, 1, v23')
    a('v_lshl_add_u32 v22, v22, 1, v23')
    a('v_add_u32 v22, 8, v22')
    a('v_lshrrev_b32 v16, 1, v16')
    a('v_mul_u32_u24 v16, 12, v16')
    a('v_add_u32 v21, v21, v16'); a('v_add_u32 v22, v22, v16')
    a(f'v_lshlrev_b32 v{V_PO0}, 2, v21'); a(f'v_lshlrev_b32 v{V_PO1}, 2, v22')
    selconst(a)
    a('s_waitcnt vmcnt(14)')
    stamp(a, 1, dbg)
    a('s_mul_i32 s88, s2, 40')
    a('v_add_u32 v16, s88, v0')
    a('v_and_b32 v16, 1, v16')
    a('v_lshlrev_b32 v16, 4, v16')
    a('v_alignbit_b32 v22, v19, v18, v16')
    a('v_lshrrev_b32 v23, v16, v19')
    a('v_lshlrev_b32 v15, 3, v0')
    a(f'v_add_u32 v15, {POST}, v15')
    a('v_cmp_gt_u32 vcc, 40, v0')
    a('s_and_saveexec_b64 s[90:91], vcc')
    a('ds_write_b64 v15, v[22:23]')
    a('s_mov_b64 exec, s[90:91]')
    a('v_cmp_ne_u32 vcc, 0, v20')
    a('s_cbranch_vccz k2_later')
    a(f'v_mov_b32 v15, {CNT+32}')
    a('v_mov_b32 v16, 1')
    a('ds_write_b32 v15, v16')
    a('s_branch k2_later')
    a.label('k2_re')
    consts(a, False)
    selconst(a)
    a('s_waitcnt vmcnt(0) lgkmcnt(0)')
    a('s_barrier')
    a.label('k2_later')
    CI0, CI1, VC0, VC1 = 21, 22, 18, 19
    a('s_cmp_eq_u32 s66, 2')
    a('s_cbranch_scc1 k2_v_ovf')
    a(f'v_lshrrev_b32 v{CI0}, 2, v0')
    a(f'v_add_u32 v{CI1}, 128, v{CI0}')
    a(f'v_mov_b32_dpp v{VC0}, v24 quad_perm:[0,0,0,0] row_mask:0xf bank_mask:0xf')
    a(f'v_mov_b32_dpp v{VC1}, v28 quad_perm:[0,0,0,0] row_mask:0xf bank_mask:0xf')
    a('v_and_b32 v15, 3, v0')
    a('v_lshlrev_b32 v15, 2, v15')
    a('v_subrev_u32 v15, 1, v15')
    for r in (VC0, VC1):
        a(f'v_min_u32 v{r}, {CAP}, v{r}')
        a(f'v_sub_i32 v{r}, v{r}, v15')
    a('s_cmp_eq_u32 s66, 1')
    a('s_cbranch_scc0 k2_v_done')
    for r, c in ((VC0, CI0), (VC1, CI1)):
        a(f'v_subrev_u32 v15, s67, v{c}')
        a('v_cmp_gt_u32 vcc, 12, v15')
        a(f'v_cndmask_b32 v{r}, 0, v{r}, vcc')
    a('s_branch k2_v_done')
    a.label('k2_v_ovf')
    a(f'v_mov_b32 v{CI0}, s67'); a(f'v_mov_b32 v{CI1}, s67')
    a(f'v_cmp_eq_u32 vcc, s2, v25')
    a(f'v_cndmask_b32 v{VC0}, 0, 1, vcc')
    a(f'v_mov_b32 v{VC1}, 0')
    a.label('k2_v_done')
    a(f'v_mul_u32_u24 v{CI0}, 640, v{CI0}')
    a(f'v_mul_u32_u24 v{CI1}, 640, v{CI1}')
    MS = [72, 74, 76, 80, 82, 88, 90, 94]
    for i in range(8):
        vc = VC0 if i < 4 else VC1
        a(f'v_cmp_lt_i32 s[{MS[i]}:{MS[i]+1}], {i%4}, v{vc}')
    a('s_mov_b32 s10, 0xeeeeeeee'); a('s_mov_b32 s11, 0xeeeeeeee')
    a('s_cmp_eq_u32 s66, 2')
    a('s_cselect_b32 s10, -1, s10'); a('s_cselect_b32 s11, -1, s11')
    a(f's_and_b64 s[{MS[0]}:{MS[0]+1}], s[{MS[0]}:{MS[0]+1}], s[10:11]')
    a(f's_and_b64 s[{MS[4]}:{MS[4]+1}], s[{MS[4]}:{MS[4]+1}], s[10:11]')
    SB = 32
    for i in range(8):
        a(f'v_bfe_u32 v{SB+i}, v{24+i}, 17, 3')
        a(f'v_lshlrev_b32 v{SB+8+i}, 2, v{SB+i}')
        a(f'v_add_u32 v{SB+8+i}, {CNT}, v{SB+8+i}')
    a('v_mov_b32 v16, 1')
    for i in range(8):
        a(f's_mov_b64 exec, s[{MS[i]}:{MS[i]+1}]')
        a(f'ds_add_rtn_u32 v{T+i}, v{SB+8+i}, v16')
    a('s_mov_b64 exec, -1')
    for i in range(8):
        ci = CI0 if i < 4 else CI1
        a(f'v_and_b32 v{48+i}, 0x3fff, v{24+i}')
        a(f'v_lshlrev_b32 v{48+i}, 9, v{48+i}')
        a(f'v_lshrrev_b32 v{56+i}, 20, v{24+i}')
        a(f'v_add_u32 v{56+i}, v{56+i}, v{ci}')
        a(f'v_mul_u32_u24 v{SB+i}, {CAPS*4}, v{SB+i}')
        a(f'v_add_u32 v{SB+i}, {SRC}, v{SB+i}')
    a('s_waitcnt lgkmcnt(0)')
    for i in range(8):
        a(f'v_min_u32 v{T+i}, {CAPS-1}, v{T+i}')
        a(f'v_lshl_add_u32 v{SB+i}, v{T+i}, 2, v{SB+i}')
    for i in range(8):
        a(f's_mov_b64 exec, s[{MS[i]}:{MS[i]+1}]')
        a(f'ds_write_b32 v{SB+i}, v{48+i}')
        a(f'ds_write_b32 v{SB+i}, v{56+i} offset:{W1-SRC}')
        a(f'ds_write_b32 v{SB+i}, v{24+i} offset:{XA-SRC}')
    a('s_mov_b64 exec, -1')
    a('s_waitcnt lgkmcnt(0)')
    a('s_barrier')
    stamp(a, 2, dbg)
    PB_ = [48, 56]
    for rnd in range(2):
        b0 = PB_[rnd]
        if rnd == 1:
            a('s_cmp_eq_u32 s3, 7')
            a('s_cbranch_scc1 k2_nopos')
        a(f's_lshl_b32 s89, s3, 6')
        if rnd: a('s_add_u32 s89, s89, 512')
        a('v_add_u32 v16, s89, v1')
        a('v_lshlrev_b32 v15, 2, v16')
        a(f'v_add_u32 v{b0}, {XA}, v15')
        a(f'ds_read_b32 v{b0+1}, v{b0}')
        a('s_waitcnt lgkmcnt(0)')
        a(f'v_and_b32 v16, 0x3fff, v{b0+1}')
        a('v_mul_u32_u24 v16, 6, v16')
        a('v_and_b32 v16, -4, v16')
        a(f'v_cmp_le_i32 vcc, 0, v{b0+1}')
        a(f'v_mov_b32 v{b0+2}, 0'); a(f'v_mov_b32 v{b0+3}, 0')
        a('s_and_saveexec_b64 s[90:91], vcc')
        a(f'buffer_load_dwordx2 v[{b0+2}:{b0+3}], v16, s[52:55], 0 offen')
        a('s_mov_b64 exec, s[90:91]')
        a(f'v_bfe_u32 v16, v{b0+1}, 14, 6')
        a('v_lshlrev_b32 v16, 3, v16')
        a(f'v_add_u32 v16, {POST}, v16')
        a(f'ds_read_b64 v[{b0+4}:{b0+5}], v16')
    a.label('k2_nopos')
    a(f'v_mov_b32 v15, {CNT}')
    a('ds_read_b128 v[24:27], v15')
    a('ds_read_b32 v28, v15 offset:16')
    a('ds_read_b32 v29, v15 offset:32')
    a('s_waitcnt lgkmcnt(0)')
    a('s_mov_b32 s72, 0')
    for k in range(5):
        a(f'v_readfirstlane_b32 s88, v{24+k}')
        a('s_max_u32 s91, s91, s88') if k else a('s_mov_b32 s91, s88')
        a('s_add_u32 s89, s88, 7')
        a(f's_and_b32 s{CP+k}, s89, -8')
        a('s_add_u32 s89, s88, 31')
        a('s_lshr_b32 s89, s89, 5')
        a(f's_add_u32 s{73+k}, s{72+k}, s89')
    a('s_cmp_eq_u32 s66, 0')
    a('s_cbranch_scc0 k2_noflag2')
    a('v_readfirstlane_b32 s85, v29')
    a.label('k2_noflag2')
    a(f's_cmp_gt_u32 s91, {CAPS}')
    a('s_cselect_b32 s93, 1, 0')
    a('s_cbranch_scc1 k2_nofit1')
    a(f's_mov_b32 s88, {CW[0]}'); a(f's_mov_b32 s89, {CW[1]}')
    for k in range(1, 4):
        a(f's_cmp_eq_u32 s4, {k}')
        a(f's_cselect_b32 s88, {CW[k]}, s88')
        a(f's_cselect_b32 s89, {CW[k+1]}, s89')
    a('s_mul_i32 s88, s77, s88')
    a('s_lshr_b32 s28, s88, 6')
    a('s_mul_i32 s89, s77, s89')
    a('s_lshr_b32 s79, s89, 6')
    if 'solo' in FL:
        a('s_cmp_ge_u32 s3, 4')
        a('s_cselect_b32 s79, s28, s79')
    build_desc(a)
    a(f'v_readlane_b32 s78, v{V_DESC}, 0')
    a(f'v_readlane_b32 s94, v{V_DESC}, 1')
    a(f'v_readlane_b32 s6, v{V_DESC}, 2')
    a('s_mov_b32 s30, 2')
    read_lists(a, 78)
    a('s_waitcnt lgkmcnt(0)')
    issue_loads(a)
    a('s_bfe_u32 s80, s78, 0x30010')
    a('s_mov_b32 s38, s72')
    for k in range(1, 5):
        a(f's_cmp_eq_u32 s80, {k}')
        a(f's_cselect_b32 s38, s{72+k}, s38')
    a('s_cmp_gt_u32 s28, s38')
    a('s_cselect_b32 s38, 1, 0')
    a.label('k2_nofit1')
    stamp(a, 12, dbg)
    a('s_cmp_eq_u32 s93, 0')
    a('s_cbranch_scc1 k2_fits')
    a('s_mov_b32 s66, 1')
    a('s_mov_b32 s67, 0')
    a('s_waitcnt vmcnt(0) lgkmcnt(0)')
    a('s_barrier')
    a('s_branch k2_batch')
    a.label('k2_fits')
    stamp(a, 10, dbg)
    a('s_waitcnt vmcnt(9) lgkmcnt(0)')
    a('s_cmp_eq_u32 s15, 0')
    a('s_cbranch_scc0 k2_wxdone')
    a('s_mov_b32 s15, 1')
    a(f's_mov_b32 s89, {NLN2:#x}')
    for b in range(4):
        a(f'v_lshlrev_b32 v{V_WX+b}, 16, v{V_WX+b}')
        a(f'v_mul_f32 v{V_WX+b}, s89, v{V_WX+b}')
    a.label('k2_wxdone')
    for rnd in range(2):
        b0 = PB_[rnd]
        if rnd == 1:
            a('s_cmp_eq_u32 s3, 7')
            a('s_cbranch_scc1 k2_nogeo')
        e_, p0, p1, d0, d1 = b0+1, b0+2, b0+3, b0+4, b0+5
        t = 16
        a(f'v_and_b32 v15, 1, v{e_}')
        a('v_lshlrev_b32 v15, 4, v15')
        a(f'v_alignbit_b32 v{t}, v{p1}, v{p0}, v15')
        a(f'v_lshrrev_b32 v{t+1}, v15, v{p1}')
        a(f'v_lshlrev_b32 v{t+2}, 16, v{t}'); a(f'v_and_b32 v{t+3}, 0xffff0000, v{t}'); a(f'v_lshlrev_b32 v{t+4}, 16, v{t+1}')
        a(f'v_lshlrev_b32 v{t+5}, 16, v{d0}'); a(f'v_and_b32 v{t+6}, 0xffff0000, v{d0}'); a(f'v_lshlrev_b32 v{t+7}, 16, v{d1}')
        a(f'v_sub_f32 v{t+2}, v{t+5}, v{t+2}'); a(f'v_sub_f32 v{t+3}, v{t+6}, v{t+3}'); a(f'v_sub_f32 v{t+4}, v{t+7}, v{t+4}')
        a(f'v_cvt_pk_bf16_f32 v{t}, v{t+2}, v{t+3}')
        a(f'v_cvt_pk_bf16_f32 v{t+1}, v{t+4}, v{V_Z}')
        a(f'v_lshlrev_b32 v{t+2}, 16, v{t}'); a(f'v_and_b32 v{t+3}, 0xffff0000, v{t}'); a(f'v_lshlrev_b32 v{t+4}, 16, v{t+1}')
        a(f'v_mul_f32 v{t+2}, v{t+2}, v{t+2}'); a(f'v_mul_f32 v{t+3}, v{t+3}, v{t+3}'); a(f'v_mul_f32 v{t+4}, v{t+4}, v{t+4}')
        a(f'v_cvt_pk_bf16_f32 v{t+5}, v{t+2}, v{t+3}')
        a(f'v_cvt_pk_bf16_f32 v{t+6}, v{t+4}, v{V_Z}')
        a(f'v_lshlrev_b32 v{t+2}, 16, v{t+5}'); a(f'v_and_b32 v{t+3}, 0xffff0000, v{t+5}'); a(f'v_lshlrev_b32 v{t+4}, 16, v{t+6}')
        a(f'v_add_f32 v{t+2}, v{t+2}, v{t+3}'); a(f'v_add_f32 v{t+2}, v{t+2}, v{t+4}')
        a(f'v_cvt_pk_bf16_f32 v{t+2}, v{t+2}, v{V_Z}')
        a(f'v_and_b32 v{t+3}, 0xffff, v{t}')
        a(f'v_lshl_or_b32 v{t+3}, v{t+2}, 16, v{t+3}')
        a(f'v_alignbit_b32 v{t+4}, v{t+1}, v{t}, 16')
        a(f'v_bfe_u32 v{t+5}, v{e_}, 14, 3')
        a(f'v_or_b32 v{t+5}, 0x80, v{t+5}')
        a(f'v_cmp_le_i32 vcc, 0, v{e_}')
        for r in (t+3, t+4, t+5):
            a(f'v_cndmask_b32 v{r}, 0, v{r}, vcc')
        a(f'ds_write_b32 v{b0}, v{t+3}')
        a(f'ds_write_b32 v{b0}, v{t+4} offset:{XB-XA}')
        a(f'v_subrev_u32 v15, {XA}, v{b0}')
        a('v_lshrrev_b32 v15, 2, v15')
        a(f'v_add_u32 v15, {SV}, v15')
        a(f'ds_write_b8 v15, v{t+5}')
    a.label('k2_nogeo')
    a('s_cmp_eq_u32 s3, 7')
    a('s_cbranch_scc0 k2_nopad')
    a('v_lshlrev_b32 v15, 2, v1')
    a(f'v_add_u32 v15, {XA + 960*4}, v15')
    a('s_mov_b32 exec_hi, 0')
    a(f'ds_write_b32 v15, v{V_Z}')
    a(f'ds_write_b32 v15, v{V_Z} offset:{XB-XA}')
    a(f'v_add_u32 v15, {SV + 960}, v1')
    a(f'ds_write_b8 v15, v{V_Z}')
    a('s_mov_b32 exec_hi, -1')
    a.label('k2_nopad')
    for i in range(64): a(f'v_mov_b32 v{ACC+i}, 0')
    for i in range(8): a(f'v_mov_b32 v{L+i}, 0'); a(f'v_mov_b32 v{PRE+16+i}, 0')
    for k in range(1, 4):
        a(f's_mul_i32 s10, s77, {CW[k]}')
        a('s_lshr_b32 s10, s10, 6')
        a(f's_mul_i32 s11, s77, {CW[k+1]}')
        a('s_lshr_b32 s11, s11, 6')
        a('s_mov_b32 s12, 0'); a('s_mov_b32 s13, s72')
        for j in range(1, 5):
            a(f's_cmp_ge_u32 s10, s{72+j}')
            a(f's_cselect_b32 s12, {j}, s12')
            a(f's_cselect_b32 s13, s{72+j}, s13')
        a('s_cmp_lt_u32 s10, s11')
        a('s_cselect_b32 s12, s12, 15')
        a('s_cmp_gt_u32 s10, s13')
        a(f's_cselect_b32 s{31+k}, s12, 15')
    a('s_waitcnt lgkmcnt(0)')
    a('s_barrier')
    stamp(a, 3, dbg)
    wstamp(a, 0, dbg)
    a('s_bitcmp1_b32 s78, 20')
    a('s_cbranch_scc0 k2_edge_done')
    a('s_waitcnt vmcnt(0)')
    read_geo(a, 78)
    read_rows(a)
    read_wda(a, 78)
    a('s_waitcnt lgkmcnt(12)')
    build_xy(a)
    read_ea_oh(a)
    a('s_waitcnt lgkmcnt(0)')
    read_lists(a, 94)
    a(f'v_or_b32 v{OH}, v{OH}, v{V_D2}')
    A00 = A_ops(0, 0)
    for x in A00[0]: a(x)
    a('s_waitcnt lgkmcnt(0)')
    a('s_bitcmp1_b32 s94, 20')
    a('s_cbranch_scc0 k2_p_nodma')
    issue_loads(a)
    a.label('k2_p_nodma')
    for m in A00[1:]:
        for x in m: a(x)
    a('s_mov_b32 s13, 0')
    a('s_mov_b32 s14, 0')
    a('s_mov_b32 s12, 0')
    wstamp(a, 1, dbg)
    def body(a, full):
        tg = 'f' if full else 'g'
        quarter(a, 0, 0, C_ops(3, 1), full)
        jit_l(a, full)
        A = A_ops(1, 1)
        quarter(a, 0, 1, A[0:2], full); quarter(a, 0, 2, A[2:3], full); quarter(a, 0, 3, A[3:4], full)
        a('s_bitcmp1_b32 s13, 19')
        a('s_cbranch_scc1 k2_flush')
        a.label(f'k2_nofl{tg}')
        a('s_waitcnt lgkmcnt(0)')
        quarter(a, 1, 0, C_ops(0, 0), full)
        read_geo(a, 94)
        A = A_ops(2, 0)
        quarter(a, 1, 1, A[0:2], full); quarter(a, 1, 2, A[2:3], full); quarter(a, 1, 3, A[3:4], full)
        A = A_ops(3, 1)
        quarter(a, 0, 0, C_ops(1, 1), full)
        quarter(a, 0, 1, A[0:2], full)
        a('s_waitcnt vmcnt(0) lgkmcnt(0)')
        read_rows(a)
        build_xy(a)
        quarter(a, 0, 2, A[2:3], full); quarter(a, 0, 3, A[3:4], full)
        read_ea_oh(a)
        read_lists(a, 6)
        a('s_xor_b32 s88, s94, s78')
        a('s_and_b32 s88, s88, 0x70000')
        a(f's_cbranch_scc1 k2_wda{tg}')
        a.label(f'k2_wdar{tg}')
        D = Asm()
        D.label(f'k2_wda{tg}')
        read_wda(D, 94)
        D(f's_branch k2_wdar{tg}')
        DEFER.extend(D.lines)
        quarter(a, 1, 0, C_ops(2, 0), full)
        a('s_waitcnt lgkmcnt(0)')
        a(f'v_or_b32 v{OH}, v{OH}, v{V_D2}')
        a('s_bitcmp1_b32 s6, 20')
        a(f's_cbranch_scc0 k2_late{tg}')
        issue_loads(a)
        a.label(f'k2_nx3{tg}')
        D = Asm()
        D.label(f'k2_late{tg}')
        D('s_cmp_eq_u32 s12, 0')
        D(f's_cbranch_scc0 k2_late2{tg}')
        D('s_mov_b32 s12, 1')
        tail_loads_ht(D)
        D.label(f'k2_late2{tg}')
        D('s_bitcmp1_b32 s94, 20')
        D(f's_cbranch_scc1 k2_nx3{tg}')
        tail_loads_wh(D)
        D(f's_branch k2_nx3{tg}')
        DEFER.extend(D.lines)
        A = A_ops(0, 0)
        quarter(a, 1, 1, A[0:2], full); quarter(a, 1, 2, A[2:3], full); quarter(a, 1, 3, A[3:4], full)
    if 'priobig' in FL:
        a('s_cmp_lt_u32 s3, 4')
        a('s_cbranch_scc0 k2_np0')
        a('s_setprio 1')
        a.label('k2_np0')
    if 'prio1' in FL:
        a('s_cmp_ge_u32 s3, 4')
        a('s_cbranch_scc0 k2_np1')
        a('s_setprio 1')
        a.label('k2_np1')
    if 'prioalt' in FL:
        a('s_lshr_b32 s12, s3, 2')
    a.label('k2_grp')
    if 'prioalt' in FL:
        a('s_xor_b32 s12, s12, 1')
        a('s_cmp_eq_u32 s12, 1')
        a('s_cbranch_scc1 k2_pa1')
        a('s_setprio 0')
        a('s_branch k2_pa2')
        a.label('k2_pa1')
        a('s_setprio 1')
        a.label('k2_pa2')
    a('s_bitcmp1_b32 s78, 21')
    a('s_cbranch_scc0 k2_gen')
    body(a, True)
    a.label('k2_rot')
    a('s_mov_b32 s13, s78'); a('s_mov_b32 s14, s38')
    a('s_bitcmp1_b32 s78, 19')
    a('s_cselect_b32 s38, 0, s38')
    a('s_mov_b32 s78, s94'); a('s_mov_b32 s94, s6')
    a('s_add_u32 s30, s30, 1')
    a(f'v_readlane_b32 s6, v{V_DESC}, s30')
    a('s_bitcmp1_b32 s78, 20')
    a('s_cbranch_scc1 k2_grp')
    G = Asm()
    G.label('k2_gen')
    G('s_bfe_u32 s81, s78, 0x6000a')
    save = list(DEFER); DEFER.clear()
    body(G, False)
    G('s_branch k2_rot')
    G.label('k2_flush')
    flush(G, 13, 14, 'a')
    G('s_bitcmp1_b32 s78, 21')
    G('s_cbranch_scc1 k2_noflf')
    G('s_branch k2_noflg')
    inner = list(DEFER); DEFER.clear()
    DEFER.extend(save); DEFER.extend(G.lines); DEFER.extend(inner)
    wstamp(a, 2, dbg)
    wstamp(a, 3, dbg)
    for m in C_ops(3, 1):
        for x in m: a(x)
    flush(a, 13, 14, 'b')
    if False:
        a('s_lshl_b32 s88, s2, 3'); a('s_add_u32 s88, s88, s3'); a('s_lshl_b32 s88, s88, 5')
        a(f's_add_u32 s88, s88, {DBGW + 0x20000}')
        a(f'v_mov_b32 v{V_A}, 0')
        for i in range(6): a(f'v_mov_b32 v{T+i}, v{246+i}')
        a('s_mov_b64 exec, 1')
        a(f'buffer_store_dwordx4 {vr(T,4)}, v{V_A}, s[40:43], s88 offen')
        a(f'buffer_store_dwordx2 {vr(T+4,2)}, v{V_A}, s[40:43], s88 offen offset:16')
        a('s_mov_b64 exec, -1')
    a('s_branch k2_edge_done2')
    a.label('k2_edge_done')
    tail_loads_ht(a)
    tail_loads_wh(a)
    a.label('k2_edge_done2')
    wstamp(a, 4, dbg)
    tail_loads_m(a)
    wstamp(a, 5, dbg)
    a('s_waitcnt vmcnt(32) lgkmcnt(0)')
    wstamp(a, 6, dbg)
    a('s_barrier')
    wstamp(a, 7, dbg)
    stamp(a, 4, dbg)
    a('s_mov_b32 s7, s32'); a('s_mov_b32 s8, s33'); a('s_mov_b32 s9, s34')
    a('v_lshlrev_b32 v176, 3, v0')
    for k in range(1, 4):
        a(f's_cmp_eq_u32 s{6+k}, 15')
        a(f's_cbranch_scc1 k2_mg{k}')
        a(f's_lshl_b32 s11, s{6+k}, 12')
        a(f's_add_u32 s11, s11, {MACC}')
        a('v_add_u32 v177, s11, v176')
        a(f'v_add_u32 v178, {SIDE + (k-1)*4096}, v176')
        a('ds_read_b64 v[180:181], v177')
        a('ds_read_b64 v[182:183], v178')
        a('s_waitcnt lgkmcnt(0)')
        for j in range(2):
            a(f'v_lshlrev_b32 v184, 16, v{180+j}'); a(f'v_lshlrev_b32 v185, 16, v{182+j}'); a('v_add_f32 v184, v184, v185')
            a(f'v_and_b32 v186, 0xffff0000, v{180+j}'); a(f'v_and_b32 v187, 0xffff0000, v{182+j}'); a('v_add_f32 v186, v186, v187')
            a(f'v_cvt_pk_bf16_f32 v{180+j}, v184, v186')
        a('ds_write_b64 v177, v[180:181]')
        a.label(f'k2_mg{k}')
    for k in range(5):
        a(f's_cmp_eq_u32 s{CP+k}, 0')
        a(f's_cbranch_scc0 k2_nz{k}')
        a(f'v_add_u32 v177, {MACC + k*4096}, v176')
        a(f'v_mov_b32 v180, 0'); a('v_mov_b32 v181, 0')
        a('ds_write_b64 v177, v[180:181]')
        a.label(f'k2_nz{k}')
    a('s_cmp_ge_u32 s3, 2')
    a('s_cbranch_scc1 k2_mgdone')
    a('v_cmp_gt_u32 vcc, 120, v0')
    a('s_and_saveexec_b64 s[90:91], vcc')
    a('v_mul_u32_u24 v177, 2731, v0')
    a('v_lshrrev_b32 v177, 16, v177')
    a('v_mul_u32_u24 v178, 24, v177')
    a('v_sub_u32 v178, v0, v178')
    a('v_lshlrev_b32 v178, 2, v178')
    a('v_mul_u32_u24 v179, 192, v177')
    a('v_add_u32 v179, v179, v178')
    a(f'v_add_u32 v179, {PBO}, v179')
    a('ds_read_b32 v180, v179')
    a('ds_read_b32 v181, v179 offset:96')
    a('v_lshlrev_b32 v182, 2, v0')
    a(f'v_add_u32 v182, {PACC}, v182')
    a('ds_read_b32 v183, v182')
    a('v_lshlrev_b32 v184, 2, v177')
    a(f'v_add_u32 v184, {CNT}, v184')
    a('ds_read_b32 v184, v184')
    a(f'v_add_u32 v179, {PBS}, v178')
    for k in range(3):
        a(f'ds_read_b32 v{185+2*k}, v179 offset:{k*192}')
        a(f'ds_read_b32 v{186+2*k}, v179 offset:{k*192+96}')
    a('s_waitcnt lgkmcnt(0)')
    a('v_add_f32 v180, v180, v181')
    a('v_cmp_ne_u32 vcc, 0, v184')
    a('v_cndmask_b32 v180, 0, v180, vcc')
    a('v_add_f32 v183, v183, v180')
    for k in range(3):
        a(f'v_add_f32 v{185+2*k}, v{185+2*k}, v{186+2*k}')
        a(f'v_cmp_eq_u32 vcc, s{7+k}, v177')
        a(f'v_cndmask_b32 v{185+2*k}, 0, v{185+2*k}, vcc')
        a(f'v_add_f32 v183, v183, v{185+2*k}')
    a('ds_write_b32 v182, v183')
    a('s_mov_b64 exec, s[90:91]')
    a.label('k2_mgdone')
    a('s_or_b32 s10, s66, s85')
    a('s_cmp_eq_u32 s10, 0')
    a('s_cbranch_scc1 k2_tail')
    a('s_waitcnt lgkmcnt(0)')
    a('s_barrier')
    a('v_lshlrev_b32 v176, 2, v0')
    a(f'v_add_u32 v177, {MACC}, v176')
    a('v_lshlrev_b32 v178, 3, v0')
    a(f's_mul_i32 s10, s2, 40960')
    a(f's_add_u32 s10, s10, {G32}')
    a('s_mov_b32 s11, 0')
    a.label('k2_sp_loop')
    a('ds_read_b32 v180, v177')
    a('v_mov_b32 v182, 0'); a('v_mov_b32 v183, 0')
    a('s_cmp_eq_u32 s27, 0')
    a('s_cbranch_scc1 k2_sp_first')
    a('buffer_load_dwordx2 v[182:183], v178, s[40:43], s10 offen sc0 sc1')
    a.label('k2_sp_first')
    a('s_waitcnt vmcnt(0) lgkmcnt(0)')
    a('v_lshlrev_b32 v184, 16, v180')
    a('v_and_b32 v185, 0xffff0000, v180')
    a('v_add_f32 v182, v182, v184')
    a('v_add_f32 v183, v183, v185')
    a('buffer_store_dwordx2 v[182:183], v178, s[40:43], s10 offen sc0 sc1')
    a('v_add_u32 v177, 2048, v177')
    a('s_add_u32 s10, s10, 4096')
    a('s_add_u32 s11, s11, 1')
    a('s_cmp_lt_u32 s11, 10')
    a('s_cbranch_scc1 k2_sp_loop')
    a('s_mov_b32 s27, 1')
    a('s_cmp_eq_u32 s66, 1')
    a('s_cbranch_scc0 k2_nb1')
    a('s_add_u32 s67, s67, 12')
    a('s_cmp_lt_u32 s67, 250')
    a('s_cbranch_scc1 k2_batch_w')
    a('s_mov_b32 s66, 3')
    a.label('k2_nb1')
    a('s_cmp_eq_u32 s85, 0')
    a('s_cbranch_scc1 k2_tail_rare')
    a('s_cmp_eq_u32 s66, 2')
    a('s_cbranch_scc1 k2_ovf_more')
    a('s_mov_b32 s66, 2')
    a('s_mov_b32 s67, -1')
    a('s_branch k2_ovf_next')
    a.label('k2_ovf_more')
    a('s_add_u32 s21, s21o, 160'.replace('s21o', 's31'))
    a('s_mov_b32 s31, s21')
    a('s_cmp_lt_u32 s21, s97')
    a('s_cbranch_scc1 k2_batch_w')
    a.label('k2_ovf_next')
    a('s_add_u32 s67, s67, 1')
    a('s_cmp_ge_u32 s67, 250')
    a('s_cbranch_scc1 k2_tail_rare')
    a('s_lshl_b32 s88, s67, 2')
    a(f's_add_u32 s88, s88, {OVFC}')
    a('s_load_dword s97, s[36:37], s88')
    a('s_waitcnt lgkmcnt(0)')
    a('s_cmp_eq_u32 s97, 0')
    a('s_cbranch_scc1 k2_ovf_next')
    a('s_mov_b32 s21, 0'); a('s_mov_b32 s31, 0')
    a.label('k2_batch_w')
    a('s_waitcnt vmcnt(0) lgkmcnt(0)')
    a('s_barrier')
    a('s_branch k2_batch')
    a.label('k2_tail_rare')
    a('s_waitcnt vmcnt(0) lgkmcnt(0)')
    a('v_lshlrev_b32 v176, 2, v0')
    a(f'v_add_u32 v177, {MACC}, v176')
    a('v_lshlrev_b32 v178, 3, v0')
    a(f's_mul_i32 s10, s2, 40960')
    a(f's_add_u32 s10, s10, {G32}')
    a('s_mov_b32 s11, 0')
    a.label('k2_cv_loop')
    a('buffer_load_dwordx2 v[182:183], v178, s[40:43], s10 offen sc0 sc1')
    a('s_waitcnt vmcnt(0)')
    a('v_cvt_pk_bf16_f32 v180, v182, v183')
    a('ds_write_b32 v177, v180')
    a('v_add_u32 v177, 2048, v177')
    a('s_add_u32 s10, s10, 4096')
    a('s_add_u32 s11, s11, 1')
    a('s_cmp_lt_u32 s11, 10')
    a('s_cbranch_scc1 k2_cv_loop')
    a.label('k2_tail')
    a('v_and_b32 v13, 15, v1')
    a('v_lshrrev_b32 v14, 4, v1')
    a('s_mul_i32 s88, s2, 40')
    a('v_lshlrev_b32 v15, 2, v14')
    a('v_add_u32 v15, s88, v15')
    a('v_lshlrev_b32 v15, 9, v15')
    a('v_lshl_add_u32 v15, v13, 2, v15')
    a('s_lshl_b32 s88, s3, 6')
    a('v_add_u32 v15, s88, v15')
    HR = 200
    for rb in range(3):
        for r in range(4):
            off = (16 * rb + r) * 512
            a(f's_mov_b32 s89, {off}')
            a(f'buffer_load_dword v{HR+4*rb+r}, v15, s[56:59], s89 offen')
    stamp(a, 5, dbg)
    TA = 176
    FR = [212, 224]
    a('v_xor_b32 v11, v14, v13')
    a('v_lshlrev_b32 v11, 4, v11')
    for rb in range(3):
        a(f'v_add_u32 v8, {16*rb}, v13')
        a('v_mul_u32_u24 v9, 43, v8')
        a('v_lshrrev_b32 v9, 8, v9')
        a('v_mul_u32_u24 v10, 6, v9')
        a('v_sub_u32 v10, v8, v10')
        a('v_add_u32 v12, 1, v9')
        a('v_lshrrev_b32 v12, 1, v12')
        a('v_lshlrev_b32 v12, 8, v12')
        a('v_lshl_add_u32 v9, v9, 13, v12')
        a('v_lshl_add_u32 v9, v10, 9, v9')
        a(f'v_add_u32 v{2+rb}, v9, v11')
    def rd_h(ksp):
        off = (256 if ksp >= 4 else 0); fr = FR[ksp % 2]
        for rb in range(3):
            a(f'v_xor_b32 v12, {(4*ksp % 16)*16}, v{2+rb}')
            a(f'ds_read_b128 {vr(fr+4*rb,4)}, v12 offset:{off}')
    def rd_m(ksp):
        off = (256 if ksp >= 4 else 0); fr = FR[ksp % 2]
        a(f'v_xor_b32 v12, {(4*ksp % 16)*16}, v11')
        for rb in range(3):
            a(f'ds_read_b128 {vr(fr+4*rb,4)}, v12 offset:{off + rb*8192}')
    rd_h(0)
    for ksp in range(8):
        fr = FR[ksp % 2]
        if ksp < 7:
            rd_h(ksp + 1)
            a(f's_waitcnt vmcnt({28 + 14 - 2*ksp}) lgkmcnt(3)')
        else:
            a(f's_waitcnt vmcnt({28 + 14 - 2*ksp}) lgkmcnt(0)')
        for cb in range(2):
            wreg = vr(WH + 4 * (2 * ksp + cb), 4)
            for rb in range(3):
                d = vr(TA + 8 * rb + 4 * cb, 4)
                c = '0' if ksp == 0 else d
                a(f'v_mfma_f32_16x16x32_bf16 {d}, {vr(fr+4*rb,4)}, {wreg}, {c}')
    a('v_lshl_add_u32 v11, v13, 9, v11')
    a(f'v_add_u32 v11, {MACC}, v11')
    a('s_waitcnt lgkmcnt(0)')
    a('s_barrier')
    rd_m(0)
    for ksp in range(8):
        fr = FR[ksp % 2]
        if ksp < 7:
            rd_m(ksp + 1)
            a(f's_waitcnt vmcnt({12 + 14 - 2*ksp}) lgkmcnt(3)')
        else:
            a(f's_waitcnt vmcnt({12 + 14 - 2*ksp}) lgkmcnt(0)')
        for cb in range(2):
            wreg = vr(WM + 4 * (2 * ksp + cb), 4)
            for rb in range(3):
                d = vr(TA + 8 * rb + 4 * cb, 4)
                a(f'v_mfma_f32_16x16x32_bf16 {d}, {vr(fr+4*rb,4)}, {wreg}, {d}')
    stamp(a, 6, dbg)
    a('s_waitcnt vmcnt(0)')
    for rb in range(3):
        if rb == 2:
            a('s_mov_b32 exec_hi, 0')
        for r in range(4):
            x0, x1 = TA + 8 * rb + r, TA + 8 * rb + 4 + r
            for k, x in enumerate((x0, x1)):
                t = 8 + k
                a(f'v_mul_f32 v{t}, s92, v{x}')
                a(f'v_exp_f32 v{t}, v{t}')
                a(f'v_add_f32 v{t}, 1.0, v{t}')
                a(f'v_rcp_f32 v{t}, v{t}')
                a(f'v_mul_f32 v{x}, v{x}, v{t}')
            h = HR + 4 * rb + r
            a(f'v_lshlrev_b32 v10, 16, v{h}')
            a(f'v_and_b32 v11, 0xffff0000, v{h}')
            a(f'v_add_f32 v{x0}, v{x0}, v10')
            a(f'v_add_f32 v{x1}, v{x1}, v11')
            a(f'v_cvt_pk_bf16_f32 v{h}, v{x0}, v{x1}')
            a(f's_mov_b32 s89, {(16 * rb + r) * 512}')
            a(f'buffer_store_dword v{h}, v15, s[60:63], s89 offen')
    a('s_mov_b64 exec, -1')
    stamp(a, 7, dbg)
    stamp(a, 9, dbg, 252, 's_memtime')
    a('s_cmp_ge_u32 s3, 2')
    a('s_cbranch_scc1 k2_done')
    a('v_cmp_gt_u32 vcc, 120, v0')
    a('s_and_saveexec_b64 s[90:91], vcc')
    a('s_cbranch_execz k2_done')
    a('v_mul_u32_u24 v16, 21846, v0')
    a('v_lshrrev_b32 v16, 16, v16')
    a('v_mul_u32_u24 v17, 3, v16')
    a('v_sub_u32 v17, v0, v17')
    a('v_lshrrev_b32 v18, 3, v16')
    a('v_mul_u32_u24 v18, 24, v18')
    a('v_and_b32 v19, 1, v16')
    a('v_mul_u32_u24 v19, 12, v19')
    a('v_add_u32 v18, v18, v19')
    a('v_bfe_u32 v19, v16, 1, 2')
    a('v_mul_u32_u24 v19, 3, v19')
    a('v_add3_u32 v18, v18, v19, v17')
    a('v_lshlrev_b32 v18, 2, v18')
    a(f'v_add_u32 v18, {PACC}, v18')
    a('ds_read_b32 v16, v18')
    a('s_mul_i32 s88, s2, 240')
    a('v_lshlrev_b32 v13, 1, v0')
    a('buffer_load_ushort v20, v13, s[52:55], s88 offen')
    a('s_waitcnt vmcnt(0) lgkmcnt(0)')
    a('v_lshlrev_b32 v20, 16, v20')
    a('v_add_f32 v16, v16, v20')
    a(f'v_cvt_pk_bf16_f32 v16, v16, v{V_Z}')
    a('s_add_u32 s88, s88, 5120000')
    a('buffer_store_short v16, v13, s[60:63], s88 offen')
    a.label('k2_done')
    a('s_endpgm')
    for x in DEFER: a(x)
    DEFER.clear()

if __name__ == '__main__':
    from gen import build, gen_k1, K1_LDS
    dbg = len(sys.argv) > 2 and sys.argv[2] == 'dbg'
    ks = [('k1_prep_kernel', 256, 256, K1_LDS, lambda a: gen_k1(a, dbg), 256),
          ('k2_main_kernel', T_, NW * 64, K2_LDS, lambda a: gen_k2(a, dbg), 256)]
    build(ks, sys.argv[1])
    print('K2_LDS', K2_LDS, file=sys.stderr)
```

```python
import os, sys
from asmdsl import Asm
from layout import *
from gen import srd, load_kernargs, NL2E, f32bits
FL = set(os.environ.get('FL', '').split(','))
T_ = T
NW = 8
W_ = int(os.environ.get('TW', '23'))
CW = [0, W_, 2 * W_, 2 * W_ + (64 - 2 * W_) // 2, 64]
CAPS = 192
SC = 5 * CAPS + 32
STG = 0
STGW = 8 * 1040
EAP = STG + NW * STGW
JIT = EAP + NW * 1024
SRC = JIT + NW * 2048
W1 = SRC + SC * 4
XA = W1 + SC * 4
XB = XA + SC * 4
SV = XB + SC * 4
W0 = XA
ATL = (SV + SC + 255) // 256 * 256
MACC = ATL + 20480
SIDE = MACC + 40 * 512
PBO = SIDE + 3 * 4096
PBS = PBO + 5 * 2 * 96
PACC = PBS + 3 * 2 * 96
LUT = PACC + 480
CNT = LUT + 144
POST = CNT + 48
K2_LDS = POST + 320
HT = MACC
assert K2_LDS <= 163840, K2_LDS
NLN2 = f32bits(-0.6931471805599453)

V_LCS, V_LCL, V_LRD, V_RB, V_LCD, V_Z, V_LCE, V_LCA = 2, 3, 4, 5, 6, 7, 8, 9
V_A, V_B, V_C, V_D, V_AL = 10, 11, 12, 13, 14
V_E4 = 243
ACC, PRE, R, W3, WDA, SEL, L, OH, EAr, T, SRCr = 16, 80, 112, 144, 160, 176, 184, 192, 196, 200, 208
XY, GA, GB, GS, EID, V_WX, H1 = 216, 218, 219, 220, 221, 224, 228
V_E1 = 244
V_LUT0, V_LUT8 = 247, 248
V_HM = 245
V_PO0, V_PO1, V_EI = 240, 241, 242
def vr(b, n): return f'v[{b}:{b+n-1}]'
uid = [0]
DEFER = []
PROF = 'prof' in FL

def stamp(a, idx, dbg, vb=252, op='s_memrealtime'):
    if not dbg: return
    a(f's_cmp_lg_u32 s3, 0')
    a(f's_cbranch_scc1 st_skip{idx}')
    a(f'{op} s[98:99]')
    a('s_waitcnt lgkmcnt(0)')
    a(f'v_mov_b32 v{vb}, s98')
    a(f'v_mov_b32 v{vb+1}, s99')
    a('s_lshl_b32 s88, s2, 7')
    a(f's_add_u32 s88, s88, {DBGW + idx*8}')
    a(f'v_mov_b32 v{vb+2}, 0')
    a('s_mov_b64 s[98:99], exec')
    a('s_mov_b64 exec, 1')
    a(f'buffer_store_dwordx2 v[{vb}:{vb+1}], v{vb+2}, s[40:43], s88 offen')
    a('s_mov_b64 exec, s[98:99]')
    a.label(f'st_skip{idx}')
PTR = [16, 18, 32, 34, 64, 98]
def wstamp(a, i, dbg):
    if not (dbg and 'ws' in FL): return
    a('s_memrealtime s[98:99]')
    a('s_waitcnt lgkmcnt(0)')
    a('v_mov_b32 v252, s98'); a('v_mov_b32 v253, s99')
    a('s_lshl_b32 s88, s2, 3'); a('s_add_u32 s88, s88, s3'); a('s_lshl_b32 s88, s88, 6')
    a(f's_add_u32 s88, s88, {DBGW + 0x40000 + i*8}')
    a('v_mov_b32 v254, 0')
    a('s_mov_b64 exec, 1')
    a('buffer_store_dwordx2 v[252:253], v254, s[40:43], s88 offen')
    a('s_mov_b64 exec, -1')
def PT(a, i):
    if PROF: a(f's_memtime s[{PTR[i]}:{PTR[i]+1}]')

CP = 22
V_DESC = 246
V_D2 = 222
def build_desc(a):
    g, sub, go, ge, cp, t = 16, 17, 18, 19, 20, 21
    a(f'v_add_u32 v{g}, s28, v1')
    a(f'v_mov_b32 v{sub}, 0'); a(f'v_mov_b32 v{go}, s72'); a(f'v_mov_b32 v{ge}, s73'); a(f'v_mov_b32 v{cp}, s{CP}')
    for k in range(1, 5):
        a(f'v_cmp_le_u32 vcc, s{72+k}, v{g}')
        a(f'v_mov_b32 v{t}, {k}'); a(f'v_cndmask_b32 v{sub}, v{sub}, v{t}, vcc')
        a(f'v_mov_b32 v{t}, s{72+k}'); a(f'v_cndmask_b32 v{go}, v{go}, v{t}, vcc')
        a(f'v_mov_b32 v{t}, s{73+k}'); a(f'v_cndmask_b32 v{ge}, v{ge}, v{t}, vcc')
        a(f'v_mov_b32 v{t}, s{CP+k}'); a(f'v_cndmask_b32 v{cp}, v{cp}, v{t}, vcc')
    a(f'v_sub_u32 v{go}, v{g}, v{go}')
    a(f'v_lshlrev_b32 v{go}, 5, v{go}')
    a(f'v_sub_u32 v{cp}, v{cp}, v{go}')
    a(f'v_min_u32 v{cp}, 32, v{cp}')
    a(f'v_mul_u32_u24 v{t}, {CAPS}, v{sub}')
    a(f'v_add_u32 v{go}, v{go}, v{t}')
    a(f'v_min_u32 v{ge}, s79, v{ge}')
    a(f'v_add_u32 v{t}, 1, v{g}')
    a(f'v_cmp_ge_u32 vcc, v{t}, v{ge}')
    a(f'v_cndmask_b32 v{t}, 0, 1, vcc')
    a(f'v_lshl_or_b32 v{V_DESC}, v{cp}, 10, v{go}')
    a(f'v_lshl_or_b32 v{V_DESC}, v{sub}, 16, v{V_DESC}')
    a(f'v_lshl_or_b32 v{V_DESC}, v{t}, 19, v{V_DESC}')
    a(f'v_or_b32 v{V_DESC}, 0x100000, v{V_DESC}')
    a(f'v_cmp_eq_u32 vcc, 32, v{cp}')
    a(f'v_or_b32 v{t}, 0x200000, v{V_DESC}')
    a(f'v_cndmask_b32 v{V_DESC}, v{V_DESC}, v{t}, vcc')
    a(f'v_cmp_gt_u32 vcc, s79, v{g}')
    a(f'v_mov_b32 v{t}, 0x208000')
    a(f'v_cndmask_b32 v{V_DESC}, v{t}, v{V_DESC}, vcc')

def sig4(a, D):
    a(f's_and_b32 s88, s{D}, 0x3ff')
    a('s_lshl_b32 s88, s88, 2')

def read_lists(a, D):
    sig4(a, D)
    a(f'v_add_u32 v{V_A}, s88, v{V_LCS}')
    a(f'ds_read_b128 {vr(SRCr,4)}, v{V_A}')
    a(f'ds_read_b128 {vr(SRCr+4,4)}, v{V_A} offset:16')
    a(f'v_add_u32 v{V_C}, s88, v{V_EI}')
    a(f'ds_read_b32 v{EID}, v{V_C}')

def read_geo(a, D):
    a(f's_and_b32 s89, s{D}, 0x3ff')
    a('s_lshl_b32 s88, s89, 2')
    a(f'v_add_u32 v{V_B}, s88, v{V_E4}')
    a(f'ds_read_b32 v{GA}, v{V_B}')
    a(f'ds_read_b32 v{GB}, v{V_B} offset:{XB-XA}')
    a(f'v_add_u32 v{V_D}, s89, v{V_E1}')
    a(f'ds_read_u8 v{GS}, v{V_D}')

def issue_loads(a):
    a('s_mov_b32 m0, s39')
    a(f'v_lshl_add_u32 v{V_B}, v{EID}, 5, v{V_HM}')
    a(f'buffer_load_dwordx4 v{V_B}, s[48:51], 0 offen lds')
    for q in range(8):
        a(f's_add_u32 m0, s87, {q*1040}')
        a(f'v_add_u32 v{SRCr+q}, v{V_LCD}, v{SRCr+q}')
        if 'nodma' not in FL: a(f'buffer_load_dwordx4 v{SRCr+q}, s[44:47], s86 offen lds')

def build_xy(a):
    a(f'v_and_b32 v{V_A}, 0x80, v{GS}')
    a(f'v_mul_u32_u24 v{V_A}, 0x7f, v{V_A}')
    a(f'v_lshl_or_b32 v{V_A}, v{GA}, 16, v{V_A}')
    a(f'v_cndmask_b32 v{XY}, v{V_A}, v{GB}, s[64:65]')
    a(f'v_and_b32 v{V_B}, 7, v{GS}')
    a(f'v_lshl_add_u32 v{V_AL}, v{V_B}, 6, v{V_LCL}')
    a(f'v_lshl_add_u32 v{V_B}, v{V_B}, 4, v{V_LUT0}')
    a(f'v_cndmask_b32 v{XY+1}, v{V_B}, v{V_LUT8}, s[64:65]')
    a(f'v_lshrrev_b32 v{V_B}, 16, v{GA}')
    a(f'v_cndmask_b32 v{V_D2}, 0, v{V_B}, s[64:65]')

def read_rows(a):
    if 'norows' in FL: return
    for k in range(8):
        a(f'ds_read_b128 {vr(R+4*k,4)}, v{V_RB} offset:{k*32}')

def read_ea_oh(a):
    a(f'ds_read_b128 {vr(EAr,4)}, v{V_LCE}')
    a(f'ds_read_b128 {vr(OH,4)}, v{XY+1}')

def read_wda(a, D):
    a(f's_bfe_u32 s88, s{D}, 0x30010')
    a('s_lshl_b32 s88, s88, 12')
    a(f'v_add_u32 v{V_A}, s88, v{V_LCA}')
    a('s_mov_b32 exec_hi, 0')
    for b in range(4):
        a(f'ds_read_b128 {vr(WDA+4*b,4)}, v{V_A} offset:{512*b}')
    a('s_mov_b32 exec_hi, -1')

def jit_l(a, full):
    if not full:
        a('s_bfm_b32 s88, s81, 0')
        a('s_mov_b32 exec_lo, s88')
        a('s_mov_b32 exec_hi, s88')
    a(f'ds_write_b16 v{V_AL}, v{XY}')
    a(f'ds_write_b16_d16_hi v{V_AL}, v{XY} offset:16')
    if not full: a('s_mov_b64 exec, -1')
    a(f'ds_read_b128 {vr(L,4)}, v{V_LRD}')
    a(f'ds_read_b128 {vr(L+4,4)}, v{V_LRD} offset:1024')
    if not full:
        a('s_mov_b32 exec_lo, s88')
        a('s_mov_b32 exec_hi, s88')
    a(f'ds_write_b16 v{V_AL}, v{V_Z}')
    a(f'ds_write_b16 v{V_AL}, v{V_Z} offset:16')
    if not full: a('s_mov_b64 exec, -1')

def mf(d, x, y, c): return f'v_mfma_f32_32x32x16_bf16 {d}, {x}, {y}, {c}'
def A_ops(b, buf):
    d = vr(PRE + 16 * buf, 16)
    return [[mf(d, vr(R+8*b,4), vr(SEL,4), '0')], [mf(d, vr(R+8*b+4,4), vr(SEL+4,4), d)],
            [mf(d, vr(EAr,4), vr(W3+4*b,4), d)], [mf(d, vr(OH,4), vr(WDA+4*b,4), d)]]
def C_ops(b, buf):
    acc = vr(ACC + 16 * b, 16); p = PRE + 16 * buf
    return [[mf(acc, vr(L,4), vr(p,4), acc)], [mf(acc, vr(L+4,4), vr(p+4,4), acc)]]

def quarter(a, buf, q, mops, full):
    y = PRE + 16 * buf + 4 * q
    t = T + 4 * (q % 2)
    uid[0] += 1; u = uid[0]
    chk = (q > 0 and not full)
    if chk:
        a(f's_cmp_le_u32 s81, {8*q}')
        a(f's_cbranch_scc1 k2_qs{u}')
    seq = [f'v_exp_f32 v{t+i}, v{y+i}' for i in range(4)]
    seq += [f'v_add_f32 v{t+i}, 1.0, v{t+i}' for i in range(4)]
    seq += [f'v_rcp_f32 v{t+i}, v{t+i}' for i in range(4)]
    seq += ([f'v_pk_mul_f32 {vr(y+2*i,2)}, {vr(y+2*i,2)}, {vr(t+2*i,2)}' for i in range(2)] if 'pk' in FL else [f'v_mul_f32 v{y+i}, v{y+i}, v{t+i}' for i in range(4)])
    pk = PRE + 16 * buf + 2 * q
    seq += [f'v_cvt_pk_bf16_f32 v{pk}, v{y}, v{y+1}', f'v_cvt_pk_bf16_f32 v{pk+1}, v{y+2}, v{y+3}']
    pos = (eval(os.environ.get('POS', '[1, 9]')) if 'pk' in FL else [2, 10]); k = 0
    for i, x in enumerate(seq):
        if k < len(mops) and i == pos[k]:
            for z in mops[k]: a(z)
            k += 1
        a(x)
    if chk:
        a.label(f'k2_qe{u}')
        DEFER.append(f'k2_qs{u}:')
        DEFER.extend([f'v_mov_b32 v{pk}, 0', f'v_mov_b32 v{pk+1}, 0'])
        for m in mops: DEFER.extend(m)
        DEFER.append(f's_branch k2_qe{u}')

def flush(a, Dp, cont, tag):
    sub = 91
    a(f's_bfe_u32 s91, s{Dp}, 0x30010')
    n_, kh_, ad, t0 = V_A, V_B, V_C, V_D
    a(f'v_and_b32 v{n_}, 31, v1')
    a(f'v_lshrrev_b32 v{kh_}, 5, v1')
    a(f'v_lshrrev_b32 v{ad}, 2, v{n_}')
    a('s_lshl_b32 s88, s5, 4')
    a(f'v_add_u32 v{ad}, s88, v{ad}')
    a(f'v_xor_b32 v{ad}, v{ad}, v{kh_}')
    a(f'v_lshlrev_b32 v{ad}, 4, v{ad}')
    a(f'v_lshl_add_u32 v{ad}, v{kh_}, 9, v{ad}')
    a(f'v_and_b32 v{t0}, 3, v{n_}')
    a(f'v_lshl_add_u32 v{ad}, v{t0}, 2, v{ad}')
    a(f's_and_b32 s88, s{sub}, 1')
    a('s_lshl_b32 s88, s88, 7')
    a(f'v_xor_b32 v{ad}, s88, v{ad}')
    a(f's_lshl_b32 s88, s{sub}, 12')
    a(f's_add_u32 s88, s88, {MACC}')
    a('s_lshl_b32 s89, s4, 12')
    a(f's_add_u32 s89, s89, {SIDE - 4096}')
    a(f's_cmp_eq_u32 s{cont}, 1')
    a('s_cselect_b32 s88, s89, s88')
    a(f'v_add_u32 v{ad}, s88, v{ad}')
    a(f's_mov_b32 s89, {NLN2:#x}')
    for bp in range(2):
        for i in range(4):
            a(f'v_mul_f32 v{ACC + 32*bp + 4*i}, s89, v{ACC + 32*bp + 4*i}')
            a(f'v_mul_f32 v{ACC + 32*bp + 16 + 4*i}, s89, v{ACC + 32*bp + 16 + 4*i}')
    for i in range(4):
        a(f'v_xor_b32 v{T+i}, {i*32}, v{ad}')
        a(f'v_xor_b32 v{T+4+i}, {i*32 ^ 128}, v{ad}')
    for bp in range(2):
        for i in range(4):
            x0, x1 = ACC + 32 * bp + 4 * i, ACC + 32 * bp + 16 + 4 * i
            a(f'v_cvt_pk_bf16_f32 v{x0}, v{x0}, v{x1}')
    for bp in range(2):
        for i in range(4):
            a(f'ds_write_b32 v{T+4*bp+i}, v{ACC + 32*bp + 4*i} offset:{i*1024}')
    P = [ACC + 4 * (k // 3) + (k % 3) + 1 for k in range(12)]
    def wxop(b):
        base = V_WX + (b & ~1)
        return vr(base, 2), ('op_sel:[0,0] op_sel_hi:[1,0]' if b % 2 == 0 else 'op_sel:[0,1] op_sel_hi:[1,1]')
    w, m = wxop(0)
    for p in range(8): a(f'v_pk_mul_f32 {vr(ACC+2*p,2)}, {vr(ACC+2*p,2)}, {w} {m}')
    for b in range(1, 4):
        w, m = wxop(b)
        m3 = m.replace(']', ',0]', 1) if False else None
        sel = ('op_sel:[0,0,0] op_sel_hi:[1,0,1]' if b % 2 == 0 else 'op_sel:[0,1,0] op_sel_hi:[1,1,1]')
        for p in range(8): a(f'v_pk_fma_f32 {vr(ACC+2*p,2)}, {vr(ACC+16*b+2*p,2)}, {w}, {vr(ACC+2*p,2)} {sel}')
    for j in range(6): a(f'v_permlane16_swap_b32 v{P[2*j]}, v{P[2*j+1]}')
    for j in range(6): a(f'v_add_f32 v{P[2*j]}, v{P[2*j]}, v{P[2*j+1]}')
    S = [P[2*j] for j in range(6)]
    U = [P[1], P[3], P[5]]
    for j in range(3):
        a(f'v_add_f32_dpp v{U[j]}, v{S[2*j]}, v{S[2*j]} row_ror:8 row_mask:0xf bank_mask:0x3')
    for j in range(3):
        a(f'v_add_f32_dpp v{U[j]}, v{S[2*j+1]}, v{S[2*j+1]} row_ror:8 row_mask:0xf bank_mask:0xc')
    V0, V1 = P[7], P[9]
    a(f'v_add_f32_dpp v{V0}, v{U[0]}, v{U[0]} row_half_mirror row_mask:0xf bank_mask:0x5')
    a(f'v_add_f32_dpp v{V1}, v{U[2]}, v{U[2]} row_half_mirror row_mask:0xf bank_mask:0xf')
    a(f'v_add_f32_dpp v{V0}, v{U[1]}, v{U[1]} row_half_mirror row_mask:0xf bank_mask:0xa')
    for mod in ('quad_perm:[1,0,3,2]', 'quad_perm:[2,3,0,1]'):
        for v in (V0, V1):
            a(f'v_add_f32_dpp v{v}, v{v}, v{v} {mod} row_mask:0xf bank_mask:0xf')
    a(f's_mul_i32 s88, s{sub}, 192')
    a(f's_add_u32 s88, s88, {PBO}')
    a('s_mul_i32 s89, s4, 192')
    a(f's_add_u32 s89, s89, {PBS - 192}')
    a(f's_cmp_eq_u32 s{cont}, 1')
    a('s_cselect_b32 s88, s89, s88')
    a('s_mul_i32 s89, s5, 96')
    a('s_add_u32 s88, s88, s89')
    a(f'v_add_u32 v{ad}, s88, v{V_PO0}')
    a(f'v_add_u32 v{t0}, s88, v{V_PO1}')
    a('s_mov_b32 exec_lo, 0x11111111')
    a('s_mov_b32 exec_hi, 0x11111111')
    a(f'ds_write_b32 v{ad}, v{V0}')
    a('s_mov_b32 exec_lo, 0x01010101')
    a('s_mov_b32 exec_hi, 0x01010101')
    a(f'ds_write_b32 v{t0}, v{V1}')
    a('s_mov_b64 exec, -1')
    if tag == 'a':
        for i in range(32): a(f'v_pk_mov_b32 {vr(ACC+2*i,2)}, 0, 0')

def hpart(a, WH):
    HA = 112
    HF = [96, 16]
    a(f's_mov_b32 s89, {NLN2:#x}')
    for b in range(4):
        a(f'v_lshlrev_b32 v{V_WX+b}, 16, v{V_WX+b}')
        a(f'v_mul_f32 v{V_WX+b}, s89, v{V_WX+b}')
    a('v_and_b32 v13, 15, v1')
    a('v_lshrrev_b32 v14, 4, v1')
    a('v_xor_b32 v15, v14, v13')
    a('v_lshlrev_b32 v15, 4, v15')
    a('v_lshl_add_u32 v15, v13, 9, v15')
    a(f'v_add_u32 v15, {HT}, v15')
    for ksp in range(8):
        a(f'v_xor_b32 v12, {(4*ksp % 16)*16}, v15')
        off = (256 if ksp >= 4 else 0)
        fr = HF[ksp % 2]
        for rb in range(3):
            a(f'ds_read_b128 {vr(fr+4*rb,4)}, v12 offset:{off + rb*8192}')
        a('s_waitcnt lgkmcnt(0)')
        for cb in range(2):
            wreg = vr(WH + 4 * (2 * ksp + cb), 4)
            for rb in range(3):
                d = vr(HA + 8 * rb + 4 * cb, 4)
                c = '0' if ksp == 0 else d
                a(f'v_mfma_f32_16x16x32_bf16 {d}, {vr(fr+4*rb,4)}, {wreg}, {c}')
    for rb in range(3):
        for r in range(4):
            a(f'v_cvt_pk_bf16_f32 v{H1+4*rb+r}, v{HA+8*rb+r}, v{HA+8*rb+4+r}')

def consts(a, first):
    a('v_lshlrev_b32 v12, 4, v1')
    a('s_lshl_b32 s88, s5, 12')
    a(f's_add_u32 s88, s88, {W3P}')
    for b in range(4):
        a(f'buffer_load_dwordx4 {vr(W3+4*b,4)}, v12, s[40:43], s88 offen offset:{1024*b}')
    a('v_and_b32 v13, 31, v1')
    a('v_lshrrev_b32 v14, 5, v1')
    a('s_lshl_b32 s88, s5, 8')
    a('v_lshlrev_b32 v15, 1, v13')
    if first:
        for b in range(4):
            a(f'buffer_load_ushort v{V_WX+b}, v15, s[68:71], s88 offen offset:{64*b}')
    a('s_lshl_b32 s88, s5, 11')
    a(f's_add_u32 s88, s88, {WDP}')
    a('v_lshlrev_b32 v15, 4, v13')
    for b in range(4):
        a(f'buffer_load_dword v{WDA+4*b}, v15, s[40:43], s88 offen offset:{512*b}')
        for i in range(1, 4): a(f'v_mov_b32 v{WDA+4*b+i}, 0')
def selconst(a):
    a('v_and_b32 v13, 31, v1')
    a('v_lshrrev_b32 v14, 5, v1')
    a('v_lshlrev_b32 v16, 3, v14')
    a('v_sub_u32 v16, v13, v16')
    for sidx in range(2):
        for p in range(4):
            lo, hi = 16*sidx + 2*p, 16*sidx + 2*p + 1
            a(f'v_cmp_eq_u32 vcc, {lo}, v16')
            a(f'v_mov_b32 v17, 0x3f80')
            a(f'v_cndmask_b32 v21, 0, v17, vcc')
            a(f'v_cmp_eq_u32 vcc, {hi}, v16')
            a(f'v_mov_b32 v17, 0x3f800000')
            a(f'v_cndmask_b32 v{SEL+4*sidx+p}, v21, v17, vcc')
    for i in range(4): a(f'v_mov_b32 v{OH+i}, 0')

WH = 112
WM = 16
def tail_loads_m(a):
    a('v_lshlrev_b32 v12, 4, v1')
    a('s_lshl_b32 s88, s3, 15')
    a(f's_add_u32 s88, s88, {WHP + 16384}')
    for j in range(16):
        a(f's_add_u32 s89, s88, {j*1024}')
        a(f'buffer_load_dwordx4 {vr(WM+4*j,4)}, v12, s[40:43], s89 offen')
def tail_loads_ht(a):
    a('v_lshrrev_b32 v13, 5, v1')
    a('s_mul_i32 s89, s3, 6')
    a('v_add_u32 v13, s89, v13')
    a('v_and_b32 v10, 31, v1')
    a('s_mul_i32 s90, s2, 40')
    for j in range(3):
        a('v_and_b32 v11, 15, v13')
        a('v_xor_b32 v11, v11, v10')
        a('v_lshlrev_b32 v11, 4, v11')
        a('v_add_u32 v12, s90, v13')
        a('v_lshl_add_u32 v11, v12, 9, v11')
        a('s_and_b32 s91, s3, 1')
        a('s_lshl_b32 s91, s91, 7')
        a('s_add_u32 s91, s91, s87')
        a(f's_add_u32 m0, s91, {j*1024}')
        a('buffer_load_dwordx4 v11, s[56:59], 0 offen lds')
        if j < 2: a('v_add_u32 v13, 2, v13')
def tail_loads_wh(a):
    a('v_lshlrev_b32 v12, 4, v1')
    a('s_lshl_b32 s88, s3, 15')
    a(f's_add_u32 s88, s88, {WHP}')
    for j in range(16):
        a(f's_add_u32 s89, s88, {j*1024}')
        a(f'buffer_load_dwordx4 {vr(WH+4*j,4)}, v12, s[40:43], s89 offen')

def gen_k2(a, dbg=False):
    a.label('k2_main_kernel')
    a(f's_cmp_ge_u32 s2, {T_}')
    a('s_cbranch_scc1 k2_done')
    load_kernargs(a)
    a('v_and_b32 v1, 63, v0')
    a('v_lshrrev_b32 v2, 6, v0')
    a('v_readfirstlane_b32 s3, v2')
    a('s_lshr_b32 s4, s3, 1')
    a('s_sub_u32 s88, 5, s4')
    a('s_cmp_ge_u32 s3, 4')
    a('s_cselect_b32 s4, s88, s4')
    a('s_and_b32 s5, s3, 1')
    a('s_waitcnt lgkmcnt(0)')
    srd(a, 40, 36, 37, 0, 0x2000000)
    a('s_mov_b32 s66, 0')
    a('s_mov_b32 s67, 0')
    a('s_mov_b32 s27, 0')
    a('s_mov_b32 s15, 0')
    a('s_mov_b32 s64, 0')
    a('s_mov_b32 s65, -1')
    a.label('k2_batch')
    a('s_cmp_eq_u32 s66, 2')
    a('s_cbranch_scc1 k2_ld_ovf')
    a('v_lshlrev_b32 v15, 4, v0')
    a('s_mul_i32 s88, s2, 16000')
    a(f's_add_u32 s88, s88, {CELL}')
    a('buffer_load_dwordx4 v[24:27], v15, s[40:43], s88 offen')
    a('v_cmp_gt_u32 vcc, 488, v0')
    a('v_mov_b32 v28, 0')
    a('s_and_saveexec_b64 s[90:91], vcc')
    a('v_add_u32 v16, 8192, v15')
    a('buffer_load_dwordx4 v[28:31], v16, s[40:43], s88 offen')
    a('s_mov_b64 exec, s[90:91]')
    a('s_branch k2_ld_done')
    a.label('k2_ld_ovf')
    a('v_add_u32 v16, s21, v0')
    a('v_lshlrev_b32 v15, 3, v16')
    a('s_mul_i32 s88, s67, 5120')
    a(f's_add_u32 s88, s88, {OVF}')
    a('v_mov_b32 v25, -1')
    a('v_cmp_gt_u32 vcc, s97, v16')
    a('s_mov_b32 s89, 160')
    a('v_cmp_gt_u32 s[90:91], s89, v0')
    a('s_and_b64 vcc, vcc, s[90:91]')
    a('s_and_saveexec_b64 s[90:91], vcc')
    a('buffer_load_dwordx2 v[24:25], v15, s[40:43], s88 offen')
    a('s_mov_b64 exec, s[90:91]')
    a.label('k2_ld_done')
    a('v_mov_b32 v7, 0')
    for rep in range(2):
        a(f'v_add_u32 v16, {rep*512}, v0')
        a(f'v_cmp_gt_u32 vcc, {SC}, v16')
        a('s_and_saveexec_b64 s[90:91], vcc')
        a('v_lshlrev_b32 v15, 2, v16')
        a(f'v_add_u32 v15, {SRC}, v15')
        a('v_mov_b32 v17, 0x80000000')
        a(f'ds_write_b32 v15, v{V_Z}')
        a(f'ds_write_b32 v15, v{V_Z} offset:{W1-SRC}')
        a(f'ds_write_b32 v15, v17 offset:{XA-SRC}')
        a('s_mov_b64 exec, s[90:91]')
    a('v_cmp_gt_u32 vcc, 12, v0')
    a('s_and_saveexec_b64 s[90:91], vcc')
    a('v_lshlrev_b32 v15, 2, v0')
    a(f'v_add_u32 v15, {CNT}, v15')
    a(f'ds_write_b32 v15, v{V_Z}')
    a('s_mov_b64 exec, s[90:91]')
    a('s_cmp_eq_u32 s66, 0')
    a('s_cbranch_scc0 k2_re')
    srd(a, 44, 36, 37, BT, N * 512)
    srd(a, 48, 20, 21, 0, E * 32)
    srd(a, 52, 18, 19, 0, N * 6)
    srd(a, 56, 16, 17, 0, N * 512)
    srd(a, 60, 32, 33, 0, 2590000 * 2)
    srd(a, 68, 28, 29, 0, 512)
    stamp(a, 0, dbg)
    stamp(a, 8, dbg, 252, 's_memtime')
    a('v_lshlrev_b32 v15, 2, v0')
    a(f'v_add_u32 v15, {OVFC}, v15')
    a('v_cmp_gt_u32 vcc, 250, v0')
    a('v_mov_b32 v20, 0')
    a('s_and_saveexec_b64 s[90:91], vcc')
    a('buffer_load_dword v20, v15, s[40:43], 0 offen')
    a('s_mov_b64 exec, s[90:91]')
    a('s_mul_i32 s88, s2, 40')
    a('v_add_u32 v16, s88, v0')
    a('v_mul_u32_u24 v17, 6, v16')
    a('v_and_b32 v17, -4, v17')
    a('v_cmp_gt_u32 vcc, 40, v0')
    a('s_and_saveexec_b64 s[90:91], vcc')
    a('buffer_load_dwordx2 v[18:19], v17, s[52:55], 0 offen')
    a('s_mov_b64 exec, s[90:91]')
    a('s_lshl_b32 s88, s3, 11')
    a(f's_add_u32 s88, s88, {JIT}')
    a(f'v_lshlrev_b32 v{V_LRD}, 4, v1')
    a(f'v_add_u32 v{V_LRD}, s88, v{V_LRD}')
    z = T
    for i in range(4): a(f'v_mov_b32 v{z+i}, 0')
    a(f'ds_write_b128 v{V_LRD}, v[{z}:{z+3}]')
    a(f'ds_write_b128 v{V_LRD}, v[{z}:{z+3}] offset:1024')
    a('v_cmp_gt_u32 vcc, 120, v0')
    a('s_and_saveexec_b64 s[90:91], vcc')
    a('v_lshlrev_b32 v16, 2, v0')
    a(f'v_add_u32 v16, {PACC}, v16')
    a(f'ds_write_b32 v16, v{V_Z}')
    a('s_mov_b64 exec, s[90:91]')
    a('v_cmp_gt_u32 vcc, 72, v0')
    a('s_and_saveexec_b64 s[90:91], vcc')
    a('v_lshrrev_b32 v16, 3, v0')
    a('v_and_b32 v17, 7, v0')
    a('v_cmp_eq_u32 vcc, v16, v17')
    a('v_mov_b32 v17, 0x3f80')
    a('v_cndmask_b32 v17, 0, v17, vcc')
    a('v_lshlrev_b32 v16, 1, v0')
    a(f'v_add_u32 v16, {LUT}, v16')
    a('ds_write_b16 v16, v17')
    a('s_mov_b64 exec, s[90:91]')
    a('s_waitcnt lgkmcnt(0)')
    a('s_barrier')
    a('v_lshlrev_b32 v12, 4, v1')
    a('s_mul_i32 s88, s2, 20480')
    a(f's_add_u32 s88, s88, {AT}')
    for j in range(3):
        a(f's_lshl_b32 s89, s3, 10')
        a(f's_add_u32 s89, s89, {j*8192}')
        if j == 2:
            a('s_cmp_ge_u32 s3, 4')
            a('s_cbranch_scc1 k2_noat')
        a(f's_add_u32 m0, s89, {ATL}')
        a('s_add_u32 s89, s89, s88')
        a('buffer_load_dwordx4 v12, s[40:43], s89 offen lds')
    a.label('k2_noat')
    consts(a, True)
    a(f's_mov_b32 s92, {NL2E:#x}')
    a('s_lshl_b32 s86, s5, 8')
    a(f's_mul_i32 s87, s3, {STGW}')
    a('s_lshl_b32 s39, s3, 10')
    a(f's_add_u32 s39, s39, {EAP}')
    a(f'v_lshlrev_b32 v{V_E4}, 2, v13')
    a(f'v_add_u32 v{V_E4}, {XA}, v{V_E4}')
    a(f'v_add_u32 v{V_E1}, {SV}, v13')
    a(f'v_lshrrev_b32 v{V_EI}, 1, v1')
    a(f'v_lshlrev_b32 v{V_EI}, 2, v{V_EI}')
    a(f'v_add_u32 v{V_EI}, {W1}, v{V_EI}')
    a(f'v_and_b32 v{V_HM}, 1, v1')
    a(f'v_lshlrev_b32 v{V_HM}, 4, v{V_HM}')
    a(f'v_lshlrev_b32 v{V_LCE}, 5, v13')
    a(f'v_lshl_add_u32 v{V_LCE}, v14, 4, v{V_LCE}')
    a(f'v_add_u32 v{V_LCE}, s39, v{V_LCE}')
    a(f'v_lshrrev_b32 v{V_LCS}, 4, v1')
    a(f'v_lshlrev_b32 v{V_LCS}, 5, v{V_LCS}')
    a(f'v_add_u32 v{V_LCS}, {SRC}, v{V_LCS}')
    a('v_bfe_u32 v16, v13, 4, 1')
    a(f'v_lshlrev_b32 v{V_LCL}, 10, v16')
    a('v_bfe_u32 v16, v13, 2, 1')
    a(f'v_lshl_add_u32 v{V_LCL}, v16, 9, v{V_LCL}')
    a('v_bfe_u32 v16, v13, 3, 1')
    a(f'v_lshl_add_u32 v{V_LCL}, v16, 3, v{V_LCL}')
    a('v_and_b32 v16, 3, v13')
    a(f'v_lshl_add_u32 v{V_LCL}, v16, 1, v{V_LCL}')
    a(f'v_lshl_add_u32 v{V_LCL}, v14, 5, v{V_LCL}')
    a('s_lshl_b32 s88, s3, 11')
    a(f's_add_u32 s88, s88, {JIT}')
    a(f'v_add_u32 v{V_LCL}, s88, v{V_LCL}')
    a('v_and_b32 v16, 7, v13')
    a(f'v_mul_u32_u24 v{V_RB}, 1040, v16')
    a('v_lshrrev_b32 v16, 3, v13')
    a(f'v_lshl_add_u32 v{V_RB}, v16, 8, v{V_RB}')
    a(f'v_lshl_add_u32 v{V_RB}, v14, 4, v{V_RB}')
    a(f'v_add_u32 v{V_RB}, s87, v{V_RB}')
    a('v_and_b32 v16, 15, v1')
    a(f'v_lshlrev_b32 v{V_LCD}, 4, v16')
    a('s_lshl_b32 s88, s5, 7')
    a('v_add_u32 v16, s88, v13')
    a('v_lshlrev_b32 v16, 4, v16')
    a(f'v_add_u32 v{V_LCA}, {ATL}, v16')
    a(f'v_mov_b32 v{V_LUT0}, {LUT}')
    a(f'v_mov_b32 v{V_LUT8}, {LUT+128}')
    a('v_lshrrev_b32 v16, 4, v1')
    a('v_bfe_u32 v17, v1, 2, 2')
    a('v_and_b32 v21, 1, v17')
    a('v_lshrrev_b32 v22, 1, v17')
    a('v_lshl_add_u32 v21, v21, 1, v22')
    a('v_and_b32 v23, 1, v16')
    a('v_lshl_add_u32 v21, v21, 1, v23')
    a('v_lshl_add_u32 v22, v22, 1, v23')
    a('v_add_u32 v22, 8, v22')
    a('v_lshrrev_b32 v16, 1, v16')
    a('v_mul_u32_u24 v16, 12, v16')
    a('v_add_u32 v21, v21, v16'); a('v_add_u32 v22, v22, v16')
    a(f'v_lshlrev_b32 v{V_PO0}, 2, v21'); a(f'v_lshlrev_b32 v{V_PO1}, 2, v22')
    selconst(a)
    a('s_waitcnt vmcnt(14)')
    stamp(a, 1, dbg)
    a('s_mul_i32 s88, s2, 40')
    a('v_add_u32 v16, s88, v0')
    a('v_and_b32 v16, 1, v16')
    a('v_lshlrev_b32 v16, 4, v16')
    a('v_alignbit_b32 v22, v19, v18, v16')
    a('v_lshrrev_b32 v23, v16, v19')
    a('v_lshlrev_b32 v15, 3, v0')
    a(f'v_add_u32 v15, {POST}, v15')
    a('v_cmp_gt_u32 vcc, 40, v0')
    a('s_and_saveexec_b64 s[90:91], vcc')
    a('ds_write_b64 v15, v[22:23]')
    a('s_mov_b64 exec, s[90:91]')
    a('v_cmp_ne_u32 vcc, 0, v20')
    a('s_cbranch_vccz k2_later')
    a(f'v_mov_b32 v15, {CNT+32}')
    a('v_mov_b32 v16, 1')
    a('ds_write_b32 v15, v16')
    a('s_branch k2_later')
    a.label('k2_re')
    consts(a, False)
    selconst(a)
    a('s_waitcnt vmcnt(0) lgkmcnt(0)')
    a('s_barrier')
    a.label('k2_later')
    CI0, CI1, VC0, VC1 = 21, 22, 18, 19
    a('s_cmp_eq_u32 s66, 2')
    a('s_cbranch_scc1 k2_v_ovf')
    a(f'v_lshrrev_b32 v{CI0}, 2, v0')
    a(f'v_add_u32 v{CI1}, 128, v{CI0}')
    a(f'v_mov_b32_dpp v{VC0}, v24 quad_perm:[0,0,0,0] row_mask:0xf bank_mask:0xf')
    a(f'v_mov_b32_dpp v{VC1}, v28 quad_perm:[0,0,0,0] row_mask:0xf bank_mask:0xf')
    a('v_and_b32 v15, 3, v0')
    a('v_lshlrev_b32 v15, 2, v15')
    a('v_subrev_u32 v15, 1, v15')
    for r in (VC0, VC1):
        a(f'v_min_u32 v{r}, {CAP}, v{r}')
        a(f'v_sub_i32 v{r}, v{r}, v15')
    a('s_cmp_eq_u32 s66, 1')
    a('s_cbranch_scc0 k2_v_done')
    for r, c in ((VC0, CI0), (VC1, CI1)):
        a(f'v_subrev_u32 v15, s67, v{c}')
        a('v_cmp_gt_u32 vcc, 12, v15')
        a(f'v_cndmask_b32 v{r}, 0, v{r}, vcc')
    a('s_branch k2_v_done')
    a.label('k2_v_ovf')
    a(f'v_mov_b32 v{CI0}, s67'); a(f'v_mov_b32 v{CI1}, s67')
    a(f'v_cmp_eq_u32 vcc, s2, v25')
    a(f'v_cndmask_b32 v{VC0}, 0, 1, vcc')
    a(f'v_mov_b32 v{VC1}, 0')
    a.label('k2_v_done')
    a(f'v_mul_u32_u24 v{CI0}, 640, v{CI0}')
    a(f'v_mul_u32_u24 v{CI1}, 640, v{CI1}')
    MS = [72, 74, 76, 80, 82, 88, 90, 94]
    for i in range(8):
        vc = VC0 if i < 4 else VC1
        a(f'v_cmp_lt_i32 s[{MS[i]}:{MS[i]+1}], {i%4}, v{vc}')
    a('s_mov_b32 s10, 0xeeeeeeee'); a('s_mov_b32 s11, 0xeeeeeeee')
    a('s_cmp_eq_u32 s66, 2')
    a('s_cselect_b32 s10, -1, s10'); a('s_cselect_b32 s11, -1, s11')
    a(f's_and_b64 s[{MS[0]}:{MS[0]+1}], s[{MS[0]}:{MS[0]+1}], s[10:11]')
    a(f's_and_b64 s[{MS[4]}:{MS[4]+1}], s[{MS[4]}:{MS[4]+1}], s[10:11]')
    SB = 32
    for i in range(8):
        a(f'v_bfe_u32 v{SB+i}, v{24+i}, 17, 3')
        a(f'v_lshlrev_b32 v{SB+8+i}, 2, v{SB+i}')
        a(f'v_add_u32 v{SB+8+i}, {CNT}, v{SB+8+i}')
    a('v_mov_b32 v16, 1')
    for i in range(8):
        a(f's_mov_b64 exec, s[{MS[i]}:{MS[i]+1}]')
        a(f'ds_add_rtn_u32 v{T+i}, v{SB+8+i}, v16')
    a('s_mov_b64 exec, -1')
    for i in range(8):
        ci = CI0 if i < 4 else CI1
        a(f'v_and_b32 v{48+i}, 0x3fff, v{24+i}')
        a(f'v_lshlrev_b32 v{48+i}, 9, v{48+i}')
        a(f'v_lshrrev_b32 v{56+i}, 20, v{24+i}')
        a(f'v_add_u32 v{56+i}, v{56+i}, v{ci}')
        a(f'v_mul_u32_u24 v{SB+i}, {CAPS*4}, v{SB+i}')
        a(f'v_add_u32 v{SB+i}, {SRC}, v{SB+i}')
    a('s_waitcnt lgkmcnt(0)')
    for i in range(8):
        a(f'v_min_u32 v{T+i}, {CAPS-1}, v{T+i}')
        a(f'v_lshl_add_u32 v{SB+i}, v{T+i}, 2, v{SB+i}')
    for i in range(8):
        a(f's_mov_b64 exec, s[{MS[i]}:{MS[i]+1}]')
        a(f'ds_write_b32 v{SB+i}, v{48+i}')
        a(f'ds_write_b32 v{SB+i}, v{56+i} offset:{W1-SRC}')
        a(f'ds_write_b32 v{SB+i}, v{24+i} offset:{XA-SRC}')
    a('s_mov_b64 exec, -1')
    a('s_waitcnt lgkmcnt(0)')
    a('s_barrier')
    stamp(a, 2, dbg)
    PB_ = [48, 56]
    for rnd in range(2):
        b0 = PB_[rnd]
        if rnd == 1:
            a('s_cmp_eq_u32 s3, 7')
            a('s_cbranch_scc1 k2_nopos')
        a(f's_lshl_b32 s89, s3, 6')
        if rnd: a('s_add_u32 s89, s89, 512')
        a('v_add_u32 v16, s89, v1')
        a('v_lshlrev_b32 v15, 2, v16')
        a(f'v_add_u32 v{b0}, {XA}, v15')
        a(f'ds_read_b32 v{b0+1}, v{b0}')
        a('s_waitcnt lgkmcnt(0)')
        a(f'v_and_b32 v16, 0x3fff, v{b0+1}')
        a('v_mul_u32_u24 v16, 6, v16')
        a('v_and_b32 v16, -4, v16')
        a(f'v_cmp_le_i32 vcc, 0, v{b0+1}')
        a(f'v_mov_b32 v{b0+2}, 0'); a(f'v_mov_b32 v{b0+3}, 0')
        a('s_and_saveexec_b64 s[90:91], vcc')
        a(f'buffer_load_dwordx2 v[{b0+2}:{b0+3}], v16, s[52:55], 0 offen')
        a('s_mov_b64 exec, s[90:91]')
        a(f'v_bfe_u32 v16, v{b0+1}, 14, 6')
        a('v_lshlrev_b32 v16, 3, v16')
        a(f'v_add_u32 v16, {POST}, v16')
        a(f'ds_read_b64 v[{b0+4}:{b0+5}], v16')
    a.label('k2_nopos')
    a(f'v_mov_b32 v15, {CNT}')
    a('ds_read_b128 v[24:27], v15')
    a('ds_read_b32 v28, v15 offset:16')
    a('ds_read_b32 v29, v15 offset:32')
    a('s_waitcnt lgkmcnt(0)')
    a('s_mov_b32 s72, 0')
    for k in range(5):
        a(f'v_readfirstlane_b32 s88, v{24+k}')
        a('s_max_u32 s91, s91, s88') if k else a('s_mov_b32 s91, s88')
        a('s_add_u32 s89, s88, 7')
        a(f's_and_b32 s{CP+k}, s89, -8')
        a('s_add_u32 s89, s88, 31')
        a('s_lshr_b32 s89, s89, 5')
        a(f's_add_u32 s{73+k}, s{72+k}, s89')
    a('s_cmp_eq_u32 s66, 0')
    a('s_cbranch_scc0 k2_noflag2')
    a('v_readfirstlane_b32 s85, v29')
    a.label('k2_noflag2')
    a(f's_cmp_gt_u32 s91, {CAPS}')
    a('s_cselect_b32 s93, 1, 0')
    a('s_cbranch_scc1 k2_nofit1')
    a(f's_mov_b32 s88, {CW[0]}'); a(f's_mov_b32 s89, {CW[1]}')
    for k in range(1, 4):
        a(f's_cmp_eq_u32 s4, {k}')
        a(f's_cselect_b32 s88, {CW[k]}, s88')
        a(f's_cselect_b32 s89, {CW[k+1]}, s89')
    a('s_mul_i32 s88, s77, s88')
    a('s_lshr_b32 s28, s88, 6')
    a('s_mul_i32 s89, s77, s89')
    a('s_lshr_b32 s79, s89, 6')
    if 'solo' in FL:
        a('s_cmp_ge_u32 s3, 4')
        a('s_cselect_b32 s79, s28, s79')
    build_desc(a)
    a(f'v_readlane_b32 s78, v{V_DESC}, 0')
    a(f'v_readlane_b32 s94, v{V_DESC}, 1')
    a(f'v_readlane_b32 s6, v{V_DESC}, 2')
    a('s_mov_b32 s30, 2')
    read_lists(a, 78)
    a('s_waitcnt lgkmcnt(0)')
    issue_loads(a)
    a('s_bfe_u32 s80, s78, 0x30010')
    a('s_mov_b32 s38, s72')
    for k in range(1, 5):
        a(f's_cmp_eq_u32 s80, {k}')
        a(f's_cselect_b32 s38, s{72+k}, s38')
    a('s_cmp_gt_u32 s28, s38')
    a('s_cselect_b32 s38, 1, 0')
    a.label('k2_nofit1')
    stamp(a, 12, dbg)
    a('s_cmp_eq_u32 s93, 0')
    a('s_cbranch_scc1 k2_fits')
    a('s_mov_b32 s66, 1')
    a('s_mov_b32 s67, 0')
    a('s_waitcnt vmcnt(0) lgkmcnt(0)')
    a('s_barrier')
    a('s_branch k2_batch')
    a.label('k2_fits')
    stamp(a, 10, dbg)
    a('s_waitcnt vmcnt(9) lgkmcnt(0)')
    a('s_cmp_eq_u32 s15, 0')
    a('s_cbranch_scc0 k2_wxdone')
    a('s_mov_b32 s15, 1')
    a(f's_mov_b32 s89, {NLN2:#x}')
    for b in range(4):
        a(f'v_lshlrev_b32 v{V_WX+b}, 16, v{V_WX+b}')
        a(f'v_mul_f32 v{V_WX+b}, s89, v{V_WX+b}')
    a.label('k2_wxdone')
    for rnd in range(2):
        b0 = PB_[rnd]
        if rnd == 1:
            a('s_cmp_eq_u32 s3, 7')
            a('s_cbranch_scc1 k2_nogeo')
        e_, p0, p1, d0, d1 = b0+1, b0+2, b0+3, b0+4, b0+5
        t = 16
        a(f'v_and_b32 v15, 1, v{e_}')
        a('v_lshlrev_b32 v15, 4, v15')
        a(f'v_alignbit_b32 v{t}, v{p1}, v{p0}, v15')
        a(f'v_lshrrev_b32 v{t+1}, v15, v{p1}')
        a(f'v_lshlrev_b32 v{t+2}, 16, v{t}'); a(f'v_and_b32 v{t+3}, 0xffff0000, v{t}'); a(f'v_lshlrev_b32 v{t+4}, 16, v{t+1}')
        a(f'v_lshlrev_b32 v{t+5}, 16, v{d0}'); a(f'v_and_b32 v{t+6}, 0xffff0000, v{d0}'); a(f'v_lshlrev_b32 v{t+7}, 16, v{d1}')
        a(f'v_sub_f32 v{t+2}, v{t+5}, v{t+2}'); a(f'v_sub_f32 v{t+3}, v{t+6}, v{t+3}'); a(f'v_sub_f32 v{t+4}, v{t+7}, v{t+4}')
        a(f'v_cvt_pk_bf16_f32 v{t}, v{t+2}, v{t+3}')
        a(f'v_cvt_pk_bf16_f32 v{t+1}, v{t+4}, v{V_Z}')
        a(f'v_lshlrev_b32 v{t+2}, 16, v{t}'); a(f'v_and_b32 v{t+3}, 0xffff0000, v{t}'); a(f'v_lshlrev_b32 v{t+4}, 16, v{t+1}')
        a(f'v_mul_f32 v{t+2}, v{t+2}, v{t+2}'); a(f'v_mul_f32 v{t+3}, v{t+3}, v{t+3}'); a(f'v_mul_f32 v{t+4}, v{t+4}, v{t+4}')
        a(f'v_cvt_pk_bf16_f32 v{t+5}, v{t+2}, v{t+3}')
        a(f'v_cvt_pk_bf16_f32 v{t+6}, v{t+4}, v{V_Z}')
        a(f'v_lshlrev_b32 v{t+2}, 16, v{t+5}'); a(f'v_and_b32 v{t+3}, 0xffff0000, v{t+5}'); a(f'v_lshlrev_b32 v{t+4}, 16, v{t+6}')
        a(f'v_add_f32 v{t+2}, v{t+2}, v{t+3}'); a(f'v_add_f32 v{t+2}, v{t+2}, v{t+4}')
        a(f'v_cvt_pk_bf16_f32 v{t+2}, v{t+2}, v{V_Z}')
        a(f'v_and_b32 v{t+3}, 0xffff, v{t}')
        a(f'v_lshl_or_b32 v{t+3}, v{t+2}, 16, v{t+3}')
        a(f'v_alignbit_b32 v{t+4}, v{t+1}, v{t}, 16')
        a(f'v_bfe_u32 v{t+5}, v{e_}, 14, 3')
        a(f'v_or_b32 v{t+5}, 0x80, v{t+5}')
        a(f'v_cmp_le_i32 vcc, 0, v{e_}')
        for r in (t+3, t+4, t+5):
            a(f'v_cndmask_b32 v{r}, 0, v{r}, vcc')
        a(f'ds_write_b32 v{b0}, v{t+3}')
        a(f'ds_write_b32 v{b0}, v{t+4} offset:{XB-XA}')
        a(f'v_subrev_u32 v15, {XA}, v{b0}')
        a('v_lshrrev_b32 v15, 2, v15')
        a(f'v_add_u32 v15, {SV}, v15')
        a(f'ds_write_b8 v15, v{t+5}')
    a.label('k2_nogeo')
    a('s_cmp_eq_u32 s3, 7')
    a('s_cbranch_scc0 k2_nopad')
    a('v_lshlrev_b32 v15, 2, v1')
    a(f'v_add_u32 v15, {XA + 960*4}, v15')
    a('s_mov_b32 exec_hi, 0')
    a(f'ds_write_b32 v15, v{V_Z}')
    a(f'ds_write_b32 v15, v{V_Z} offset:{XB-XA}')
    a(f'v_add_u32 v15, {SV + 960}, v1')
    a(f'ds_write_b8 v15, v{V_Z}')
    a('s_mov_b32 exec_hi, -1')
    a.label('k2_nopad')
    for i in range(64): a(f'v_mov_b32 v{ACC+i}, 0')
    for i in range(8): a(f'v_mov_b32 v{L+i}, 0'); a(f'v_mov_b32 v{PRE+16+i}, 0')
    for k in range(1, 4):
        a(f's_mul_i32 s10, s77, {CW[k]}')
        a('s_lshr_b32 s10, s10, 6')
        a(f's_mul_i32 s11, s77, {CW[k+1]}')
        a('s_lshr_b32 s11, s11, 6')
        a('s_mov_b32 s12, 0'); a('s_mov_b32 s13, s72')
        for j in range(1, 5):
            a(f's_cmp_ge_u32 s10, s{72+j}')
            a(f's_cselect_b32 s12, {j}, s12')
            a(f's_cselect_b32 s13, s{72+j}, s13')
        a('s_cmp_lt_u32 s10, s11')
        a('s_cselect_b32 s12, s12, 15')
        a('s_cmp_gt_u32 s10, s13')
        a(f's_cselect_b32 s{31+k}, s12, 15')
    a('s_waitcnt lgkmcnt(0)')
    a('s_barrier')
    stamp(a, 3, dbg)
    wstamp(a, 0, dbg)
    a('s_bitcmp1_b32 s78, 20')
    a('s_cbranch_scc0 k2_edge_done')
    a('s_waitcnt vmcnt(0)')
    read_geo(a, 78)
    read_rows(a)
    read_wda(a, 78)
    a('s_waitcnt lgkmcnt(12)')
    build_xy(a)
    read_ea_oh(a)
    a('s_waitcnt lgkmcnt(0)')
    read_lists(a, 94)
    a(f'v_or_b32 v{OH}, v{OH}, v{V_D2}')
    A00 = A_ops(0, 0)
    for x in A00[0]: a(x)
    a('s_waitcnt lgkmcnt(0)')
    a('s_bitcmp1_b32 s94, 20')
    a('s_cbranch_scc0 k2_p_nodma')
    issue_loads(a)
    a.label('k2_p_nodma')
    for m in A00[1:]:
        for x in m: a(x)
    a('s_mov_b32 s13, 0')
    a('s_mov_b32 s14, 0')
    a('s_mov_b32 s12, 0')
    wstamp(a, 1, dbg)
    def body(a, full):
        tg = 'f' if full else 'g'
        quarter(a, 0, 0, C_ops(3, 1), full)
        jit_l(a, full)
        A = A_ops(1, 1)
        quarter(a, 0, 1, A[0:2], full); quarter(a, 0, 2, A[2:3], full); quarter(a, 0, 3, A[3:4], full)
        a('s_bitcmp1_b32 s13, 19')
        a('s_cbranch_scc1 k2_flush')
        a.label(f'k2_nofl{tg}')
        a('s_waitcnt lgkmcnt(0)')
        quarter(a, 1, 0, C_ops(0, 0), full)
        read_geo(a, 94)
        A = A_ops(2, 0)
        quarter(a, 1, 1, A[0:2], full); quarter(a, 1, 2, A[2:3], full); quarter(a, 1, 3, A[3:4], full)
        A = A_ops(3, 1)
        quarter(a, 0, 0, C_ops(1, 1), full)
        quarter(a, 0, 1, A[0:2], full)
        a('s_waitcnt vmcnt(0) lgkmcnt(0)')
        read_rows(a)
        build_xy(a)
        quarter(a, 0, 2, A[2:3], full); quarter(a, 0, 3, A[3:4], full)
        read_ea_oh(a)
        read_lists(a, 6)
        a('s_xor_b32 s88, s94, s78')
        a('s_and_b32 s88, s88, 0x70000')
        a(f's_cbranch_scc1 k2_wda{tg}')
        a.label(f'k2_wdar{tg}')
        D = Asm()
        D.label(f'k2_wda{tg}')
        read_wda(D, 94)
        D(f's_branch k2_wdar{tg}')
        DEFER.extend(D.lines)
        quarter(a, 1, 0, C_ops(2, 0), full)
        a('s_waitcnt lgkmcnt(0)')
        a(f'v_or_b32 v{OH}, v{OH}, v{V_D2}')
        a('s_bitcmp1_b32 s6, 20')
        a(f's_cbranch_scc0 k2_late{tg}')
        issue_loads(a)
        a.label(f'k2_nx3{tg}')
        D = Asm()
        D.label(f'k2_late{tg}')
        D('s_cmp_eq_u32 s12, 0')
        D(f's_cbranch_scc0 k2_late2{tg}')
        D('s_mov_b32 s12, 1')
        tail_loads_ht(D)
        D.label(f'k2_late2{tg}')
        D('s_bitcmp1_b32 s94, 20')
        D(f's_cbranch_scc1 k2_nx3{tg}')
        tail_loads_wh(D)
        D(f's_branch k2_nx3{tg}')
        DEFER.extend(D.lines)
        A = A_ops(0, 0)
        quarter(a, 1, 1, A[0:2], full); quarter(a, 1, 2, A[2:3], full); quarter(a, 1, 3, A[3:4], full)
    if 'priobig' in FL:
        a('s_cmp_lt_u32 s3, 4')
        a('s_cbranch_scc0 k2_np0')
        a('s_setprio 1')
        a.label('k2_np0')
    if 'prio1' in FL:
        a('s_cmp_ge_u32 s3, 4')
        a('s_cbranch_scc0 k2_np1')
        a('s_setprio 1')
        a.label('k2_np1')
    if 'prioalt' in FL:
        a('s_lshr_b32 s12, s3, 2')
    a.label('k2_grp')
    if 'prioalt' in FL:
        a('s_xor_b32 s12, s12, 1')
        a('s_cmp_eq_u32 s12, 1')
        a('s_cbranch_scc1 k2_pa1')
        a('s_setprio 0')
        a('s_branch k2_pa2')
        a.label('k2_pa1')
        a('s_setprio 1')
        a.label('k2_pa2')
    a('s_bitcmp1_b32 s78, 21')
    a('s_cbranch_scc0 k2_gen')
    body(a, True)
    a.label('k2_rot')
    a('s_mov_b32 s13, s78'); a('s_mov_b32 s14, s38')
    a('s_bitcmp1_b32 s78, 19')
    a('s_cselect_b32 s38, 0, s38')
    a('s_mov_b32 s78, s94'); a('s_mov_b32 s94, s6')
    a('s_add_u32 s30, s30, 1')
    a(f'v_readlane_b32 s6, v{V_DESC}, s30')
    a('s_bitcmp1_b32 s78, 20')
    a('s_cbranch_scc1 k2_grp')
    G = Asm()
    G.label('k2_gen')
    G('s_bfe_u32 s81, s78, 0x6000a')
    save = list(DEFER); DEFER.clear()
    body(G, False)
    G('s_branch k2_rot')
    G.label('k2_flush')
    flush(G, 13, 14, 'a')
    G('s_bitcmp1_b32 s78, 21')
    G('s_cbranch_scc1 k2_noflf')
    G('s_branch k2_noflg')
    inner = list(DEFER); DEFER.clear()
    DEFER.extend(save); DEFER.extend(G.lines); DEFER.extend(inner)
    wstamp(a, 2, dbg)
    wstamp(a, 3, dbg)
    for m in C_ops(3, 1):
        for x in m: a(x)
    flush(a, 13, 14, 'b')
    if False:
        a('s_lshl_b32 s88, s2, 3'); a('s_add_u32 s88, s88, s3'); a('s_lshl_b32 s88, s88, 5')
        a(f's_add_u32 s88, s88, {DBGW + 0x20000}')
        a(f'v_mov_b32 v{V_A}, 0')
        for i in range(6): a(f'v_mov_b32 v{T+i}, v{246+i}')
        a('s_mov_b64 exec, 1')
        a(f'buffer_store_dwordx4 {vr(T,4)}, v{V_A}, s[40:43], s88 offen')
        a(f'buffer_store_dwordx2 {vr(T+4,2)}, v{V_A}, s[40:43], s88 offen offset:16')
        a('s_mov_b64 exec, -1')
    a('s_branch k2_edge_done2')
    a.label('k2_edge_done')
    tail_loads_ht(a)
    tail_loads_wh(a)
    a.label('k2_edge_done2')
    wstamp(a, 4, dbg)
    tail_loads_m(a)
    wstamp(a, 5, dbg)
    a('s_waitcnt vmcnt(32) lgkmcnt(0)')
    wstamp(a, 6, dbg)
    a('s_barrier')
    wstamp(a, 7, dbg)
    stamp(a, 4, dbg)
    a('s_mov_b32 s7, s32'); a('s_mov_b32 s8, s33'); a('s_mov_b32 s9, s34')
    a('v_lshlrev_b32 v176, 3, v0')
    for k in range(1, 4):
        a(f's_cmp_eq_u32 s{6+k}, 15')
        a(f's_cbranch_scc1 k2_mg{k}')
        a(f's_lshl_b32 s11, s{6+k}, 12')
        a(f's_add_u32 s11, s11, {MACC}')
        a('v_add_u32 v177, s11, v176')
        a(f'v_add_u32 v178, {SIDE + (k-1)*4096}, v176')
        a('ds_read_b64 v[180:181], v177')
        a('ds_read_b64 v[182:183], v178')
        a('s_waitcnt lgkmcnt(0)')
        for j in range(2):
            a(f'v_lshlrev_b32 v184, 16, v{180+j}'); a(f'v_lshlrev_b32 v185, 16, v{182+j}'); a('v_add_f32 v184, v184, v185')
            a(f'v_and_b32 v186, 0xffff0000, v{180+j}'); a(f'v_and_b32 v187, 0xffff0000, v{182+j}'); a('v_add_f32 v186, v186, v187')
            a(f'v_cvt_pk_bf16_f32 v{180+j}, v184, v186')
        a('ds_write_b64 v177, v[180:181]')
        a.label(f'k2_mg{k}')
    for k in range(5):
        a(f's_cmp_eq_u32 s{CP+k}, 0')
        a(f's_cbranch_scc0 k2_nz{k}')
        a(f'v_add_u32 v177, {MACC + k*4096}, v176')
        a(f'v_mov_b32 v180, 0'); a('v_mov_b32 v181, 0')
        a('ds_write_b64 v177, v[180:181]')
        a.label(f'k2_nz{k}')
    a('s_cmp_ge_u32 s3, 2')
    a('s_cbranch_scc1 k2_mgdone')
    a('v_cmp_gt_u32 vcc, 120, v0')
    a('s_and_saveexec_b64 s[90:91], vcc')
    a('v_mul_u32_u24 v177, 2731, v0')
    a('v_lshrrev_b32 v177, 16, v177')
    a('v_mul_u32_u24 v178, 24, v177')
    a('v_sub_u32 v178, v0, v178')
    a('v_lshlrev_b32 v178, 2, v178')
    a('v_mul_u32_u24 v179, 192, v177')
    a('v_add_u32 v179, v179, v178')
    a(f'v_add_u32 v179, {PBO}, v179')
    a('ds_read_b32 v180, v179')
    a('ds_read_b32 v181, v179 offset:96')
    a('v_lshlrev_b32 v182, 2, v0')
    a(f'v_add_u32 v182, {PACC}, v182')
    a('ds_read_b32 v183, v182')
    a('v_lshlrev_b32 v184, 2, v177')
    a(f'v_add_u32 v184, {CNT}, v184')
    a('ds_read_b32 v184, v184')
    a(f'v_add_u32 v179, {PBS}, v178')
    for k in range(3):
        a(f'ds_read_b32 v{185+2*k}, v179 offset:{k*192}')
        a(f'ds_read_b32 v{186+2*k}, v179 offset:{k*192+96}')
    a('s_waitcnt lgkmcnt(0)')
    a('v_add_f32 v180, v180, v181')
    a('v_cmp_ne_u32 vcc, 0, v184')
    a('v_cndmask_b32 v180, 0, v180, vcc')
    a('v_add_f32 v183, v183, v180')
    for k in range(3):
        a(f'v_add_f32 v{185+2*k}, v{185+2*k}, v{186+2*k}')
        a(f'v_cmp_eq_u32 vcc, s{7+k}, v177')
        a(f'v_cndmask_b32 v{185+2*k}, 0, v{185+2*k}, vcc')
        a(f'v_add_f32 v183, v183, v{185+2*k}')
    a('ds_write_b32 v182, v183')
    a('s_mov_b64 exec, s[90:91]')
    a.label('k2_mgdone')
    a('s_or_b32 s10, s66, s85')
    a('s_cmp_eq_u32 s10, 0')
    a('s_cbranch_scc1 k2_tail')
    a('s_waitcnt lgkmcnt(0)')
    a('s_barrier')
    a('v_lshlrev_b32 v176, 2, v0')
    a(f'v_add_u32 v177, {MACC}, v176')
    a('v_lshlrev_b32 v178, 3, v0')
    a(f's_mul_i32 s10, s2, 40960')
    a(f's_add_u32 s10, s10, {G32}')
    a('s_mov_b32 s11, 0')
    a.label('k2_sp_loop')
    a('ds_read_b32 v180, v177')
    a('v_mov_b32 v182, 0'); a('v_mov_b32 v183, 0')
    a('s_cmp_eq_u32 s27, 0')
    a('s_cbranch_scc1 k2_sp_first')
    a('buffer_load_dwordx2 v[182:183], v178, s[40:43], s10 offen sc0 sc1')
    a.label('k2_sp_first')
    a('s_waitcnt vmcnt(0) lgkmcnt(0)')
    a('v_lshlrev_b32 v184, 16, v180')
    a('v_and_b32 v185, 0xffff0000, v180')
    a('v_add_f32 v182, v182, v184')
    a('v_add_f32 v183, v183, v185')
    a('buffer_store_dwordx2 v[182:183], v178, s[40:43], s10 offen sc0 sc1')
    a('v_add_u32 v177, 2048, v177')
    a('s_add_u32 s10, s10, 4096')
    a('s_add_u32 s11, s11, 1')
    a('s_cmp_lt_u32 s11, 10')
    a('s_cbranch_scc1 k2_sp_loop')
    a('s_mov_b32 s27, 1')
    a('s_cmp_eq_u32 s66, 1')
    a('s_cbranch_scc0 k2_nb1')
    a('s_add_u32 s67, s67, 12')
    a('s_cmp_lt_u32 s67, 250')
    a('s_cbranch_scc1 k2_batch_w')
    a('s_mov_b32 s66, 3')
    a.label('k2_nb1')
    a('s_cmp_eq_u32 s85, 0')
    a('s_cbranch_scc1 k2_tail_rare')
    a('s_cmp_eq_u32 s66, 2')
    a('s_cbranch_scc1 k2_ovf_more')
    a('s_mov_b32 s66, 2')
    a('s_mov_b32 s67, -1')
    a('s_branch k2_ovf_next')
    a.label('k2_ovf_more')
    a('s_add_u32 s21, s21o, 160'.replace('s21o', 's31'))
    a('s_mov_b32 s31, s21')
    a('s_cmp_lt_u32 s21, s97')
    a('s_cbranch_scc1 k2_batch_w')
    a.label('k2_ovf_next')
    a('s_add_u32 s67, s67, 1')
    a('s_cmp_ge_u32 s67, 250')
    a('s_cbranch_scc1 k2_tail_rare')
    a('s_lshl_b32 s88, s67, 2')
    a(f's_add_u32 s88, s88, {OVFC}')
    a('s_load_dword s97, s[36:37], s88')
    a('s_waitcnt lgkmcnt(0)')
    a('s_cmp_eq_u32 s97, 0')
    a('s_cbranch_scc1 k2_ovf_next')
    a('s_mov_b32 s21, 0'); a('s_mov_b32 s31, 0')
    a.label('k2_batch_w')
    a('s_waitcnt vmcnt(0) lgkmcnt(0)')
    a('s_barrier')
    a('s_branch k2_batch')
    a.label('k2_tail_rare')
    a('s_waitcnt vmcnt(0) lgkmcnt(0)')
    a('v_lshlrev_b32 v176, 2, v0')
    a(f'v_add_u32 v177, {MACC}, v176')
    a('v_lshlrev_b32 v178, 3, v0')
    a(f's_mul_i32 s10, s2, 40960')
    a(f's_add_u32 s10, s10, {G32}')
    a('s_mov_b32 s11, 0')
    a.label('k2_cv_loop')
    a('buffer_load_dwordx2 v[182:183], v178, s[40:43], s10 offen sc0 sc1')
    a('s_waitcnt vmcnt(0)')
    a('v_cvt_pk_bf16_f32 v180, v182, v183')
    a('ds_write_b32 v177, v180')
    a('v_add_u32 v177, 2048, v177')
    a('s_add_u32 s10, s10, 4096')
    a('s_add_u32 s11, s11, 1')
    a('s_cmp_lt_u32 s11, 10')
    a('s_cbranch_scc1 k2_cv_loop')
    a.label('k2_tail')
    a('v_and_b32 v13, 15, v1')
    a('v_lshrrev_b32 v14, 4, v1')
    a('s_mul_i32 s88, s2, 40')
    a('v_lshlrev_b32 v15, 2, v14')
    a('v_add_u32 v15, s88, v15')
    a('v_lshlrev_b32 v15, 9, v15')
    a('v_lshl_add_u32 v15, v13, 2, v15')
    a('s_lshl_b32 s88, s3, 6')
    a('v_add_u32 v15, s88, v15')
    HR = 200
    for rb in range(3):
        for r in range(4):
            off = (16 * rb + r) * 512
            a(f's_mov_b32 s89, {off}')
            a(f'buffer_load_dword v{HR+4*rb+r}, v15, s[56:59], s89 offen')
    stamp(a, 5, dbg)
    TA = 176
    FR = [212, 224]
    a('v_xor_b32 v11, v14, v13')
    a('v_lshlrev_b32 v11, 4, v11')
    for rb in range(3):
        a(f'v_add_u32 v8, {16*rb}, v13')
        a('v_mul_u32_u24 v9, 43, v8')
        a('v_lshrrev_b32 v9, 8, v9')
        a('v_mul_u32_u24 v10, 6, v9')
        a('v_sub_u32 v10, v8, v10')
        a('v_add_u32 v12, 1, v9')
        a('v_lshrrev_b32 v12, 1, v12')
        a('v_lshlrev_b32 v12, 8, v12')
        a('v_lshl_add_u32 v9, v9, 13, v12')
        a('v_lshl_add_u32 v9, v10, 9, v9')
        a(f'v_add_u32 v{2+rb}, v9, v11')
    def rd_h(ksp):
        off = (256 if ksp >= 4 else 0); fr = FR[ksp % 2]
        for rb in range(3):
            a(f'v_xor_b32 v12, {(4*ksp % 16)*16}, v{2+rb}')
            a(f'ds_read_b128 {vr(fr+4*rb,4)}, v12 offset:{off}')
    def rd_m(ksp):
        off = (256 if ksp >= 4 else 0); fr = FR[ksp % 2]
        a(f'v_xor_b32 v12, {(4*ksp % 16)*16}, v11')
        for rb in range(3):
            a(f'ds_read_b128 {vr(fr+4*rb,4)}, v12 offset:{off + rb*8192}')
    rd_h(0)
    for ksp in range(8):
        fr = FR[ksp % 2]
        if ksp < 7:
            rd_h(ksp + 1)
            a(f's_waitcnt vmcnt({28 + 14 - 2*ksp}) lgkmcnt(3)')
        else:
            a(f's_waitcnt vmcnt({28 + 14 - 2*ksp}) lgkmcnt(0)')
        for cb in range(2):
            wreg = vr(WH + 4 * (2 * ksp + cb), 4)
            for rb in range(3):
                d = vr(TA + 8 * rb + 4 * cb, 4)
                c = '0' if ksp == 0 else d
                a(f'v_mfma_f32_16x16x32_bf16 {d}, {vr(fr+4*rb,4)}, {wreg}, {c}')
    a('v_lshl_add_u32 v11, v13, 9, v11')
    a(f'v_add_u32 v11, {MACC}, v11')
    a('s_waitcnt lgkmcnt(0)')
    a('s_barrier')
    rd_m(0)
    for ksp in range(8):
        fr = FR[ksp % 2]
        if ksp < 7:
            rd_m(ksp + 1)
            a(f's_waitcnt vmcnt({12 + 14 - 2*ksp}) lgkmcnt(3)')
        else:
            a(f's_waitcnt vmcnt({12 + 14 - 2*ksp}) lgkmcnt(0)')
        for cb in range(2):
            wreg = vr(WM + 4 * (2 * ksp + cb), 4)
            for rb in range(3):
                d = vr(TA + 8 * rb + 4 * cb, 4)
                a(f'v_mfma_f32_16x16x32_bf16 {d}, {vr(fr+4*rb,4)}, {wreg}, {d}')
    stamp(a, 6, dbg)
    a('s_waitcnt vmcnt(0)')
    for rb in range(3):
        if rb == 2:
            a('s_mov_b32 exec_hi, 0')
        for r in range(4):
            x0, x1 = TA + 8 * rb + r, TA + 8 * rb + 4 + r
            for k, x in enumerate((x0, x1)):
                t = 8 + k
                a(f'v_mul_f32 v{t}, s92, v{x}')
                a(f'v_exp_f32 v{t}, v{t}')
                a(f'v_add_f32 v{t}, 1.0, v{t}')
                a(f'v_rcp_f32 v{t}, v{t}')
                a(f'v_mul_f32 v{x}, v{x}, v{t}')
            h = HR + 4 * rb + r
            a(f'v_lshlrev_b32 v10, 16, v{h}')
            a(f'v_and_b32 v11, 0xffff0000, v{h}')
            a(f'v_add_f32 v{x0}, v{x0}, v10')
            a(f'v_add_f32 v{x1}, v{x1}, v11')
            a(f'v_cvt_pk_bf16_f32 v{h}, v{x0}, v{x1}')
            a(f's_mov_b32 s89, {(16 * rb + r) * 512}')
            a(f'buffer_store_dword v{h}, v15, s[60:63], s89 offen')
    a('s_mov_b64 exec, -1')
    stamp(a, 7, dbg)
    stamp(a, 9, dbg, 252, 's_memtime')
    a('s_cmp_ge_u32 s3, 2')
    a('s_cbranch_scc1 k2_done')
    a('v_cmp_gt_u32 vcc, 120, v0')
    a('s_and_saveexec_b64 s[90:91], vcc')
    a('s_cbranch_execz k2_done')
    a('v_mul_u32_u24 v16, 21846, v0')
    a('v_lshrrev_b32 v16, 16, v16')
    a('v_mul_u32_u24 v17, 3, v16')
    a('v_sub_u32 v17, v0, v17')
    a('v_lshrrev_b32 v18, 3, v16')
    a('v_mul_u32_u24 v18, 24, v18')
    a('v_and_b32 v19, 1, v16')
    a('v_mul_u32_u24 v19, 12, v19')
    a('v_add_u32 v18, v18, v19')
    a('v_bfe_u32 v19, v16, 1, 2')
    a('v_mul_u32_u24 v19, 3, v19')
    a('v_add3_u32 v18, v18, v19, v17')
    a('v_lshlrev_b32 v18, 2, v18')
    a(f'v_add_u32 v18, {PACC}, v18')
    a('ds_read_b32 v16, v18')
    a('s_mul_i32 s88, s2, 240')
    a('v_lshlrev_b32 v13, 1, v0')
    a('buffer_load_ushort v20, v13, s[52:55], s88 offen')
    a('s_waitcnt vmcnt(0) lgkmcnt(0)')
    a('v_lshlrev_b32 v20, 16, v20')
    a('v_add_f32 v16, v16, v20')
    a(f'v_cvt_pk_bf16_f32 v16, v16, v{V_Z}')
    a('s_add_u32 s88, s88, 5120000')
    a('buffer_store_short v16, v13, s[60:63], s88 offen')
    a.label('k2_done')
    a('s_endpgm')
    for x in DEFER: a(x)
    DEFER.clear()

if __name__ == '__main__':
    from gen import build, gen_k1, K1_LDS
    dbg = len(sys.argv) > 2 and sys.argv[2] == 'dbg'
    ks = [('k1_prep_kernel', 256, 256, K1_LDS, lambda a: gen_k1(a, dbg), 256),
          ('k2_main_kernel', T_, NW * 64, K2_LDS, lambda a: gen_k2(a, dbg), 256)]
    build(ks, sys.argv[1])
    print('K2_LDS', K2_LDS, file=sys.stderr)
```

```python
import os, sys
from asmdsl import Asm
from layout import *
from gen import srd, load_kernargs, NL2E, f32bits
FL = set(os.environ.get('FL', '').split(','))
T_ = T
NW = 8
W_ = int(os.environ.get('TW', '23'))
CW = [0, W_, 2 * W_, 2 * W_ + (64 - 2 * W_) // 2, 64]
CAPS = 192
SC = 5 * CAPS + 32
STG = 0
STGW = 8 * 1040
EAP = STG + NW * STGW
JIT = EAP + NW * 1024
SRC = JIT + NW * 2048
W1 = SRC + SC * 4
XA = W1 + SC * 4
XB = XA + SC * 4
SV = XB + SC * 4
W0 = XA
ATL = (SV + SC + 255) // 256 * 256
MACC = ATL + 20480
SIDE = MACC + 40 * 512
PBO = SIDE + 3 * 4096
PBS = PBO + 5 * 2 * 96
PACC = PBS + 3 * 2 * 96
LUT = PACC + 480
CNT = LUT + 144
POST = CNT + 48
K2_LDS = POST + 320
HT = MACC
assert K2_LDS <= 163840, K2_LDS
NLN2 = f32bits(-0.6931471805599453)

V_LCS, V_LCL, V_LRD, V_RB, V_LCD, V_Z, V_LCE, V_LCA = 2, 3, 4, 5, 6, 7, 8, 9
V_A, V_B, V_C, V_D, V_AL = 10, 11, 12, 13, 14
V_E4 = 243
ACC, PRE, R, W3, WDA, SEL, L, OH, EAr, T, SRCr = 16, 80, 112, 144, 160, 176, 184, 192, 196, 200, 208
XY, GA, GB, GS, EID, V_WX, H1 = 216, 218, 219, 220, 221, 224, 228
V_E1 = 244
V_LUT0, V_LUT8 = 247, 248
V_HM = 245
V_PO0, V_PO1, V_EI = 240, 241, 242
def vr(b, n): return f'v[{b}:{b+n-1}]'
uid = [0]
DEFER = []
PROF = 'prof' in FL

def stamp(a, idx, dbg, vb=252, op='s_memrealtime'):
    if not dbg: return
    a(f's_cmp_lg_u32 s3, 0')
    a(f's_cbranch_scc1 st_skip{idx}')
    a(f'{op} s[98:99]')
    a('s_waitcnt lgkmcnt(0)')
    a(f'v_mov_b32 v{vb}, s98')
    a(f'v_mov_b32 v{vb+1}, s99')
    a('s_lshl_b32 s88, s2, 7')
    a(f's_add_u32 s88, s88, {DBGW + idx*8}')
    a(f'v_mov_b32 v{vb+2}, 0')
    a('s_mov_b64 s[98:99], exec')
    a('s_mov_b64 exec, 1')
    a(f'buffer_store_dwordx2 v[{vb}:{vb+1}], v{vb+2}, s[40:43], s88 offen')
    a('s_mov_b64 exec, s[98:99]')
    a.label(f'st_skip{idx}')
PTR = [16, 18, 32, 34, 64, 98]
def wstamp(a, i, dbg):
    if not (dbg and 'ws' in FL): return
    a('s_memrealtime s[98:99]')
    a('s_waitcnt lgkmcnt(0)')
    a('v_mov_b32 v252, s98'); a('v_mov_b32 v253, s99')
    a('s_lshl_b32 s88, s2, 3'); a('s_add_u32 s88, s88, s3'); a('s_lshl_b32 s88, s88, 6')
    a(f's_add_u32 s88, s88, {DBGW + 0x40000 + i*8}')
    a('v_mov_b32 v254, 0')
    a('s_mov_b64 exec, 1')
    a('buffer_store_dwordx2 v[252:253], v254, s[40:43], s88 offen')
    a('s_mov_b64 exec, -1')
def PT(a, i):
    if PROF: a(f's_memtime s[{PTR[i]}:{PTR[i]+1}]')

CP = 22
V_DESC = 246
V_D2 = 222
def build_desc(a):
    g, sub, go, ge, cp, t = 16, 17, 18, 19, 20, 21
    a(f'v_add_u32 v{g}, s28, v1')
    a(f'v_mov_b32 v{sub}, 0'); a(f'v_mov_b32 v{go}, s72'); a(f'v_mov_b32 v{ge}, s73'); a(f'v_mov_b32 v{cp}, s{CP}')
    for k in range(1, 5):
        a(f'v_cmp_le_u32 vcc, s{72+k}, v{g}')
        a(f'v_mov_b32 v{t}, {k}'); a(f'v_cndmask_b32 v{sub}, v{sub}, v{t}, vcc')
        a(f'v_mov_b32 v{t}, s{72+k}'); a(f'v_cndmask_b32 v{go}, v{go}, v{t}, vcc')
        a(f'v_mov_b32 v{t}, s{73+k}'); a(f'v_cndmask_b32 v{ge}, v{ge}, v{t}, vcc')
        a(f'v_mov_b32 v{t}, s{CP+k}'); a(f'v_cndmask_b32 v{cp}, v{cp}, v{t}, vcc')
    a(f'v_sub_u32 v{go}, v{g}, v{go}')
    a(f'v_lshlrev_b32 v{go}, 5, v{go}')
    a(f'v_sub_u32 v{cp}, v{cp}, v{go}')
    a(f'v_min_u32 v{cp}, 32, v{cp}')
    a(f'v_mul_u32_u24 v{t}, {CAPS}, v{sub}')
    a(f'v_add_u32 v{go}, v{go}, v{t}')
    a(f'v_min_u32 v{ge}, s79, v{ge}')
    a(f'v_add_u32 v{t}, 1, v{g}')
    a(f'v_cmp_ge_u32 vcc, v{t}, v{ge}')
    a(f'v_cndmask_b32 v{t}, 0, 1, vcc')
    a(f'v_lshl_or_b32 v{V_DESC}, v{cp}, 10, v{go}')
    a(f'v_lshl_or_b32 v{V_DESC}, v{sub}, 16, v{V_DESC}')
    a(f'v_lshl_or_b32 v{V_DESC}, v{t}, 19, v{V_DESC}')
    a(f'v_or_b32 v{V_DESC}, 0x100000, v{V_DESC}')
    a(f'v_cmp_eq_u32 vcc, 32, v{cp}')
    a(f'v_or_b32 v{t}, 0x200000, v{V_DESC}')
    a(f'v_cndmask_b32 v{V_DESC}, v{V_DESC}, v{t}, vcc')
    a(f'v_cmp_gt_u32 vcc, s79, v{g}')
    a(f'v_mov_b32 v{t}, 0x208000')
    a(f'v_cndmask_b32 v{V_DESC}, v{t}, v{V_DESC}, vcc')

def sig4(a, D):
    a(f's_and_b32 s88, s{D}, 0x3ff')
    a('s_lshl_b32 s88, s88, 2')

def read_lists(a, D):
    sig4(a, D)
    a(f'v_add_u32 v{V_A}, s88, v{V_LCS}')
    a(f'ds_read_b128 {vr(SRCr,4)}, v{V_A}')
    a(f'ds_read_b128 {vr(SRCr+4,4)}, v{V_A} offset:16')
    a(f'v_add_u32 v{V_C}, s88, v{V_EI}')
    a(f'ds_read_b32 v{EID}, v{V_C}')

def read_geo(a, D):
    a(f's_and_b32 s89, s{D}, 0x3ff')
    a('s_lshl_b32 s88, s89, 2')
    a(f'v_add_u32 v{V_B}, s88, v{V_E4}')
    a(f'ds_read_b32 v{GA}, v{V_B}')
    a(f'ds_read_b32 v{GB}, v{V_B} offset:{XB-XA}')
    a(f'v_add_u32 v{V_D}, s89, v{V_E1}')
    a(f'ds_read_u8 v{GS}, v{V_D}')

def issue_loads(a):
    a('s_mov_b32 m0, s39')
    a(f'v_lshl_add_u32 v{V_B}, v{EID}, 5, v{V_HM}')
    a(f'buffer_load_dwordx4 v{V_B}, s[48:51], 0 offen lds')
    for q in range(8):
        a(f's_add_u32 m0, s87, {q*1040}')
        a(f'v_add_u32 v{SRCr+q}, v{V_LCD}, v{SRCr+q}')
        if 'nodma' not in FL: a(f'buffer_load_dwordx4 v{SRCr+q}, s[44:47], s86 offen lds')

def build_xy(a):
    a(f'v_and_b32 v{V_A}, 0x80, v{GS}')
    a(f'v_mul_u32_u24 v{V_A}, 0x7f, v{V_A}')
    a(f'v_lshl_or_b32 v{V_A}, v{GA}, 16, v{V_A}')
    a(f'v_cndmask_b32 v{XY}, v{V_A}, v{GB}, s[64:65]')
    a(f'v_and_b32 v{V_B}, 7, v{GS}')
    a(f'v_lshl_add_u32 v{V_AL}, v{V_B}, 6, v{V_LCL}')
    a(f'v_lshl_add_u32 v{V_B}, v{V_B}, 4, v{V_LUT0}')
    a(f'v_cndmask_b32 v{XY+1}, v{V_B}, v{V_LUT8}, s[64:65]')
    a(f'v_lshrrev_b32 v{V_B}, 16, v{GA}')
    a(f'v_cndmask_b32 v{V_D2}, 0, v{V_B}, s[64:65]')

def read_rows(a):
    if 'norows' in FL: return
    for k in range(8):
        a(f'ds_read_b128 {vr(R+4*k,4)}, v{V_RB} offset:{k*32}')

def read_ea_oh(a):
    a(f'ds_read_b128 {vr(EAr,4)}, v{V_LCE}')
    a(f'ds_read_b128 {vr(OH,4)}, v{XY+1}')

def read_wda(a, D):
    a(f's_bfe_u32 s88, s{D}, 0x30010')
    a('s_lshl_b32 s88, s88, 12')
    a(f'v_add_u32 v{V_A}, s88, v{V_LCA}')
    a('s_mov_b32 exec_hi, 0')
    for b in range(4):
        a(f'ds_read_b128 {vr(WDA+4*b,4)}, v{V_A} offset:{512*b}')
    a('s_mov_b32 exec_hi, -1')

def jit_l(a, full):
    if not full:
        a('s_bfm_b32 s88, s81, 0')
        a('s_mov_b32 exec_lo, s88')
        a('s_mov_b32 exec_hi, s88')
    a(f'ds_write_b16 v{V_AL}, v{XY}')
    a(f'ds_write_b16_d16_hi v{V_AL}, v{XY} offset:16')
    if not full: a('s_mov_b64 exec, -1')
    a(f'ds_read_b128 {vr(L,4)}, v{V_LRD}')
    a(f'ds_read_b128 {vr(L+4,4)}, v{V_LRD} offset:1024')
    if not full:
        a('s_mov_b32 exec_lo, s88')
        a('s_mov_b32 exec_hi, s88')
    a(f'ds_write_b16 v{V_AL}, v{V_Z}')
    a(f'ds_write_b16 v{V_AL}, v{V_Z} offset:16')
    if not full: a('s_mov_b64 exec, -1')

def mf(d, x, y, c): return f'v_mfma_f32_32x32x16_bf16 {d}, {x}, {y}, {c}'
def A_ops(b, buf):
    d = vr(PRE + 16 * buf, 16)
    return [[mf(d, vr(R+8*b,4), vr(SEL,4), '0')], [mf(d, vr(R+8*b+4,4), vr(SEL+4,4), d)],
            [mf(d, vr(EAr,4), vr(W3+4*b,4), d)], [mf(d, vr(OH,4), vr(WDA+4*b,4), d)]]
def C_ops(b, buf):
    acc = vr(ACC + 16 * b, 16); p = PRE + 16 * buf
    return [[mf(acc, vr(L,4), vr(p,4), acc)], [mf(acc, vr(L+4,4), vr(p+4,4), acc)]]

def quarter(a, buf, q, mops, full):
    y = PRE + 16 * buf + 4 * q
    t = T + 4 * (q % 2)
    uid[0] += 1; u = uid[0]
    chk = (q > 0 and not full)
    if chk:
        a(f's_cmp_le_u32 s81, {8*q}')
        a(f's_cbranch_scc1 k2_qs{u}')
    seq = [f'v_exp_f32 v{t+i}, v{y+i}' for i in range(4)]
    seq += [f'v_add_f32 v{t+i}, 1.0, v{t+i}' for i in range(4)]
    seq += [f'v_rcp_f32 v{t+i}, v{t+i}' for i in range(4)]
    seq += ([f'v_pk_mul_f32 {vr(y+2*i,2)}, {vr(y+2*i,2)}, {vr(t+2*i,2)}' for i in range(2)] if 'pk' in FL else [f'v_mul_f32 v{y+i}, v{y+i}, v{t+i}' for i in range(4)])
    pk = PRE + 16 * buf + 2 * q
    seq += [f'v_cvt_pk_bf16_f32 v{pk}, v{y}, v{y+1}', f'v_cvt_pk_bf16_f32 v{pk+1}, v{y+2}, v{y+3}']
    pos = (eval(os.environ.get('POS', '[1, 9]')) if 'pk' in FL else [2, 10]); k = 0
    for i, x in enumerate(seq):
        if k < len(mops) and i == pos[k]:
            for z in mops[k]: a(z)
            k += 1
        a(x)
    if chk:
        a.label(f'k2_qe{u}')
        DEFER.append(f'k2_qs{u}:')
        DEFER.extend([f'v_mov_b32 v{pk}, 0', f'v_mov_b32 v{pk+1}, 0'])
        for m in mops: DEFER.extend(m)
        DEFER.append(f's_branch k2_qe{u}')

def flush(a, Dp, cont, tag):
    sub = 91
    a(f's_bfe_u32 s91, s{Dp}, 0x30010')
    n_, kh_, ad, t0 = V_A, V_B, V_C, V_D
    a(f'v_and_b32 v{n_}, 31, v1')
    a(f'v_lshrrev_b32 v{kh_}, 5, v1')
    a(f'v_lshrrev_b32 v{ad}, 2, v{n_}')
    a('s_lshl_b32 s88, s5, 4')
    a(f'v_add_u32 v{ad}, s88, v{ad}')
    a(f'v_xor_b32 v{ad}, v{ad}, v{kh_}')
    a(f'v_lshlrev_b32 v{ad}, 4, v{ad}')
    a(f'v_lshl_add_u32 v{ad}, v{kh_}, 9, v{ad}')
    a(f'v_and_b32 v{t0}, 3, v{n_}')
    a(f'v_lshl_add_u32 v{ad}, v{t0}, 2, v{ad}')
    a(f's_and_b32 s88, s{sub}, 1')
    a('s_lshl_b32 s88, s88, 7')
    a(f'v_xor_b32 v{ad}, s88, v{ad}')
    a(f's_lshl_b32 s88, s{sub}, 12')
    a(f's_add_u32 s88, s88, {MACC}')
    a('s_lshl_b32 s89, s4, 12')
    a(f's_add_u32 s89, s89, {SIDE - 4096}')
    a(f's_cmp_eq_u32 s{cont}, 1')
    a('s_cselect_b32 s88, s89, s88')
    a(f'v_add_u32 v{ad}, s88, v{ad}')
    a(f's_mov_b32 s89, {NLN2:#x}')
    for bp in range(2):
        for i in range(4):
            a(f'v_mul_f32 v{ACC + 32*bp + 4*i}, s89, v{ACC + 32*bp + 4*i}')
            a(f'v_mul_f32 v{ACC + 32*bp + 16 + 4*i}, s89, v{ACC + 32*bp + 16 + 4*i}')
    for i in range(4):
        a(f'v_xor_b32 v{T+i}, {i*32}, v{ad}')
        a(f'v_xor_b32 v{T+4+i}, {i*32 ^ 128}, v{ad}')
    for bp in range(2):
        for i in range(4):
            x0, x1 = ACC + 32 * bp + 4 * i, ACC + 32 * bp + 16 + 4 * i
            a(f'v_cvt_pk_bf16_f32 v{x0}, v{x0}, v{x1}')
    for bp in range(2):
        for i in range(4):
            a(f'ds_write_b32 v{T+4*bp+i}, v{ACC + 32*bp + 4*i} offset:{i*1024}')
    P = [ACC + 4 * (k // 3) + (k % 3) + 1 for k in range(12)]
    def wxop(b):
        base = V_WX + (b & ~1)
        return vr(base, 2), ('op_sel:[0,0] op_sel_hi:[1,0]' if b % 2 == 0 else 'op_sel:[0,1] op_sel_hi:[1,1]')
    w, m = wxop(0)
    for p in range(8): a(f'v_pk_mul_f32 {vr(ACC+2*p,2)}, {vr(ACC+2*p,2)}, {w} {m}')
    for b in range(1, 4):
        w, m = wxop(b)
        m3 = m.replace(']', ',0]', 1) if False else None
        sel = ('op_sel:[0,0,0] op_sel_hi:[1,0,1]' if b % 2 == 0 else 'op_sel:[0,1,0] op_sel_hi:[1,1,1]')
        for p in range(8): a(f'v_pk_fma_f32 {vr(ACC+2*p,2)}, {vr(ACC+16*b+2*p,2)}, {w}, {vr(ACC+2*p,2)} {sel}')
    for j in range(6): a(f'v_permlane16_swap_b32 v{P[2*j]}, v{P[2*j+1]}')
    for j in range(6): a(f'v_add_f32 v{P[2*j]}, v{P[2*j]}, v{P[2*j+1]}')
    S = [P[2*j] for j in range(6)]
    U = [P[1], P[3], P[5]]
    for j in range(3):
        a(f'v_add_f32_dpp v{U[j]}, v{S[2*j]}, v{S[2*j]} row_ror:8 row_mask:0xf bank_mask:0x3')
    for j in range(3):
        a(f'v_add_f32_dpp v{U[j]}, v{S[2*j+1]}, v{S[2*j+1]} row_ror:8 row_mask:0xf bank_mask:0xc')
    V0, V1 = P[7], P[9]
    a(f'v_add_f32_dpp v{V0}, v{U[0]}, v{U[0]} row_half_mirror row_mask:0xf bank_mask:0x5')
    a(f'v_add_f32_dpp v{V1}, v{U[2]}, v{U[2]} row_half_mirror row_mask:0xf bank_mask:0xf')
    a(f'v_add_f32_dpp v{V0}, v{U[1]}, v{U[1]} row_half_mirror row_mask:0xf bank_mask:0xa')
    for mod in ('quad_perm:[1,0,3,2]', 'quad_perm:[2,3,0,1]'):
        for v in (V0, V1):
            a(f'v_add_f32_dpp v{v}, v{v}, v{v} {mod} row_mask:0xf bank_mask:0xf')
    a(f's_mul_i32 s88, s{sub}, 192')
    a(f's_add_u32 s88, s88, {PBO}')
    a('s_mul_i32 s89, s4, 192')
    a(f's_add_u32 s89, s89, {PBS - 192}')
    a(f's_cmp_eq_u32 s{cont}, 1')
    a('s_cselect_b32 s88, s89, s88')
    a('s_mul_i32 s89, s5, 96')
    a('s_add_u32 s88, s88, s89')
    a(f'v_add_u32 v{ad}, s88, v{V_PO0}')
    a(f'v_add_u32 v{t0}, s88, v{V_PO1}')
    a('s_mov_b32 exec_lo, 0x11111111')
    a('s_mov_b32 exec_hi, 0x11111111')
    a(f'ds_write_b32 v{ad}, v{V0}')
    a('s_mov_b32 exec_lo, 0x01010101')
    a('s_mov_b32 exec_hi, 0x01010101')
    a(f'ds_write_b32 v{t0}, v{V1}')
    a('s_mov_b64 exec, -1')
    if tag == 'a':
        for i in range(32): a(f'v_pk_mov_b32 {vr(ACC+2*i,2)}, 0, 0')

def hpart(a, WH):
    HA = 112
    HF = [96, 16]
    a(f's_mov_b32 s89, {NLN2:#x}')
    for b in range(4):
        a(f'v_lshlrev_b32 v{V_WX+b}, 16, v{V_WX+b}')
        a(f'v_mul_f32 v{V_WX+b}, s89, v{V_WX+b}')
    a('v_and_b32 v13, 15, v1')
    a('v_lshrrev_b32 v14, 4, v1')
    a('v_xor_b32 v15, v14, v13')
    a('v_lshlrev_b32 v15, 4, v15')
    a('v_lshl_add_u32 v15, v13, 9, v15')
    a(f'v_add_u32 v15, {HT}, v15')
    for ksp in range(8):
        a(f'v_xor_b32 v12, {(4*ksp % 16)*16}, v15')
        off = (256 if ksp >= 4 else 0)
        fr = HF[ksp % 2]
        for rb in range(3):
            a(f'ds_read_b128 {vr(fr+4*rb,4)}, v12 offset:{off + rb*8192}')
        a('s_waitcnt lgkmcnt(0)')
        for cb in range(2):
            wreg = vr(WH + 4 * (2 * ksp + cb), 4)
            for rb in range(3):
                d = vr(HA + 8 * rb + 4 * cb, 4)
                c = '0' if ksp == 0 else d
                a(f'v_mfma_f32_16x16x32_bf16 {d}, {vr(fr+4*rb,4)}, {wreg}, {c}')
    for rb in range(3):
        for r in range(4):
            a(f'v_cvt_pk_bf16_f32 v{H1+4*rb+r}, v{HA+8*rb+r}, v{HA+8*rb+4+r}')

def consts(a, first):
    a('v_lshlrev_b32 v12, 4, v1')
    a('s_lshl_b32 s88, s5, 12')
    a(f's_add_u32 s88, s88, {W3P}')
    for b in range(4):
        a(f'buffer_load_dwordx4 {vr(W3+4*b,4)}, v12, s[40:43], s88 offen offset:{1024*b}')
    a('v_and_b32 v13, 31, v1')
    a('v_lshrrev_b32 v14, 5, v1')
    a('s_lshl_b32 s88, s5, 8')
    a('v_lshlrev_b32 v15, 1, v13')
    if first:
        for b in range(4):
            a(f'buffer_load_ushort v{V_WX+b}, v15, s[68:71], s88 offen offset:{64*b}')
    a('s_lshl_b32 s88, s5, 11')
    a(f's_add_u32 s88, s88, {WDP}')
    a('v_lshlrev_b32 v15, 4, v13')
    for b in range(4):
        a(f'buffer_load_dword v{WDA+4*b}, v15, s[40:43], s88 offen offset:{512*b}')
        for i in range(1, 4): a(f'v_mov_b32 v{WDA+4*b+i}, 0')
def selconst(a):
    a('v_and_b32 v13, 31, v1')
    a('v_lshrrev_b32 v14, 5, v1')
    a('v_lshlrev_b32 v16, 3, v14')
    a('v_sub_u32 v16, v13, v16')
    for sidx in range(2):
        for p in range(4):
            lo, hi = 16*sidx + 2*p, 16*sidx + 2*p + 1
            a(f'v_cmp_eq_u32 vcc, {lo}, v16')
            a(f'v_mov_b32 v17, 0x3f80')
            a(f'v_cndmask_b32 v21, 0, v17, vcc')
            a(f'v_cmp_eq_u32 vcc, {hi}, v16')
            a(f'v_mov_b32 v17, 0x3f800000')
            a(f'v_cndmask_b32 v{SEL+4*sidx+p}, v21, v17, vcc')
    for i in range(4): a(f'v_mov_b32 v{OH+i}, 0')

WH = 112
WM = 16
def tail_loads_m(a):
    a('v_lshlrev_b32 v12, 4, v1')
    a('s_lshl_b32 s88, s3, 15')
    a(f's_add_u32 s88, s88, {WHP + 16384}')
    for j in range(16):
        a(f's_add_u32 s89, s88, {j*1024}')
        a(f'buffer_load_dwordx4 {vr(WM+4*j,4)}, v12, s[40:43], s89 offen')
def tail_loads_ht(a):
    a('v_lshrrev_b32 v13, 5, v1')
    a('s_mul_i32 s89, s3, 6')
    a('v_add_u32 v13, s89, v13')
    a('v_and_b32 v10, 31, v1')
    a('s_mul_i32 s90, s2, 40')
    for j in range(3):
        a('v_and_b32 v11, 15, v13')
        a('v_xor_b32 v11, v11, v10')
        a('v_lshlrev_b32 v11, 4, v11')
        a('v_add_u32 v12, s90, v13')
        a('v_lshl_add_u32 v11, v12, 9, v11')
        a('s_and_b32 s91, s3, 1')
        a('s_lshl_b32 s91, s91, 7')
        a('s_add_u32 s91, s91, s87')
        a(f's_add_u32 m0, s91, {j*1024}')
        a('buffer_load_dwordx4 v11, s[56:59], 0 offen lds')
        if j < 2: a('v_add_u32 v13, 2, v13')
def tail_loads_wh(a):
    a('v_lshlrev_b32 v12, 4, v1')
    a('s_lshl_b32 s88, s3, 15')
    a(f's_add_u32 s88, s88, {WHP}')
    for j in range(16):
        a(f's_add_u32 s89, s88, {j*1024}')
        a(f'buffer_load_dwordx4 {vr(WH+4*j,4)}, v12, s[40:43], s89 offen')

def gen_k2(a, dbg=False):
    a.label('k2_main_kernel')
    a(f's_cmp_ge_u32 s2, {T_}')
    a('s_cbranch_scc1 k2_done')
    load_kernargs(a)
    a('v_and_b32 v1, 63, v0')
    a('v_lshrrev_b32 v2, 6, v0')
    a('v_readfirstlane_b32 s3, v2')
    a('s_lshr_b32 s4, s3, 1')
    a('s_sub_u32 s88, 5, s4')
    a('s_cmp_ge_u32 s3, 4')
    a('s_cselect_b32 s4, s88, s4')
    a('s_and_b32 s5, s3, 1')
    a('s_waitcnt lgkmcnt(0)')
    srd(a, 40, 36, 37, 0, 0x2000000)
    a('s_mov_b32 s66, 0')
    a('s_mov_b32 s67, 0')
    a('s_mov_b32 s27, 0')
    a('s_mov_b32 s15, 0')
    a('s_mov_b32 s64, 0')
    a('s_mov_b32 s65, -1')
    a.label('k2_batch')
    a('s_cmp_eq_u32 s66, 2')
    a('s_cbranch_scc1 k2_ld_ovf')
    a('v_lshlrev_b32 v15, 4, v0')
    a('s_mul_i32 s88, s2, 16000')
    a(f's_add_u32 s88, s88, {CELL}')
    a('buffer_load_dwordx4 v[24:27], v15, s[40:43], s88 offen')
    a('v_cmp_gt_u32 vcc, 488, v0')
    a('v_mov_b32 v28, 0')
    a('s_and_saveexec_b64 s[90:91], vcc')
    a('v_add_u32 v16, 8192, v15')
    a('buffer_load_dwordx4 v[28:31], v16, s[40:43], s88 offen')
    a('s_mov_b64 exec, s[90:91]')
    a('s_branch k2_ld_done')
    a.label('k2_ld_ovf')
    a('v_add_u32 v16, s21, v0')
    a('v_lshlrev_b32 v15, 3, v16')
    a('s_mul_i32 s88, s67, 5120')
    a(f's_add_u32 s88, s88, {OVF}')
    a('v_mov_b32 v25, -1')
    a('v_cmp_gt_u32 vcc, s97, v16')
    a('s_mov_b32 s89, 160')
    a('v_cmp_gt_u32 s[90:91], s89, v0')
    a('s_and_b64 vcc, vcc, s[90:91]')
    a('s_and_saveexec_b64 s[90:91], vcc')
    a('buffer_load_dwordx2 v[24:25], v15, s[40:43], s88 offen')
    a('s_mov_b64 exec, s[90:91]')
    a.label('k2_ld_done')
    a('v_mov_b32 v7, 0')
    for rep in range(2):
        a(f'v_add_u32 v16, {rep*512}, v0')
        a(f'v_cmp_gt_u32 vcc, {SC}, v16')
        a('s_and_saveexec_b64 s[90:91], vcc')
        a('v_lshlrev_b32 v15, 2, v16')
        a(f'v_add_u32 v15, {SRC}, v15')
        a('v_mov_b32 v17, 0x80000000')
        a(f'ds_write_b32 v15, v{V_Z}')
        a(f'ds_write_b32 v15, v{V_Z} offset:{W1-SRC}')
        a(f'ds_write_b32 v15, v17 offset:{XA-SRC}')
        a('s_mov_b64 exec, s[90:91]')
    a('v_cmp_gt_u32 vcc, 12, v0')
    a('s_and_saveexec_b64 s[90:91], vcc')
    a('v_lshlrev_b32 v15, 2, v0')
    a(f'v_add_u32 v15, {CNT}, v15')
    a(f'ds_write_b32 v15, v{V_Z}')
    a('s_mov_b64 exec, s[90:91]')
    a('s_cmp_eq_u32 s66, 0')
    a('s_cbranch_scc0 k2_re')
    srd(a, 44, 36, 37, BT, N * 512)
    srd(a, 48, 20, 21, 0, E * 32)
    srd(a, 52, 18, 19, 0, N * 6)
    srd(a, 56, 16, 17, 0, N * 512)
    srd(a, 60, 32, 33, 0, 2590000 * 2)
    srd(a, 68, 28, 29, 0, 512)
    stamp(a, 0, dbg)
    stamp(a, 8, dbg, 252, 's_memtime')
    a('v_lshlrev_b32 v15, 2, v0')
    a(f'v_add_u32 v15, {OVFC}, v15')
    a('v_cmp_gt_u32 vcc, 250, v0')
    a('v_mov_b32 v20, 0')
    a('s_and_saveexec_b64 s[90:91], vcc')
    a('buffer_load_dword v20, v15, s[40:43], 0 offen')
    a('s_mov_b64 exec, s[90:91]')
    a('s_mul_i32 s88, s2, 40')
    a('v_add_u32 v16, s88, v0')
    a('v_mul_u32_u24 v17, 6, v16')
    a('v_and_b32 v17, -4, v17')
    a('v_cmp_gt_u32 vcc, 40, v0')
    a('s_and_saveexec_b64 s[90:91], vcc')
    a('buffer_load_dwordx2 v[18:19], v17, s[52:55], 0 offen')
    a('s_mov_b64 exec, s[90:91]')
    if 'nopp' not in FL:
        a('s_cmp_ge_u32 s3, 2')
        a('s_cbranch_scc1 k2_nopp')
        a('s_lshr_b32 s88, s2, 3')
        a('s_and_b32 s88, s88, 31')
        a('s_lshl_b32 s88, s88, 11')
        a('s_lshl_b32 s89, s3, 10')
        a('s_add_u32 s88, s88, s89')
        a('v_lshlrev_b32 v16, 4, v1')
        a('buffer_load_dwordx4 v[240:243], v16, s[52:55], s88 offen') if False else None
        a('buffer_load_dwordx4 v[80:83], v16, s[52:55], s88 offen')
        a.label('k2_nopp')
    a('s_lshl_b32 s88, s3, 11')
    a(f's_add_u32 s88, s88, {JIT}')
    a(f'v_lshlrev_b32 v{V_LRD}, 4, v1')
    a(f'v_add_u32 v{V_LRD}, s88, v{V_LRD}')
    z = T
    for i in range(4): a(f'v_mov_b32 v{z+i}, 0')
    a(f'ds_write_b128 v{V_LRD}, v[{z}:{z+3}]')
    a(f'ds_write_b128 v{V_LRD}, v[{z}:{z+3}] offset:1024')
    a('v_cmp_gt_u32 vcc, 120, v0')
    a('s_and_saveexec_b64 s[90:91], vcc')
    a('v_lshlrev_b32 v16, 2, v0')
    a(f'v_add_u32 v16, {PACC}, v16')
    a(f'ds_write_b32 v16, v{V_Z}')
    a('s_mov_b64 exec, s[90:91]')
    a('v_cmp_gt_u32 vcc, 72, v0')
    a('s_and_saveexec_b64 s[90:91], vcc')
    a('v_lshrrev_b32 v16, 3, v0')
    a('v_and_b32 v17, 7, v0')
    a('v_cmp_eq_u32 vcc, v16, v17')
    a('v_mov_b32 v17, 0x3f80')
    a('v_cndmask_b32 v17, 0, v17, vcc')
    a('v_lshlrev_b32 v16, 1, v0')
    a(f'v_add_u32 v16, {LUT}, v16')
    a('ds_write_b16 v16, v17')
    a('s_mov_b64 exec, s[90:91]')
    a('s_waitcnt lgkmcnt(0)')
    a('s_barrier')
    a('v_lshlrev_b32 v12, 4, v1')
    a('s_mul_i32 s88, s2, 20480')
    a(f's_add_u32 s88, s88, {AT}')
    for j in range(3):
        a(f's_lshl_b32 s89, s3, 10')
        a(f's_add_u32 s89, s89, {j*8192}')
        if j == 2:
            a('s_cmp_ge_u32 s3, 4')
            a('s_cbranch_scc1 k2_noat')
        a(f's_add_u32 m0, s89, {ATL}')
        a('s_add_u32 s89, s89, s88')
        a('buffer_load_dwordx4 v12, s[40:43], s89 offen lds')
    a.label('k2_noat')
    consts(a, True)
    a(f's_mov_b32 s92, {NL2E:#x}')
    a('s_lshl_b32 s86, s5, 8')
    a(f's_mul_i32 s87, s3, {STGW}')
    a('s_lshl_b32 s39, s3, 10')
    a(f's_add_u32 s39, s39, {EAP}')
    a(f'v_lshlrev_b32 v{V_E4}, 2, v13')
    a(f'v_add_u32 v{V_E4}, {XA}, v{V_E4}')
    a(f'v_add_u32 v{V_E1}, {SV}, v13')
    a(f'v_lshrrev_b32 v{V_EI}, 1, v1')
    a(f'v_lshlrev_b32 v{V_EI}, 2, v{V_EI}')
    a(f'v_add_u32 v{V_EI}, {W1}, v{V_EI}')
    a(f'v_and_b32 v{V_HM}, 1, v1')
    a(f'v_lshlrev_b32 v{V_HM}, 4, v{V_HM}')
    a(f'v_lshlrev_b32 v{V_LCE}, 5, v13')
    a(f'v_lshl_add_u32 v{V_LCE}, v14, 4, v{V_LCE}')
    a(f'v_add_u32 v{V_LCE}, s39, v{V_LCE}')
    a(f'v_lshrrev_b32 v{V_LCS}, 4, v1')
    a(f'v_lshlrev_b32 v{V_LCS}, 5, v{V_LCS}')
    a(f'v_add_u32 v{V_LCS}, {SRC}, v{V_LCS}')
    a('v_bfe_u32 v16, v13, 4, 1')
    a(f'v_lshlrev_b32 v{V_LCL}, 10, v16')
    a('v_bfe_u32 v16, v13, 2, 1')
    a(f'v_lshl_add_u32 v{V_LCL}, v16, 9, v{V_LCL}')
    a('v_bfe_u32 v16, v13, 3, 1')
    a(f'v_lshl_add_u32 v{V_LCL}, v16, 3, v{V_LCL}')
    a('v_and_b32 v16, 3, v13')
    a(f'v_lshl_add_u32 v{V_LCL}, v16, 1, v{V_LCL}')
    a(f'v_lshl_add_u32 v{V_LCL}, v14, 5, v{V_LCL}')
    a('s_lshl_b32 s88, s3, 11')
    a(f's_add_u32 s88, s88, {JIT}')
    a(f'v_add_u32 v{V_LCL}, s88, v{V_LCL}')
    a('v_and_b32 v16, 7, v13')
    a(f'v_mul_u32_u24 v{V_RB}, 1040, v16')
    a('v_lshrrev_b32 v16, 3, v13')
    a(f'v_lshl_add_u32 v{V_RB}, v16, 8, v{V_RB}')
    a(f'v_lshl_add_u32 v{V_RB}, v14, 4, v{V_RB}')
    a(f'v_add_u32 v{V_RB}, s87, v{V_RB}')
    a('v_and_b32 v16, 15, v1')
    a(f'v_lshlrev_b32 v{V_LCD}, 4, v16')
    a('s_lshl_b32 s88, s5, 7')
    a('v_add_u32 v16, s88, v13')
    a('v_lshlrev_b32 v16, 4, v16')
    a(f'v_add_u32 v{V_LCA}, {ATL}, v16')
    a(f'v_mov_b32 v{V_LUT0}, {LUT}')
    a(f'v_mov_b32 v{V_LUT8}, {LUT+128}')
    a('v_lshrrev_b32 v16, 4, v1')
    a('v_bfe_u32 v17, v1, 2, 2')
    a('v_and_b32 v21, 1, v17')
    a('v_lshrrev_b32 v22, 1, v17')
    a('v_lshl_add_u32 v21, v21, 1, v22')
    a('v_and_b32 v23, 1, v16')
    a('v_lshl_add_u32 v21, v21, 1, v23')
    a('v_lshl_add_u32 v22, v22, 1, v23')
    a('v_add_u32 v22, 8, v22')
    a('v_lshrrev_b32 v16, 1, v16')
    a('v_mul_u32_u24 v16, 12, v16')
    a('v_add_u32 v21, v21, v16'); a('v_add_u32 v22, v22, v16')
    a(f'v_lshlrev_b32 v{V_PO0}, 2, v21'); a(f'v_lshlrev_b32 v{V_PO1}, 2, v22')
    selconst(a)
    a('s_waitcnt vmcnt(14)')
    stamp(a, 1, dbg)
    a('s_mul_i32 s88, s2, 40')
    a('v_add_u32 v16, s88, v0')
    a('v_and_b32 v16, 1, v16')
    a('v_lshlrev_b32 v16, 4, v16')
    a('v_alignbit_b32 v22, v19, v18, v16')
    a('v_lshrrev_b32 v23, v16, v19')
    a('v_lshlrev_b32 v15, 3, v0')
    a(f'v_add_u32 v15, {POST}, v15')
    a('v_cmp_gt_u32 vcc, 40, v0')
    a('s_and_saveexec_b64 s[90:91], vcc')
    a('ds_write_b64 v15, v[22:23]')
    a('s_mov_b64 exec, s[90:91]')
    a('v_cmp_ne_u32 vcc, 0, v20')
    a('s_cbranch_vccz k2_later')
    a(f'v_mov_b32 v15, {CNT+32}')
    a('v_mov_b32 v16, 1')
    a('ds_write_b32 v15, v16')
    a('s_branch k2_later')
    a.label('k2_re')
    consts(a, False)
    selconst(a)
    a('s_waitcnt vmcnt(0) lgkmcnt(0)')
    a('s_barrier')
    a.label('k2_later')
    CI0, CI1, VC0, VC1 = 21, 22, 18, 19
    a('s_cmp_eq_u32 s66, 2')
    a('s_cbranch_scc1 k2_v_ovf')
    a(f'v_lshrrev_b32 v{CI0}, 2, v0')
    a(f'v_add_u32 v{CI1}, 128, v{CI0}')
    a(f'v_mov_b32_dpp v{VC0}, v24 quad_perm:[0,0,0,0] row_mask:0xf bank_mask:0xf')
    a(f'v_mov_b32_dpp v{VC1}, v28 quad_perm:[0,0,0,0] row_mask:0xf bank_mask:0xf')
    a('v_and_b32 v15, 3, v0')
    a('v_lshlrev_b32 v15, 2, v15')
    a('v_subrev_u32 v15, 1, v15')
    for r in (VC0, VC1):
        a(f'v_min_u32 v{r}, {CAP}, v{r}')
        a(f'v_sub_i32 v{r}, v{r}, v15')
    a('s_cmp_eq_u32 s66, 1')
    a('s_cbranch_scc0 k2_v_done')
    for r, c in ((VC0, CI0), (VC1, CI1)):
        a(f'v_subrev_u32 v15, s67, v{c}')
        a('v_cmp_gt_u32 vcc, 12, v15')
        a(f'v_cndmask_b32 v{r}, 0, v{r}, vcc')
    a('s_branch k2_v_done')
    a.label('k2_v_ovf')
    a(f'v_mov_b32 v{CI0}, s67'); a(f'v_mov_b32 v{CI1}, s67')
    a(f'v_cmp_eq_u32 vcc, s2, v25')
    a(f'v_cndmask_b32 v{VC0}, 0, 1, vcc')
    a(f'v_mov_b32 v{VC1}, 0')
    a.label('k2_v_done')
    a(f'v_mul_u32_u24 v{CI0}, 640, v{CI0}')
    a(f'v_mul_u32_u24 v{CI1}, 640, v{CI1}')
    MS = [72, 74, 76, 80, 82, 88, 90, 94]
    for i in range(8):
        vc = VC0 if i < 4 else VC1
        a(f'v_cmp_lt_i32 s[{MS[i]}:{MS[i]+1}], {i%4}, v{vc}')
    a('s_mov_b32 s10, 0xeeeeeeee'); a('s_mov_b32 s11, 0xeeeeeeee')
    a('s_cmp_eq_u32 s66, 2')
    a('s_cselect_b32 s10, -1, s10'); a('s_cselect_b32 s11, -1, s11')
    a(f's_and_b64 s[{MS[0]}:{MS[0]+1}], s[{MS[0]}:{MS[0]+1}], s[10:11]')
    a(f's_and_b64 s[{MS[4]}:{MS[4]+1}], s[{MS[4]}:{MS[4]+1}], s[10:11]')
    SB = 32
    for i in range(8):
        a(f'v_bfe_u32 v{SB+i}, v{24+i}, 17, 3')
        a(f'v_lshlrev_b32 v{SB+8+i}, 2, v{SB+i}')
        a(f'v_add_u32 v{SB+8+i}, {CNT}, v{SB+8+i}')
    a('v_mov_b32 v16, 1')
    for i in range(8):
        a(f's_mov_b64 exec, s[{MS[i]}:{MS[i]+1}]')
        a(f'ds_add_rtn_u32 v{T+i}, v{SB+8+i}, v16')
    a('s_mov_b64 exec, -1')
    for i in range(8):
        ci = CI0 if i < 4 else CI1
        a(f'v_and_b32 v{48+i}, 0x3fff, v{24+i}')
        a(f'v_lshlrev_b32 v{48+i}, 9, v{48+i}')
        a(f'v_lshrrev_b32 v{56+i}, 20, v{24+i}')
        a(f'v_add_u32 v{56+i}, v{56+i}, v{ci}')
        a(f'v_mul_u32_u24 v{SB+i}, {CAPS*4}, v{SB+i}')
        a(f'v_add_u32 v{SB+i}, {SRC}, v{SB+i}')
    a('s_waitcnt lgkmcnt(0)')
    for i in range(8):
        a(f'v_min_u32 v{T+i}, {CAPS-1}, v{T+i}')
        a(f'v_lshl_add_u32 v{SB+i}, v{T+i}, 2, v{SB+i}')
    for i in range(8):
        a(f's_mov_b64 exec, s[{MS[i]}:{MS[i]+1}]')
        a(f'ds_write_b32 v{SB+i}, v{48+i}')
        a(f'ds_write_b32 v{SB+i}, v{56+i} offset:{W1-SRC}')
        a(f'ds_write_b32 v{SB+i}, v{24+i} offset:{XA-SRC}')
    a('s_mov_b64 exec, -1')
    a('s_waitcnt lgkmcnt(0)')
    a('s_barrier')
    stamp(a, 2, dbg)
    PB_ = [112, 120]
    for rnd in range(2):
        b0 = PB_[rnd]
        a(f's_lshl_b32 s89, s3, 6')
        if rnd: a('s_add_u32 s89, s89, 512')
        a('v_add_u32 v16, s89, v1')
        a(f'v_min_u32 v16, {SC-1}, v16')
        a('v_lshlrev_b32 v15, 2, v16')
        a(f'v_add_u32 v{b0}, {XA}, v15')
        a(f'ds_read_b32 v{b0+1}, v{b0}')
    a(f'v_mov_b32 v15, {CNT}')
    a('ds_read_b128 v[24:27], v15')
    a('ds_read_b32 v28, v15 offset:16')
    a('ds_read_b32 v29, v15 offset:32')
    a('s_waitcnt lgkmcnt(0)')
    for rnd in range(2):
        b0 = PB_[rnd]
        a(f'v_and_b32 v16, 0x3fff, v{b0+1}')
        a('v_mul_u32_u24 v16, 6, v16')
        a('v_and_b32 v16, -4, v16')
        a(f'v_cmp_le_i32 vcc, 0, v{b0+1}')
        a(f'v_mov_b32 v{b0+2}, 0'); a(f'v_mov_b32 v{b0+3}, 0')
        a('s_and_saveexec_b64 s[90:91], vcc')
        a(f'buffer_load_dwordx2 v[{b0+2}:{b0+3}], v16, s[52:55], 0 offen')
        a('s_mov_b64 exec, s[90:91]')
        a(f'v_bfe_u32 v16, v{b0+1}, 14, 6')
        a('v_lshlrev_b32 v16, 3, v16')
        a(f'v_add_u32 v16, {POST}, v16')
        a(f'ds_read_b64 v[{b0+4}:{b0+5}], v16')
    a('s_mov_b32 s72, 0')
    for k in range(5):
        a(f'v_readfirstlane_b32 s88, v{24+k}')
        a('s_max_u32 s91, s91, s88') if k else a('s_mov_b32 s91, s88')
        a('s_add_u32 s89, s88, 7')
        a(f's_and_b32 s{CP+k}, s89, -8')
        a('s_add_u32 s89, s88, 31')
        a('s_lshr_b32 s89, s89, 5')
        a(f's_add_u32 s{73+k}, s{72+k}, s89')
    a('s_cmp_eq_u32 s66, 0')
    a('s_cbranch_scc0 k2_noflag2')
    a('v_readfirstlane_b32 s85, v29')
    a.label('k2_noflag2')
    a(f's_cmp_gt_u32 s91, {CAPS}')
    a('s_cselect_b32 s93, 1, 0')
    a('s_cbranch_scc1 k2_nofit1')
    a(f's_mov_b32 s88, {CW[0]}'); a(f's_mov_b32 s89, {CW[1]}')
    for k in range(1, 4):
        a(f's_cmp_eq_u32 s4, {k}')
        a(f's_cselect_b32 s88, {CW[k]}, s88')
        a(f's_cselect_b32 s89, {CW[k+1]}, s89')
    a('s_mul_i32 s88, s77, s88')
    a('s_lshr_b32 s28, s88, 6')
    a('s_mul_i32 s89, s77, s89')
    a('s_lshr_b32 s79, s89, 6')
    if 'solo' in FL:
        a('s_cmp_ge_u32 s3, 4')
        a('s_cselect_b32 s79, s28, s79')
    build_desc(a)
    a(f'v_readlane_b32 s78, v{V_DESC}, 0')
    a(f'v_readlane_b32 s94, v{V_DESC}, 1')
    a(f'v_readlane_b32 s6, v{V_DESC}, 2')
    a('s_mov_b32 s30, 2')
    read_lists(a, 78)
    a('s_waitcnt lgkmcnt(0)')
    issue_loads(a)
    a('s_bfe_u32 s80, s78, 0x30010')
    a('s_mov_b32 s38, s72')
    for k in range(1, 5):
        a(f's_cmp_eq_u32 s80, {k}')
        a(f's_cselect_b32 s38, s{72+k}, s38')
    a('s_cmp_gt_u32 s28, s38')
    a('s_cselect_b32 s38, 1, 0')
    a.label('k2_nofit1')
    stamp(a, 12, dbg)
    a('s_cmp_eq_u32 s93, 0')
    a('s_cbranch_scc1 k2_fits')
    a('s_mov_b32 s66, 1')
    a('s_mov_b32 s67, 0')
    a('s_waitcnt vmcnt(0) lgkmcnt(0)')
    a('s_barrier')
    a('s_branch k2_batch')
    a.label('k2_fits')
    stamp(a, 10, dbg)
    for i in range(32): a(f'v_pk_mov_b32 {vr(ACC+2*i,2)}, 0, 0')
    for i in range(8): a(f'v_mov_b32 v{L+i}, 0'); a(f'v_mov_b32 v{PRE+16+i}, 0')
    for k in range(1, 4):
        a(f's_mul_i32 s10, s77, {CW[k]}')
        a('s_lshr_b32 s10, s10, 6')
        a(f's_mul_i32 s11, s77, {CW[k+1]}')
        a('s_lshr_b32 s11, s11, 6')
        a('s_mov_b32 s12, 0'); a('s_mov_b32 s13, s72')
        for j in range(1, 5):
            a(f's_cmp_ge_u32 s10, s{72+j}')
            a(f's_cselect_b32 s12, {j}, s12')
            a(f's_cselect_b32 s13, s{72+j}, s13')
        a('s_cmp_lt_u32 s10, s11')
        a('s_cselect_b32 s12, s12, 15')
        a('s_cmp_gt_u32 s10, s13')
        a(f's_cselect_b32 s{31+k}, s12, 15')
    a('s_waitcnt vmcnt(9) lgkmcnt(0)')
    a('s_cmp_eq_u32 s15, 0')
    a('s_cbranch_scc0 k2_wxdone')
    a('s_mov_b32 s15, 1')
    a(f's_mov_b32 s89, {NLN2:#x}')
    for b in range(4):
        a(f'v_lshlrev_b32 v{V_WX+b}, 16, v{V_WX+b}')
        a(f'v_mul_f32 v{V_WX+b}, s89, v{V_WX+b}')
    a.label('k2_wxdone')
    for rnd in range(2):
        b0 = PB_[rnd]
        if rnd == 1:
            a('s_cmp_eq_u32 s3, 7')
            a('s_cbranch_scc1 k2_nogeo')
        e_, p0, p1, d0, d1 = b0+1, b0+2, b0+3, b0+4, b0+5
        t = 80
        a(f'v_and_b32 v15, 1, v{e_}')
        a('v_lshlrev_b32 v15, 4, v15')
        a(f'v_alignbit_b32 v{t}, v{p1}, v{p0}, v15')
        a(f'v_lshrrev_b32 v{t+1}, v15, v{p1}')
        a(f'v_lshlrev_b32 v{t+2}, 16, v{t}'); a(f'v_and_b32 v{t+3}, 0xffff0000, v{t}'); a(f'v_lshlrev_b32 v{t+4}, 16, v{t+1}')
        a(f'v_lshlrev_b32 v{t+5}, 16, v{d0}'); a(f'v_and_b32 v{t+6}, 0xffff0000, v{d0}'); a(f'v_lshlrev_b32 v{t+7}, 16, v{d1}')
        a(f'v_sub_f32 v{t+2}, v{t+5}, v{t+2}'); a(f'v_sub_f32 v{t+3}, v{t+6}, v{t+3}'); a(f'v_sub_f32 v{t+4}, v{t+7}, v{t+4}')
        a(f'v_cvt_pk_bf16_f32 v{t}, v{t+2}, v{t+3}')
        a(f'v_cvt_pk_bf16_f32 v{t+1}, v{t+4}, v{V_Z}')
        a(f'v_lshlrev_b32 v{t+2}, 16, v{t}'); a(f'v_and_b32 v{t+3}, 0xffff0000, v{t}'); a(f'v_lshlrev_b32 v{t+4}, 16, v{t+1}')
        a(f'v_mul_f32 v{t+2}, v{t+2}, v{t+2}'); a(f'v_mul_f32 v{t+3}, v{t+3}, v{t+3}'); a(f'v_mul_f32 v{t+4}, v{t+4}, v{t+4}')
        a(f'v_cvt_pk_bf16_f32 v{t+5}, v{t+2}, v{t+3}')
        a(f'v_cvt_pk_bf16_f32 v{t+6}, v{t+4}, v{V_Z}')
        a(f'v_lshlrev_b32 v{t+2}, 16, v{t+5}'); a(f'v_and_b32 v{t+3}, 0xffff0000, v{t+5}'); a(f'v_lshlrev_b32 v{t+4}, 16, v{t+6}')
        a(f'v_add_f32 v{t+2}, v{t+2}, v{t+3}'); a(f'v_add_f32 v{t+2}, v{t+2}, v{t+4}')
        a(f'v_cvt_pk_bf16_f32 v{t+2}, v{t+2}, v{V_Z}')
        a(f'v_and_b32 v{t+3}, 0xffff, v{t}')
        a(f'v_lshl_or_b32 v{t+3}, v{t+2}, 16, v{t+3}')
        a(f'v_alignbit_b32 v{t+4}, v{t+1}, v{t}, 16')
        a(f'v_bfe_u32 v{t+5}, v{e_}, 14, 3')
        a(f'v_or_b32 v{t+5}, 0x80, v{t+5}')
        a(f'v_cmp_le_i32 vcc, 0, v{e_}')
        for r in (t+3, t+4, t+5):
            a(f'v_cndmask_b32 v{r}, 0, v{r}, vcc')
        a(f'ds_write_b32 v{b0}, v{t+3}')
        a(f'ds_write_b32 v{b0}, v{t+4} offset:{XB-XA}')
        a(f'v_subrev_u32 v15, {XA}, v{b0}')
        a('v_lshrrev_b32 v15, 2, v15')
        a(f'v_add_u32 v15, {SV}, v15')
        a(f'ds_write_b8 v15, v{t+5}')
    a.label('k2_nogeo')
    a('s_cmp_eq_u32 s3, 7')
    a('s_cbranch_scc0 k2_nopad')
    a('v_lshlrev_b32 v15, 2, v1')
    a(f'v_add_u32 v15, {XA + 960*4}, v15')
    a('s_mov_b32 exec_hi, 0')
    a(f'ds_write_b32 v15, v{V_Z}')
    a(f'ds_write_b32 v15, v{V_Z} offset:{XB-XA}')
    a(f'v_add_u32 v15, {SV + 960}, v1')
    a(f'ds_write_b8 v15, v{V_Z}')
    a('s_mov_b32 exec_hi, -1')
    a.label('k2_nopad')
    a('s_waitcnt lgkmcnt(0)')
    a('s_barrier')
    stamp(a, 3, dbg)
    wstamp(a, 0, dbg)
    a('s_bitcmp1_b32 s78, 20')
    a('s_cbranch_scc0 k2_edge_done')
    a('s_waitcnt vmcnt(0)')
    read_geo(a, 78)
    read_rows(a)
    read_wda(a, 78)
    a('s_waitcnt lgkmcnt(12)')
    build_xy(a)
    read_ea_oh(a)
    a('s_waitcnt lgkmcnt(0)')
    read_lists(a, 94)
    a(f'v_or_b32 v{OH}, v{OH}, v{V_D2}')
    A00 = A_ops(0, 0)
    for x in A00[0]: a(x)
    a('s_waitcnt lgkmcnt(0)')
    a('s_bitcmp1_b32 s94, 20')
    a('s_cbranch_scc0 k2_p_nodma')
    issue_loads(a)
    a.label('k2_p_nodma')
    for m in A00[1:]:
        for x in m: a(x)
    a('s_mov_b32 s13, 0')
    a('s_mov_b32 s14, 0')
    a('s_mov_b32 s12, 0')
    wstamp(a, 1, dbg)
    def body(a, full):
        tg = 'f' if full else 'g'
        quarter(a, 0, 0, C_ops(3, 1), full)
        jit_l(a, full)
        A = A_ops(1, 1)
        quarter(a, 0, 1, A[0:2], full); quarter(a, 0, 2, A[2:3], full); quarter(a, 0, 3, A[3:4], full)
        a('s_bitcmp1_b32 s13, 19')
        a('s_cbranch_scc1 k2_flush')
        a.label(f'k2_nofl{tg}')
        a('s_waitcnt lgkmcnt(0)')
        quarter(a, 1, 0, C_ops(0, 0), full)
        read_geo(a, 94)
        A = A_ops(2, 0)
        quarter(a, 1, 1, A[0:2], full); quarter(a, 1, 2, A[2:3], full); quarter(a, 1, 3, A[3:4], full)
        A = A_ops(3, 1)
        quarter(a, 0, 0, C_ops(1, 1), full)
        quarter(a, 0, 1, A[0:2], full)
        a('s_waitcnt vmcnt(0) lgkmcnt(0)')
        read_rows(a)
        build_xy(a)
        quarter(a, 0, 2, A[2:3], full); quarter(a, 0, 3, A[3:4], full)
        read_ea_oh(a)
        read_lists(a, 6)
        a('s_xor_b32 s88, s94, s78')
        a('s_and_b32 s88, s88, 0x70000')
        a(f's_cbranch_scc1 k2_wda{tg}')
        a.label(f'k2_wdar{tg}')
        D = Asm()
        D.label(f'k2_wda{tg}')
        read_wda(D, 94)
        D(f's_branch k2_wdar{tg}')
        DEFER.extend(D.lines)
        quarter(a, 1, 0, C_ops(2, 0), full)
        a('s_waitcnt lgkmcnt(0)')
        a(f'v_or_b32 v{OH}, v{OH}, v{V_D2}')
        a('s_bitcmp1_b32 s6, 20')
        a(f's_cbranch_scc0 k2_late{tg}')
        issue_loads(a)
        a.label(f'k2_nx3{tg}')
        D = Asm()
        D.label(f'k2_late{tg}')
        D('s_cmp_eq_u32 s12, 0')
        D(f's_cbranch_scc0 k2_late2{tg}')
        D('s_mov_b32 s12, 1')
        tail_loads_ht(D)
        D.label(f'k2_late2{tg}')
        D('s_bitcmp1_b32 s94, 20')
        D(f's_cbranch_scc1 k2_nx3{tg}')
        tail_loads_wh(D)
        D(f's_branch k2_nx3{tg}')
        DEFER.extend(D.lines)
        A = A_ops(0, 0)
        quarter(a, 1, 1, A[0:2], full); quarter(a, 1, 2, A[2:3], full); quarter(a, 1, 3, A[3:4], full)
    if 'priobig' in FL:
        a('s_cmp_lt_u32 s3, 4')
        a('s_cbranch_scc0 k2_np0')
        a('s_setprio 1')
        a.label('k2_np0')
    if 'prio1' in FL:
        a('s_cmp_ge_u32 s3, 4')
        a('s_cbranch_scc0 k2_np1')
        a('s_setprio 1')
        a.label('k2_np1')
    if 'prioalt' in FL:
        a('s_lshr_b32 s12, s3, 2')
    a.label('k2_grp')
    if 'prioalt' in FL:
        a('s_xor_b32 s12, s12, 1')
        a('s_cmp_eq_u32 s12, 1')
        a('s_cbranch_scc1 k2_pa1')
        a('s_setprio 0')
        a('s_branch k2_pa2')
        a.label('k2_pa1')
        a('s_setprio 1')
        a.label('k2_pa2')
    a('s_bitcmp1_b32 s78, 21')
    a('s_cbranch_scc0 k2_gen')
    body(a, True)
    a.label('k2_rot')
    a('s_mov_b32 s13, s78'); a('s_mov_b32 s14, s38')
    a('s_bitcmp1_b32 s78, 19')
    a('s_cselect_b32 s38, 0, s38')
    a('s_mov_b32 s78, s94'); a('s_mov_b32 s94, s6')
    a('s_add_u32 s30, s30, 1')
    a(f'v_readlane_b32 s6, v{V_DESC}, s30')
    a('s_bitcmp1_b32 s78, 20')
    a('s_cbranch_scc1 k2_grp')
    G = Asm()
    G.label('k2_gen')
    G('s_bfe_u32 s81, s78, 0x6000a')
    save = list(DEFER); DEFER.clear()
    body(G, False)
    G('s_branch k2_rot')
    G.label('k2_flush')
    flush(G, 13, 14, 'a')
    G('s_bitcmp1_b32 s78, 21')
    G('s_cbranch_scc1 k2_noflf')
    G('s_branch k2_noflg')
    inner = list(DEFER); DEFER.clear()
    DEFER.extend(save); DEFER.extend(G.lines); DEFER.extend(inner)
    wstamp(a, 2, dbg)
    wstamp(a, 3, dbg)
    for m in C_ops(3, 1):
        for x in m: a(x)
    flush(a, 13, 14, 'b')
    if False:
        a('s_lshl_b32 s88, s2, 3'); a('s_add_u32 s88, s88, s3'); a('s_lshl_b32 s88, s88, 5')
        a(f's_add_u32 s88, s88, {DBGW + 0x20000}')
        a(f'v_mov_b32 v{V_A}, 0')
        for i in range(6): a(f'v_mov_b32 v{T+i}, v{246+i}')
        a('s_mov_b64 exec, 1')
        a(f'buffer_store_dwordx4 {vr(T,4)}, v{V_A}, s[40:43], s88 offen')
        a(f'buffer_store_dwordx2 {vr(T+4,2)}, v{V_A}, s[40:43], s88 offen offset:16')
        a('s_mov_b64 exec, -1')
    a('s_branch k2_edge_done2')
    a.label('k2_edge_done')
    tail_loads_ht(a)
    tail_loads_wh(a)
    a.label('k2_edge_done2')
    wstamp(a, 4, dbg)
    tail_loads_m(a)
    wstamp(a, 5, dbg)
    a('s_waitcnt vmcnt(32) lgkmcnt(0)')
    wstamp(a, 6, dbg)
    a('s_barrier')
    wstamp(a, 7, dbg)
    stamp(a, 4, dbg)
    a('s_mov_b32 s7, s32'); a('s_mov_b32 s8, s33'); a('s_mov_b32 s9, s34')
    a('v_lshlrev_b32 v176, 3, v0')
    for k in range(1, 4):
        a(f's_cmp_eq_u32 s{6+k}, 15')
        a(f's_cbranch_scc1 k2_mg{k}')
        a(f's_lshl_b32 s11, s{6+k}, 12')
        a(f's_add_u32 s11, s11, {MACC}')
        a('v_add_u32 v177, s11, v176')
        a(f'v_add_u32 v178, {SIDE + (k-1)*4096}, v176')
        a('ds_read_b64 v[180:181], v177')
        a('ds_read_b64 v[182:183], v178')
        a('s_waitcnt lgkmcnt(0)')
        for j in range(2):
            a(f'v_lshlrev_b32 v184, 16, v{180+j}'); a(f'v_lshlrev_b32 v185, 16, v{182+j}'); a('v_add_f32 v184, v184, v185')
            a(f'v_and_b32 v186, 0xffff0000, v{180+j}'); a(f'v_and_b32 v187, 0xffff0000, v{182+j}'); a('v_add_f32 v186, v186, v187')
            a(f'v_cvt_pk_bf16_f32 v{180+j}, v184, v186')
        a('ds_write_b64 v177, v[180:181]')
        a.label(f'k2_mg{k}')
    for k in range(5):
        a(f's_cmp_eq_u32 s{CP+k}, 0')
        a(f's_cbranch_scc0 k2_nz{k}')
        a(f'v_add_u32 v177, {MACC + k*4096}, v176')
        a(f'v_mov_b32 v180, 0'); a('v_mov_b32 v181, 0')
        a('ds_write_b64 v177, v[180:181]')
        a.label(f'k2_nz{k}')
    a('s_cmp_ge_u32 s3, 2')
    a('s_cbranch_scc1 k2_mgdone')
    a('v_cmp_gt_u32 vcc, 120, v0')
    a('s_and_saveexec_b64 s[90:91], vcc')
    a('v_mul_u32_u24 v177, 2731, v0')
    a('v_lshrrev_b32 v177, 16, v177')
    a('v_mul_u32_u24 v178, 24, v177')
    a('v_sub_u32 v178, v0, v178')
    a('v_lshlrev_b32 v178, 2, v178')
    a('v_mul_u32_u24 v179, 192, v177')
    a('v_add_u32 v179, v179, v178')
    a(f'v_add_u32 v179, {PBO}, v179')
    a('ds_read_b32 v180, v179')
    a('ds_read_b32 v181, v179 offset:96')
    a('v_lshlrev_b32 v182, 2, v0')
    a(f'v_add_u32 v182, {PACC}, v182')
    a('ds_read_b32 v183, v182')
    a('v_lshlrev_b32 v184, 2, v177')
    a(f'v_add_u32 v184, {CNT}, v184')
    a('ds_read_b32 v184, v184')
    a(f'v_add_u32 v179, {PBS}, v178')
    for k in range(3):
        a(f'ds_read_b32 v{185+2*k}, v179 offset:{k*192}')
        a(f'ds_read_b32 v{186+2*k}, v179 offset:{k*192+96}')
    a('s_waitcnt lgkmcnt(0)')
    a('v_add_f32 v180, v180, v181')
    a('v_cmp_ne_u32 vcc, 0, v184')
    a('v_cndmask_b32 v180, 0, v180, vcc')
    a('v_add_f32 v183, v183, v180')
    for k in range(3):
        a(f'v_add_f32 v{185+2*k}, v{185+2*k}, v{186+2*k}')
        a(f'v_cmp_eq_u32 vcc, s{7+k}, v177')
        a(f'v_cndmask_b32 v{185+2*k}, 0, v{185+2*k}, vcc')
        a(f'v_add_f32 v183, v183, v{185+2*k}')
    a('ds_write_b32 v182, v183')
    a('s_mov_b64 exec, s[90:91]')
    a.label('k2_mgdone')
    a('s_or_b32 s10, s66, s85')
    a('s_cmp_eq_u32 s10, 0')
    a('s_cbranch_scc1 k2_tail')
    a('s_waitcnt lgkmcnt(0)')
    a('s_barrier')
    a('v_lshlrev_b32 v176, 2, v0')
    a(f'v_add_u32 v177, {MACC}, v176')
    a('v_lshlrev_b32 v178, 3, v0')
    a(f's_mul_i32 s10, s2, 40960')
    a(f's_add_u32 s10, s10, {G32}')
    a('s_mov_b32 s11, 0')
    a.label('k2_sp_loop')
    a('ds_read_b32 v180, v177')
    a('v_mov_b32 v182, 0'); a('v_mov_b32 v183, 0')
    a('s_cmp_eq_u32 s27, 0')
    a('s_cbranch_scc1 k2_sp_first')
    a('buffer_load_dwordx2 v[182:183], v178, s[40:43], s10 offen sc0 sc1')
    a.label('k2_sp_first')
    a('s_waitcnt vmcnt(0) lgkmcnt(0)')
    a('v_lshlrev_b32 v184, 16, v180')
    a('v_and_b32 v185, 0xffff0000, v180')
    a('v_add_f32 v182, v182, v184')
    a('v_add_f32 v183, v183, v185')
    a('buffer_store_dwordx2 v[182:183], v178, s[40:43], s10 offen sc0 sc1')
    a('v_add_u32 v177, 2048, v177')
    a('s_add_u32 s10, s10, 4096')
    a('s_add_u32 s11, s11, 1')
    a('s_cmp_lt_u32 s11, 10')
    a('s_cbranch_scc1 k2_sp_loop')
    a('s_mov_b32 s27, 1')
    a('s_cmp_eq_u32 s66, 1')
    a('s_cbranch_scc0 k2_nb1')
    a('s_add_u32 s67, s67, 12')
    a('s_cmp_lt_u32 s67, 250')
    a('s_cbranch_scc1 k2_batch_w')
    a('s_mov_b32 s66, 3')
    a.label('k2_nb1')
    a('s_cmp_eq_u32 s85, 0')
    a('s_cbranch_scc1 k2_tail_rare')
    a('s_cmp_eq_u32 s66, 2')
    a('s_cbranch_scc1 k2_ovf_more')
    a('s_mov_b32 s66, 2')
    a('s_mov_b32 s67, -1')
    a('s_branch k2_ovf_next')
    a.label('k2_ovf_more')
    a('s_add_u32 s21, s21o, 160'.replace('s21o', 's31'))
    a('s_mov_b32 s31, s21')
    a('s_cmp_lt_u32 s21, s97')
    a('s_cbranch_scc1 k2_batch_w')
    a.label('k2_ovf_next')
    a('s_add_u32 s67, s67, 1')
    a('s_cmp_ge_u32 s67, 250')
    a('s_cbranch_scc1 k2_tail_rare')
    a('s_lshl_b32 s88, s67, 2')
    a(f's_add_u32 s88, s88, {OVFC}')
    a('s_load_dword s97, s[36:37], s88')
    a('s_waitcnt lgkmcnt(0)')
    a('s_cmp_eq_u32 s97, 0')
    a('s_cbranch_scc1 k2_ovf_next')
    a('s_mov_b32 s21, 0'); a('s_mov_b32 s31, 0')
    a.label('k2_batch_w')
    a('s_waitcnt vmcnt(0) lgkmcnt(0)')
    a('s_barrier')
    a('s_branch k2_batch')
    a.label('k2_tail_rare')
    a('s_waitcnt vmcnt(0) lgkmcnt(0)')
    a('v_lshlrev_b32 v176, 2, v0')
    a(f'v_add_u32 v177, {MACC}, v176')
    a('v_lshlrev_b32 v178, 3, v0')
    a(f's_mul_i32 s10, s2, 40960')
    a(f's_add_u32 s10, s10, {G32}')
    a('s_mov_b32 s11, 0')
    a.label('k2_cv_loop')
    a('buffer_load_dwordx2 v[182:183], v178, s[40:43], s10 offen sc0 sc1')
    a('s_waitcnt vmcnt(0)')
    a('v_cvt_pk_bf16_f32 v180, v182, v183')
    a('ds_write_b32 v177, v180')
    a('v_add_u32 v177, 2048, v177')
    a('s_add_u32 s10, s10, 4096')
    a('s_add_u32 s11, s11, 1')
    a('s_cmp_lt_u32 s11, 10')
    a('s_cbranch_scc1 k2_cv_loop')
    a.label('k2_tail')
    a('v_and_b32 v13, 15, v1')
    a('v_lshrrev_b32 v14, 4, v1')
    a('s_mul_i32 s88, s2, 40')
    a('v_lshlrev_b32 v15, 2, v14')
    a('v_add_u32 v15, s88, v15')
    a('v_lshlrev_b32 v15, 9, v15')
    a('v_lshl_add_u32 v15, v13, 2, v15')
    a('s_lshl_b32 s88, s3, 6')
    a('v_add_u32 v15, s88, v15')
    HR = 200
    for rb in range(3):
        for r in range(4):
            off = (16 * rb + r) * 512
            a(f's_mov_b32 s89, {off}')
            a(f'buffer_load_dword v{HR+4*rb+r}, v15, s[56:59], s89 offen')
    stamp(a, 5, dbg)
    TA = 176
    FR = [212, 224]
    a('v_xor_b32 v11, v14, v13')
    a('v_lshlrev_b32 v11, 4, v11')
    for rb in range(3):
        a(f'v_add_u32 v8, {16*rb}, v13')
        a('v_mul_u32_u24 v9, 43, v8')
        a('v_lshrrev_b32 v9, 8, v9')
        a('v_mul_u32_u24 v10, 6, v9')
        a('v_sub_u32 v10, v8, v10')
        a('v_add_u32 v12, 1, v9')
        a('v_lshrrev_b32 v12, 1, v12')
        a('v_lshlrev_b32 v12, 8, v12')
        a('v_lshl_add_u32 v9, v9, 13, v12')
        a('v_lshl_add_u32 v9, v10, 9, v9')
        a(f'v_add_u32 v{2+rb}, v9, v11')
    def rd_h(ksp):
        off = (256 if ksp >= 4 else 0); fr = FR[ksp % 2]
        for rb in range(3):
            a(f'v_xor_b32 v12, {(4*ksp % 16)*16}, v{2+rb}')
            a(f'ds_read_b128 {vr(fr+4*rb,4)}, v12 offset:{off}')
    def rd_m(ksp):
        off = (256 if ksp >= 4 else 0); fr = FR[ksp % 2]
        a(f'v_xor_b32 v12, {(4*ksp % 16)*16}, v11')
        for rb in range(3):
            a(f'ds_read_b128 {vr(fr+4*rb,4)}, v12 offset:{off + rb*8192}')
    rd_h(0)
    for ksp in range(8):
        fr = FR[ksp % 2]
        if ksp < 7:
            rd_h(ksp + 1)
            a(f's_waitcnt vmcnt({28 + 14 - 2*ksp}) lgkmcnt(3)')
        else:
            a(f's_waitcnt vmcnt({28 + 14 - 2*ksp}) lgkmcnt(0)')
        for cb in range(2):
            wreg = vr(WH + 4 * (2 * ksp + cb), 4)
            for rb in range(3):
                d = vr(TA + 8 * rb + 4 * cb, 4)
                c = '0' if ksp == 0 else d
                a(f'v_mfma_f32_16x16x32_bf16 {d}, {vr(fr+4*rb,4)}, {wreg}, {c}')
    a('v_lshl_add_u32 v11, v13, 9, v11')
    a(f'v_add_u32 v11, {MACC}, v11')
    a('s_waitcnt lgkmcnt(0)')
    a('s_barrier')
    rd_m(0)
    for ksp in range(8):
        fr = FR[ksp % 2]
        if ksp < 7:
            rd_m(ksp + 1)
            a(f's_waitcnt vmcnt({12 + 14 - 2*ksp}) lgkmcnt(3)')
        else:
            a(f's_waitcnt vmcnt({12 + 14 - 2*ksp}) lgkmcnt(0)')
        for cb in range(2):
            wreg = vr(WM + 4 * (2 * ksp + cb), 4)
            for rb in range(3):
                d = vr(TA + 8 * rb + 4 * cb, 4)
                a(f'v_mfma_f32_16x16x32_bf16 {d}, {vr(fr+4*rb,4)}, {wreg}, {d}')
    stamp(a, 6, dbg)
    TT = 16
    xs = [TA + i for i in range(24)]
    for i, x in enumerate(xs): a(f'v_mul_f32 v{TT+i}, s92, v{x}')
    for i in range(24): a(f'v_exp_f32 v{TT+i}, v{TT+i}')
    for i in range(24): a(f'v_add_f32 v{TT+i}, 1.0, v{TT+i}')
    for i in range(24): a(f'v_rcp_f32 v{TT+i}, v{TT+i}')
    for i in range(12): a(f'v_pk_mul_f32 {vr(TA+2*i,2)}, {vr(TA+2*i,2)}, {vr(TT+2*i,2)}')
    a('s_waitcnt vmcnt(0)')
    for rb in range(3):
        for r in range(4):
            h = HR + 4 * rb + r
            a(f'v_lshlrev_b32 v{TT+8*rb+r}, 16, v{h}')
            a(f'v_and_b32 v{TT+8*rb+4+r}, 0xffff0000, v{h}')
    for i in range(12): a(f'v_pk_add_f32 {vr(TA+2*i,2)}, {vr(TA+2*i,2)}, {vr(TT+2*i,2)}')
    for rb in range(3):
        for r in range(4):
            a(f'v_cvt_pk_bf16_f32 v{HR+4*rb+r}, v{TA+8*rb+r}, v{TA+8*rb+4+r}')
    for rb in range(3):
        if rb == 2:
            a('s_mov_b32 exec_hi, 0')
        for r in range(4):
            a(f's_mov_b32 s89, {(16 * rb + r) * 512}')
            a(f'buffer_store_dword v{HR+4*rb+r}, v15, s[60:63], s89 offen')
    a('s_mov_b64 exec, -1')
    stamp(a, 7, dbg)
    stamp(a, 9, dbg, 252, 's_memtime')
    a('s_cmp_ge_u32 s3, 2')
    a('s_cbranch_scc1 k2_done')
    a('v_cmp_gt_u32 vcc, 120, v0')
    a('s_and_saveexec_b64 s[90:91], vcc')
    a('s_cbranch_execz k2_done')
    a('v_mul_u32_u24 v16, 21846, v0')
    a('v_lshrrev_b32 v16, 16, v16')
    a('v_mul_u32_u24 v17, 3, v16')
    a('v_sub_u32 v17, v0, v17')
    a('v_lshrrev_b32 v18, 3, v16')
    a('v_mul_u32_u24 v18, 24, v18')
    a('v_and_b32 v19, 1, v16')
    a('v_mul_u32_u24 v19, 12, v19')
    a('v_add_u32 v18, v18, v19')
    a('v_bfe_u32 v19, v16, 1, 2')
    a('v_mul_u32_u24 v19, 3, v19')
    a('v_add3_u32 v18, v18, v19, v17')
    a('v_lshlrev_b32 v18, 2, v18')
    a(f'v_add_u32 v18, {PACC}, v18')
    a('ds_read_b32 v16, v18')
    a('s_mul_i32 s88, s2, 240')
    a('v_lshlrev_b32 v13, 1, v0')
    a('buffer_load_ushort v20, v13, s[52:55], s88 offen')
    a('s_waitcnt vmcnt(0) lgkmcnt(0)')
    a('v_lshlrev_b32 v20, 16, v20')
    a('v_add_f32 v16, v16, v20')
    a(f'v_cvt_pk_bf16_f32 v16, v16, v{V_Z}')
    a('s_add_u32 s88, s88, 5120000')
    a('buffer_store_short v16, v13, s[60:63], s88 offen')
    a.label('k2_done')
    a('s_endpgm')
    for x in DEFER: a(x)
    DEFER.clear()

if __name__ == '__main__':
    from gen import build, gen_k1, K1_LDS
    dbg = len(sys.argv) > 2 and sys.argv[2] == 'dbg'
    ks = [('k1_prep_kernel', 256, 256, K1_LDS, lambda a: gen_k1(a, dbg), 256),
          ('k2_main_kernel', T_, NW * 64, K2_LDS, lambda a: gen_k2(a, dbg), 256)]
    build(ks, sys.argv[1])
    print('K2_LDS', K2_LDS, file=sys.stderr)
```

```python
import struct, sys
from asmdsl import Asm
from layout import *

def f32bits(x): return struct.unpack('<I', struct.pack('<f', x))[0]
NL2E = f32bits(NLOG2E)

def srd(a, d, lo, hi, off, size):
    if off:
        a(f's_add_u32 s{d}, s{lo}, {off}')
        a(f's_addc_u32 s{d+1}, s{hi}, 0')
    else:
        a(f's_mov_b32 s{d}, s{lo}')
        a(f's_mov_b32 s{d+1}, s{hi}')
    a(f's_mov_b32 s{d+2}, {size}')
    a(f's_mov_b32 s{d+3}, 0x20000')

def load_kernargs(a):
    a('s_load_dwordx16 s[16:31], s[0:1], 0')
    a('s_load_dwordx4 s[32:35], s[0:1], 64')
    a('s_load_dwordx2 s[36:37], s[0:1], 80')

K1_H = 0
K1_W = 81920
K1_IMG = 147456
K1_OVC = K1_IMG + 16000
K1_LDS = 163840

import os
FL1 = set(os.environ.get('FL', '').split(','))
def stamp1(a, idx, dbg):
    if not dbg: return
    a(f's_cmp_lg_u32 s3, 0')
    a(f's_cbranch_scc1 k1st_skip{idx}')
    a('s_memrealtime s[94:95]')
    a('s_waitcnt lgkmcnt(0)')
    a('v_mov_b32 v250, s94')
    a('v_mov_b32 v251, s95')
    a('s_lshl_b32 s96, s2, 7')
    a(f's_add_u32 s96, s96, {DBGW + 0x10000 + idx*8}')
    a('v_mov_b32 v252, 0')
    a('s_mov_b64 s[98:99], exec')
    a('s_mov_b64 exec, 1')
    a('buffer_store_dwordx2 v[250:251], v252, s[60:63], s96 offen')
    a('s_mov_b64 exec, s[98:99]')
    a.label(f'k1st_skip{idx}')

def k1_partition(a):
    a('s_cmp_ge_u32 s2, 250')
    a('s_cbranch_scc1 k1_nopart')
    a('s_cmp_ge_u32 s7, 63')
    a('s_cbranch_scc1 k1_pw0')
    a('s_waitcnt vmcnt(36)')
    a('s_branch k1_pw1')
    a.label('k1_pw0')
    a('s_waitcnt vmcnt(0)')
    a.label('k1_pw1')
    a('v_mov_b32 v8, 1')
    for i in range(3):
        d, s_ = 10 + i, 13 + i
        a(f'v_mul_u32_u24 v{46+i}, 52429, v{d}')
        a(f'v_lshrrev_b32 v{46+i}, 21, v{46+i}')
        a(f'v_mul_u32_u24 v5, 40, v{46+i}')
        a(f'v_sub_u32 v5, v{d}, v5')
        a(f'v_lshl_or_b32 v{50+i}, v5, 14, v{s_}')
        a(f'v_add_u32 v7, {i*256}, v0')
        a(f'v_lshl_or_b32 v{50+i}, v7, 20, v{50+i}')
        a(f'v_lshlrev_b32 v{54+i}, 6, v{46+i}')
        a(f'v_add_u32 v{54+i}, {K1_IMG}, v{54+i}')
        if i == 2:
            a('v_cmp_gt_u32 vcc, 128, v0')
            a('s_mov_b64 s[38:39], vcc')
            a('s_mov_b64 exec, vcc')
        a(f'ds_add_rtn_u32 v{58+i}, v{54+i}, v8')
    a('s_mov_b64 exec, -1')
    a('s_waitcnt lgkmcnt(0)')
    for i in range(3):
        if i == 2: a('s_mov_b64 exec, s[38:39]')
        a(f'v_cmp_gt_u32 vcc, {CAP}, v{58+i}')
        a(f'v_lshl_add_u32 v7, v{58+i}, 2, v{54+i}')
        a('s_and_saveexec_b64 s[14:15], vcc')
        a(f'ds_write_b32 v7, v{50+i} offset:4')
        a('s_andn2_b64 exec, s[14:15], exec')
        a(f's_cbranch_execz k1_noovf{i}')
        a(f'v_mov_b32 v7, {K1_OVC}')
        a('ds_add_rtn_u32 v9, v7, v8')
        a('s_waitcnt lgkmcnt(0)')
        a(f'v_mov_b32 v6, v{50+i}')
        a(f'v_mov_b32 v7, v{46+i}')
        a('s_mul_i32 s12, s2, 5120')
        a(f's_add_u32 s12, s12, {OVF}')
        a('v_lshlrev_b32 v9, 3, v9')
        a('buffer_store_dwordx2 v[6:7], v9, s[60:63], s12 offen sc0 sc1')
        a.label(f'k1_noovf{i}')
        a('s_mov_b64 exec, s[14:15]')
    a('s_mov_b64 exec, -1')
    a.label('k1_nopart')

def k1_image(a):
    a('s_cmp_ge_u32 s2, 250')
    a('s_cbranch_scc1 k1_noimg')
    a('v_lshlrev_b32 v4, 4, v0')
    a(f'v_add_u32 v4, {K1_IMG}, v4')
    for i in range(4):
        a(f'ds_read_b128 v[{16+4*i}:{19+4*i}], v4 offset:{i*4096}')
    a(f'v_mov_b32 v6, {K1_OVC}')
    a('ds_read_b32 v8, v6')
    a('v_lshrrev_b32 v5, 2, v0')
    a('v_mul_u32_u24 v5, 16000, v5')
    a('v_and_b32 v6, 3, v0')
    a('v_lshl_add_u32 v5, v6, 4, v5')
    a('s_lshl_b32 s38, s2, 6')
    a(f's_add_u32 s38, s38, {CELL}')
    a('s_mov_b32 s39, 232')
    a('s_waitcnt lgkmcnt(0)')
    a('v_and_b32 v6, 3, v0')
    a('v_lshlrev_b32 v6, 2, v6')
    for i in range(4):
        a(f'v_mov_b32_dpp v7, v{16+4*i} quad_perm:[0,0,0,0] row_mask:0xf bank_mask:0xf')
        a('v_cmp_ge_u32 vcc, v7, v6') if 'fullcell' not in FL1 else a('v_cmp_ge_u32 vcc, v6, v6')
        if i == 3:
            a('v_cmp_gt_u32 s[14:15], s39, v0')
            a('s_and_b64 vcc, vcc, s[14:15]')
        a('s_and_saveexec_b64 s[14:15], vcc')
        a(f'buffer_store_dwordx4 v[{16+4*i}:{19+4*i}], v5, s[60:63], s38 offen sc0 sc1')
        a('s_mov_b64 exec, s[14:15]')
        if i < 3:
            a(f'v_add_u32 v5, {64*16000}, v5')
    a('v_cmp_eq_u32 vcc, 0, v0')
    a('s_and_saveexec_b64 s[14:15], vcc')
    a('s_lshl_b32 s38, s2, 2')
    a(f's_add_u32 s38, s38, {OVFC}')
    a('v_mov_b32 v6, 0')
    a('buffer_store_dword v8, v6, s[60:63], s38 offen sc0 sc1')
    a('s_mov_b64 exec, s[14:15]')
    a.label('k1_noimg')

def gen_k1(a, dbg=False):
    a.label('k1_prep_kernel')
    a('s_cmp_ge_u32 s2, 256')
    a('s_cbranch_scc1 k1_done')
    load_kernargs(a)
    if 'cpf1' in FL1:
        a('s_getpc_b64 s[70:71]')
        a.label('k1_pc1')
        a('s_add_u32 s70, s70, k1_prep_kernel-k1_pc1')
        a('s_addc_u32 s71, s71, -1')
        a('s_lshr_b32 s72, s2, 3')
        a('s_and_b32 s72, s72, 15')
        a('s_lshl_b32 s72, s72, 10')
        a('v_lshlrev_b32 v36, 2, v0')
        a('v_add_u32 v36, s72, v36')
        a('global_load_dword v240, v36, s[70:71]')
    a('v_and_b32 v1, 63, v0')
    a('v_lshrrev_b32 v2, 6, v0')
    a('v_readfirstlane_b32 s3, v2')
    a('s_and_b32 s4, s2, 7')
    a('s_lshr_b32 s5, s2, 3')
    a('s_and_b32 s6, s5, 3')
    a('s_lshr_b32 s5, s5, 2')
    a('s_lshl_b32 s5, s5, 3')
    a('s_add_u32 s7, s4, s5')
    a('s_waitcnt lgkmcnt(0)')
    srd(a, 40, 24, 25, 0, E * 4)
    srd(a, 44, 22, 23, 0, E * 4)
    srd(a, 48, 16, 17, 0, N * 512)
    srd(a, 52, 26, 27, 0, 529 * 512)
    srd(a, 56, 30, 31, 0, 512 * 512)
    srd(a, 60, 36, 37, 0, 0x2000000)
    srd(a, 64, 36, 37, BT, N * 512)
    stamp1(a, 0, dbg)
    a('s_mul_i32 s8, s2, 2560')
    a('v_lshlrev_b32 v3, 2, v0')
    a('s_cmp_ge_u32 s2, 250')
    a('s_cbranch_scc1 k1_nopl')
    for i in range(3):
        a(f'buffer_load_dword v{10+i}, v3, s[40:43], s8 offen offset:{i*1024}')
        a(f'buffer_load_dword v{13+i}, v3, s[44:47], s8 offen offset:{i*1024}')
    a.label('k1_nopl')
    a('s_cmp_eq_u32 s3, 1')
    a('s_cbranch_scc0 k1_nopk1')
    a('s_lshr_b32 s9, s2, 5')
    a('s_lshr_b32 s10, s2, 1')
    a('s_and_b32 s10, s10, 15')
    a('s_and_b32 s11, s2, 1')
    a('s_lshl_b32 s9, s9, 5')
    a('s_add_u32 s9, s9, s11')
    a('v_and_b32 v4, 15, v1')
    a('v_lshrrev_b32 v5, 4, v1')
    a('v_lshlrev_b32 v4, 1, v4')
    a('v_add_u32 v4, s9, v4')
    a('v_lshlrev_b32 v4, 1, v4')
    a('s_cmp_lt_u32 s10, 8')
    a('s_cbranch_scc0 k1_pk_m')
    a('s_lshl_b32 s12, s10, 5')
    a('v_lshlrev_b32 v5, 3, v5')
    a('v_add_u32 v5, s12, v5')
    a('v_lshl_add_u32 v4, v5, 9, v4')
    for j in range(8):
        a(f'buffer_load_ushort v{16+j}, v4, s[56:59], 0 offen offset:{j*512}')
    a('s_branch k1_nopk')
    a.label('k1_pk_m')
    a('s_sub_u32 s12, s10, 8')
    a('s_lshl_b32 s12, s12, 4')
    a('v_lshlrev_b32 v5, 2, v5')
    a('v_add_u32 v5, s12, v5')
    a('v_and_b32 v6, 31, v5')
    a('v_and_b32 v5, 0xffe0, v5')
    a('v_lshl_add_u32 v5, v5, 1, v6')
    a('v_add_u32 v5, 256, v5')
    a('v_lshl_add_u32 v4, v5, 9, v4')
    a('v_add_u32 v6, 16384, v4')
    for j in range(8):
        vb = 4 if j % 2 == 0 else 6
        a(f'buffer_load_ushort v{16+j}, v{vb}, s[56:59], 0 offen offset:{(j//2)*512}')
    a('s_branch k1_nopk')
    a.label('k1_nopk1')
    a('s_cmp_eq_u32 s3, 2')
    a('s_cbranch_scc0 k1_nopk')
    a('s_cmp_lt_u32 s2, 12')
    a('s_cbranch_scc0 k1_nopk')
    a('s_cmp_lt_u32 s2, 8')
    a('s_cbranch_scc0 k1_pk_wd')
    a('v_and_b32 v4, 31, v1')
    a('v_lshrrev_b32 v5, 5, v1')
    a('s_lshl_b32 s9, s2, 5')
    a('v_add_u32 v4, s9, v4')
    a('v_lshlrev_b32 v4, 1, v4')
    a('v_lshlrev_b32 v5, 3, v5')
    a('v_add_u32 v5, 513, v5')
    a('v_lshl_add_u32 v4, v5, 9, v4')
    for j in range(8):
        a(f'buffer_load_ushort v{16+j}, v4, s[52:55], 0 offen offset:{j*512}')
    a('s_branch k1_nopk')
    a.label('k1_pk_wd')
    a('s_sub_u32 s9, s2, 8')
    a('s_lshl_b32 s9, s9, 6')
    a('v_add_u32 v4, s9, v1')
    a('v_lshlrev_b32 v4, 1, v4')
    a('v_add_u32 v4, 0x40000, v4')
    a('buffer_load_ushort v16, v4, s[52:55], 0 offen')
    a.label('k1_nopk')
    a('s_cmp_ge_u32 s7, 63')
    a('s_cbranch_scc1 k1_nodma')
    a('v_lshrrev_b32 v4, 4, v1')
    a('v_and_b32 v5, 15, v1')
    a('v_lshlrev_b32 v6, 2, v4')
    a('v_xor_b32 v5, v5, v6')
    a('v_lshlrev_b32 v5, 4, v5')
    a('v_lshl_add_u32 v30, v4, 9, v5')
    a('v_lshrrev_b32 v4, 3, v1')
    a('v_and_b32 v5, 7, v1')
    a('v_lshrrev_b32 v6, 1, v4')
    a('v_xor_b32 v5, v5, v6')
    a('v_lshlrev_b32 v5, 4, v5')
    a('v_lshl_add_u32 v31, v4, 9, v5')
    a('v_xor_b32 v32, 64, v31')
    a('s_lshr_b32 s9, s6, 1')
    a('s_lshl_b32 s9, s9, 17')
    a('s_and_b32 s10, s6, 1')
    a('s_lshl_b32 s10, s10, 8')
    a('s_add_u32 s9, s9, s10')
    a('s_lshl_b32 s10, s3, 13')
    a('s_add_u32 s9, s9, s10')
    a('s_lshl_b32 s10, s3, 12')
    a(f's_add_u32 s10, s10, {K1_W}')
    a('s_mul_i32 s11, s7, 160')
    a('s_mul_i32 s12, s3, 40')
    a('s_add_u32 s11, s11, s12')
    a('s_lshl_b32 s11, s11, 9')
    a('s_mul_i32 s12, s3, 5120')
    a('s_and_b32 s13, s3, 1')
    a('s_lshl_b32 s13, s13, 6')
    a('v_xor_b32 v33, s13, v31')
    a('v_xor_b32 v34, 64, v33')
    for kc in range(4):
        for q in range(4):
            a(f's_add_u32 s14, s9, {kc*32768 + q*2048}')
            a(f's_add_u32 m0, s10, {kc*16384 + q*1024}')
            a(f'buffer_load_dwordx4 v30, s[52:55], s14 offen lds')
        for i in range(5):
            a(f's_add_u32 s14, s11, {kc*128 + i*4096}')
            a(f's_add_u32 m0, s12, {K1_H + kc*20480 + i*1024}')
            a(f'buffer_load_dwordx4 v{33 + (i%2)}, s[48:51], s14 offen lds')
    a.label('k1_nodma')
    if 'cpf' in FL1:
        a('s_cmp_eq_u32 s3, 3')
        a('s_cbranch_scc0 k1_nocpf')
        a('s_getpc_b64 s[70:71]')
        a.label('k1_pc')
        a('s_add_u32 s70, s70, k2_main_kernel-k1_pc')
        a('s_addc_u32 s71, s71, 0')
        a('s_lshr_b32 s72, s2, 3')
        a('s_and_b32 s72, s72, 31')
        a('s_lshl_b32 s72, s72, 10')
        a('v_lshlrev_b32 v36, 4, v1')
        a('v_add_u32 v36, s72, v36')
        a('global_load_dwordx4 v[240:243], v36, s[70:71]')
        a.label('k1_nocpf')
    a('v_lshlrev_b32 v4, 6, v0')
    a(f'v_add_u32 v4, {K1_IMG}, v4')
    a('v_mov_b32 v5, 0')
    a('v_cmp_eq_u32 vcc, 250, v0')
    a(f'v_mov_b32 v6, {K1_OVC}')
    a('v_cndmask_b32 v4, v4, v6, vcc')
    a('v_cmp_gt_u32 vcc, 251, v0')
    a('s_and_saveexec_b64 s[14:15], vcc')
    a('ds_write_b32 v4, v5')
    a('s_mov_b64 exec, s[14:15]')
    if 'late' not in FL1:
        a('s_waitcnt lgkmcnt(0)')
        a('s_barrier')
        k1_partition(a)
    a('s_cmp_eq_u32 s3, 1')
    a('s_cbranch_scc0 k1_nops1')
    a('s_cmp_ge_u32 s7, 63')
    a('s_cbranch_scc1 k1_w1a')
    a('s_waitcnt vmcnt(36)')
    a('s_branch k1_w1b')
    a.label('k1_w1a')
    a('s_waitcnt vmcnt(0)')
    a.label('k1_w1b')
    a('s_lshl_b32 s38, s2, 10')
    a(f's_add_u32 s38, s38, {WHP}')
    a('v_lshlrev_b32 v4, 4, v1')
    for j in range(4):
        a(f'v_lshl_or_b32 v{16+j}, v{17+2*j}, 16, v{16+2*j}')
    a('buffer_store_dwordx4 v[16:19], v4, s[60:63], s38 offen sc0 sc1')
    a('s_branch k1_nops')
    a.label('k1_nops1')
    a('s_cmp_eq_u32 s3, 2')
    a('s_cbranch_scc0 k1_nops')
    a('s_cmp_lt_u32 s2, 12')
    a('s_cbranch_scc0 k1_nops')
    a('s_waitcnt vmcnt(36)')
    a(f's_mov_b32 s38, {NL2E:#x}')
    a('s_cmp_lt_u32 s2, 8')
    a('s_cbranch_scc0 k1_ps_wd')
    for j in range(8):
        a(f'v_lshlrev_b32 v{16+j}, 16, v{16+j}')
        a(f'v_mul_f32 v{16+j}, s38, v{16+j}')
    for j in range(4):
        a(f'v_cvt_pk_bf16_f32 v{16+j}, v{16+2*j}, v{17+2*j}')
    a('s_lshl_b32 s39, s2, 10')
    a(f's_add_u32 s39, s39, {W3P}')
    a('v_lshlrev_b32 v4, 4, v1')
    a('buffer_store_dwordx4 v[16:19], v4, s[60:63], s39 offen sc0 sc1')
    a('s_branch k1_nops')
    a.label('k1_ps_wd')
    a('v_lshlrev_b32 v16, 16, v16')
    a('v_mul_f32 v16, s38, v16')
    a('v_mov_b32 v17, 0')
    a('v_cvt_pk_bf16_f32 v16, v16, v17')
    a('v_mov_b32 v18, 0')
    a('v_mov_b32 v19, 0')
    a('s_sub_u32 s39, s2, 8')
    a('s_lshl_b32 s39, s39, 10')
    a(f's_add_u32 s39, s39, {WDP}')
    a('v_lshlrev_b32 v4, 4, v1')
    a('buffer_store_dwordx4 v[16:19], v4, s[60:63], s39 offen sc0 sc1')
    a.label('k1_nops')
    stamp1(a, 1, dbg)
    a('s_waitcnt lgkmcnt(0)')
    a('s_cmp_ge_u32 s7, 63')
    a('s_cbranch_scc1 k1_b1a')
    a('s_waitcnt vmcnt(27)')
    a.label('k1_b1a')
    a('s_barrier')
    if 'late' not in FL1:
        k1_image(a)
        a('s_cmp_ge_u32 s7, 63')
        a('s_cbranch_scc1 k1_done')
    else:
        a('s_cmp_ge_u32 s7, 63')
        a('s_cbranch_scc1 k1_part')
    a('v_and_b32 v4, 31, v1')
    a('v_lshrrev_b32 v5, 5, v1')
    a('s_cmp_lt_u32 s6, 2')
    a('s_cbranch_scc0 k1_rho_id')
    a('v_lshrrev_b32 v6, 4, v4')
    a('v_lshlrev_b32 v6, 4, v6')
    a('v_bfe_u32 v7, v4, 2, 1')
    a('v_lshl_add_u32 v6, v7, 3, v6')
    a('v_bfe_u32 v7, v4, 3, 1')
    a('v_lshl_add_u32 v6, v7, 2, v6')
    a('v_and_b32 v7, 3, v4')
    a('v_add_u32 v4, v6, v7')
    a.label('k1_rho_id')
    a('v_bfe_u32 v6, v4, 1, 3')
    a('v_xor_b32 v6, v6, v5')
    a('v_lshlrev_b32 v6, 4, v6')
    a('v_lshl_add_u32 v40, v4, 7, v6')
    for j in range(1, 4):
        a(f'v_xor_b32 v{40+j}, {2*j*16}, v40')
    a('v_bfe_u32 v6, v1, 4, 1')
    a('v_bfe_u32 v7, v1, 2, 2')
    a('v_bfe_u32 v8, v1, 1, 1')
    a('v_lshl_add_u32 v8, v6, 1, v8')
    a('s_lshl_b32 s38, s3, 2')
    a('v_add_u32 v8, s38, v8')
    a('v_lshlrev_b32 v9, 2, v7')
    a('v_xor_b32 v8, v8, v9')
    a('v_lshlrev_b32 v8, 4, v8')
    a('v_lshl_add_u32 v9, v5, 3, v7')
    a('v_lshl_add_u32 v8, v9, 8, v8')
    a('v_and_b32 v9, 1, v1')
    a('v_lshl_add_u32 v8, v9, 3, v8')
    a(f'v_add_u32 v44, {K1_W}, v8')
    ACC = 64
    FR = [144, 168]
    def issue_reads(ks, fs):
        kc, j = ks // 4, ks % 4
        base = FR[fs]
        a(f'ds_read_b64_tr_b16 v[{base+20}:{base+21}], v44 offset:{ks*4096}')
        a(f'ds_read_b64_tr_b16 v[{base+22}:{base+23}], v44 offset:{ks*4096+1024}')
        for rb in range(5):
            off = (kc % 2) * 20480 + rb * 4096
            a(f'ds_read_b128 v[{base+4*rb}:{base+4*rb+3}], v{40+j} offset:{off}')
    for variant in ('A', 'B'):
        if variant == 'A':
            a('s_cmp_lt_u32 s6, 2')
            a('s_cbranch_scc0 k1_gemmB')
        else:
            a.label('k1_gemmB')
        for ks in range(16):
            kc = ks // 4
            fs = ks % 2
            if ks % 4 == 0:
                if kc > 0:
                    a(f's_waitcnt vmcnt({(3-kc)*9})')
                    a('s_barrier')
                if kc == 2:
                    for j in range(4): a(f'v_add_u32 v{40+j}, 40960, v{40+j}')
                issue_reads(ks, fs)
            if ks % 4 != 3:
                issue_reads(ks + 1, 1 - fs)
                a('s_waitcnt lgkmcnt(7)')
            else:
                a('s_waitcnt lgkmcnt(0)')
            base = FR[fs]
            for rb in range(5):
                d = f'v[{ACC+16*rb}:{ACC+16*rb+15}]'
                c = '0' if ks == 0 else d
                hf = f'v[{base+4*rb}:{base+4*rb+3}]'; wf = f'v[{base+20}:{base+23}]'
                if variant == 'A': a(f'v_mfma_f32_32x32x16_bf16 {d}, {hf}, {wf}, {c}')
                else: a(f'v_mfma_f32_32x32x16_bf16 {d}, {wf}, {hf}, {c}')
        stamp1(a, 3 if variant == 'A' else 4, dbg)
        a(f's_mov_b32 s38, {NL2E:#x}')
        a(f's_mov_b32 s39, {NL2E:#x}')
        if variant == 'A':
            a('v_and_b32 v4, 31, v1')
            a('v_lshrrev_b32 v5, 5, v1')
            a('s_and_b32 s8, s6, 1')
            a('s_lshl_b32 s8, s8, 7')
            a('s_lshl_b32 s9, s3, 5')
            a('s_add_u32 s8, s8, s9')
            a('v_add_u32 v4, s8, v4')
            a('v_lshlrev_b32 v4, 4, v4')
            a('v_lshl_add_u32 v4, v5, 12, v4')
            a('s_mul_i32 s8, s7, 81920')
            a(f's_add_u32 s8, s8, {AT}')
            for rb in range(5):
                for half in range(2):
                    r0 = ACC + 16 * rb + 8 * half
                    for p in range(4):
                        a(f'v_pk_mul_f32 v[{r0+2*p}:{r0+2*p+1}], v[{r0+2*p}:{r0+2*p+1}], s[38:39]')
                    t0 = 144 + 4 * ((2 * rb + half) % 4)
                    for p in range(4):
                        a(f'v_cvt_pk_bf16_f32 v{t0+p}, v{r0+2*p}, v{r0+2*p+1}')
                    a(f's_add_u32 s9, s8, {(4*rb + 2*half)*4096}')
                    a(f'buffer_store_dwordx4 v[{t0}:{t0+3}], v4, s[60:63], s9 offen sc0 sc1')
            if 'late' in FL1:
                stamp1(a, 5, dbg)
                a('s_branch k1_part')
            else:
                if dbg: a('s_waitcnt vmcnt(0)')
                stamp1(a, 5, dbg)
                a('s_endpgm')
        else:
            a('v_and_b32 v4, 31, v1')
            a('v_lshrrev_b32 v5, 5, v1')
            a('v_and_b32 v6, 15, v1')
            a('s_lshl_b32 s8, s3, 2')
            a('v_xor_b32 v6, s8, v6')
            a('v_lshlrev_b32 v6, 4, v6')
            a('v_lshl_add_u32 v6, v4, 8, v6')
            a('v_lshl_add_u32 v6, v5, 3, v6')
            for i in range(1, 4):
                a(f'v_xor_b32 v{6+i}, {i*16}, v6')
            for rb in range(5):
                for i in range(4):
                    r0 = ACC + 16 * rb + 4 * i
                    for p in range(2):
                        a(f'v_pk_mul_f32 v[{r0+2*p}:{r0+2*p+1}], v[{r0+2*p}:{r0+2*p+1}], s[38:39]')
                    t0 = 144 + 2 * ((4 * rb + i) % 8)
                    a(f'v_cvt_pk_bf16_f32 v{t0}, v{r0}, v{r0+1}')
                    a(f'v_cvt_pk_bf16_f32 v{t0+1}, v{r0+2}, v{r0+3}')
                    a(f'ds_write_b64 v{6+i}, v[{t0}:{t0+1}] offset:{rb*8192}')
            a('s_waitcnt lgkmcnt(0)')
            a('s_barrier')
            a('v_lshlrev_b32 v4, 4, v0')
            a('v_lshrrev_b32 v5, 4, v0')
            a('v_and_b32 v6, 15, v0')
            a('v_xor_b32 v6, v6, v5')
            a('v_lshlrev_b32 v6, 4, v6')
            a('v_lshl_add_u32 v6, v5, 9, v6')
            a('s_mul_i32 s8, s7, 81920')
            a('s_and_b32 s9, s6, 1')
            a('s_lshl_b32 s9, s9, 8')
            a('s_add_u32 s8, s8, s9')
            for i in range(10):
                a(f'ds_read_b128 v[{64+4*i}:{67+4*i}], v4 offset:{i*4096}')
            for i in range(10):
                a(f's_waitcnt lgkmcnt({9-i})')
                a(f's_add_u32 s9, s8, {i*8192}')
                a(f'buffer_store_dwordx4 v[{64+4*i}:{67+4*i}], v6, s[64:67], s9 offen sc0 sc1')
            if 'late' in FL1:
                stamp1(a, 6, dbg)
                a.label('k1_part')
                k1_partition(a)
                a('s_waitcnt lgkmcnt(0)')
                a('s_barrier')
                k1_image(a)
                if dbg: a('s_waitcnt vmcnt(0)')
                stamp1(a, 7, dbg)
                a('s_endpgm')
            else:
                if dbg: a('s_waitcnt vmcnt(0)')
                stamp1(a, 6, dbg)
                a('s_endpgm')
    a.label('k1_done')
    a('s_endpgm')

def kernel_desc(name, vgpr, sgpr=102, accum=None):
    if accum is None: accum = (vgpr + 3) // 4 * 4
    return f'''.amdhsa_kernel {name}
  .amdhsa_next_free_vgpr {vgpr}
  .amdhsa_next_free_sgpr {sgpr}
  .amdhsa_accum_offset {accum}
  .amdhsa_group_segment_fixed_size 0
  .amdhsa_kernarg_size 88
  .amdhsa_user_sgpr_count 2
  .amdhsa_user_sgpr_kernarg_segment_ptr 1
  .amdhsa_system_sgpr_workgroup_id_x 1
  .amdhsa_float_denorm_mode_32 3
  .amdhsa_float_denorm_mode_16_64 3
.end_amdhsa_kernel
'''

def build(kernels, out):
    hdr = ['; generated by dev/gen.py (hand-designed CDNA4 assembly, own generator)']
    for name, grid, block, lds, fn, vg in kernels:
        hdr.append(f'; @launch kernel={name} grid=({grid},1,1) block=({block},1,1) lds={lds}')
    txt = '\n'.join(hdr) + '\n.amdgcn_target "amdgcn-amd-amdhsa--gfx950"\n.text\n'
    seen = set()
    descs = ''
    for name, grid, block, lds, fn, vg in kernels:
        if name in seen: continue
        seen.add(name)
        a = Asm()
        fn(a)
        body = a.finalize()
        txt += f'.globl {name}\n.p2align 8\n.type {name},@function\n' + body + '\n'
        descs += kernel_desc(name, vg)
        print(name, 'lines', len(a.lines), 'nops', a.nnop, file=sys.stderr)
    txt += '.section .rodata,"a"\n.p2align 6\n' + descs.replace('.amdhsa_kernel', '.p2align 6\n.amdhsa_kernel', 100).replace('.end_.p2align 6\n', '.end_')
    open(out, 'w').write(txt)

if __name__ == '__main__':
    ks = [('k1_prep_kernel', 256, 256, K1_LDS, gen_k1, 256)]
    build(ks, sys.argv[1] if len(sys.argv) > 1 else 'k.s')
```

```python
import struct, sys
from asmdsl import Asm
from layout import *

def f32bits(x): return struct.unpack('<I', struct.pack('<f', x))[0]
NL2E = f32bits(NLOG2E)

def srd(a, d, lo, hi, off, size):
    if off:
        a(f's_add_u32 s{d}, s{lo}, {off}')
        a(f's_addc_u32 s{d+1}, s{hi}, 0')
    else:
        a(f's_mov_b32 s{d}, s{lo}')
        a(f's_mov_b32 s{d+1}, s{hi}')
    a(f's_mov_b32 s{d+2}, {size}')
    a(f's_mov_b32 s{d+3}, 0x20000')

def load_kernargs(a):
    a('s_load_dwordx16 s[16:31], s[0:1], 0')
    a('s_load_dwordx4 s[32:35], s[0:1], 64')
    a('s_load_dwordx2 s[36:37], s[0:1], 80')

K1_H = 0
K1_W = 81920
K1_IMG = 147456
K1_OVC = K1_IMG + 16000
K1_LDS = 163840

import os
FL1 = set(os.environ.get('FL', '').split(','))
def stamp1(a, idx, dbg):
    if not dbg: return
    a(f's_cmp_lg_u32 s3, 0')
    a(f's_cbranch_scc1 k1st_skip{idx}')
    a('s_memrealtime s[94:95]')
    a('s_waitcnt lgkmcnt(0)')
    a('v_mov_b32 v250, s94')
    a('v_mov_b32 v251, s95')
    a('s_lshl_b32 s96, s2, 7')
    a(f's_add_u32 s96, s96, {DBGW + 0x10000 + idx*8}')
    a('v_mov_b32 v252, 0')
    a('s_mov_b64 s[98:99], exec')
    a('s_mov_b64 exec, 1')
    a('buffer_store_dwordx2 v[250:251], v252, s[60:63], s96 offen')
    a('s_mov_b64 exec, s[98:99]')
    a.label(f'k1st_skip{idx}')

def k1_partition(a):
    a('s_cmp_ge_u32 s2, 250')
    a('s_cbranch_scc1 k1_nopart')
    a('s_cmp_ge_u32 s7, 63')
    a('s_cbranch_scc1 k1_pw0')
    a('s_waitcnt vmcnt(36)')
    a('s_branch k1_pw1')
    a.label('k1_pw0')
    a('s_waitcnt vmcnt(0)')
    a.label('k1_pw1')
    a('v_mov_b32 v8, 1')
    for i in range(3):
        d, s_ = 10 + i, 13 + i
        a(f'v_mul_u32_u24 v{46+i}, 52429, v{d}')
        a(f'v_lshrrev_b32 v{46+i}, 21, v{46+i}')
        a(f'v_mul_u32_u24 v5, 40, v{46+i}')
        a(f'v_sub_u32 v5, v{d}, v5')
        a(f'v_lshl_or_b32 v{50+i}, v5, 14, v{s_}')
        a(f'v_add_u32 v7, {i*256}, v0')
        a(f'v_lshl_or_b32 v{50+i}, v7, 20, v{50+i}')
        a(f'v_lshlrev_b32 v{54+i}, 6, v{46+i}')
        a(f'v_add_u32 v{54+i}, {K1_IMG}, v{54+i}')
        if i == 2:
            a('v_cmp_gt_u32 vcc, 128, v0')
            a('s_mov_b64 s[38:39], vcc')
            a('s_mov_b64 exec, vcc')
        a(f'ds_add_rtn_u32 v{58+i}, v{54+i}, v8')
    a('s_mov_b64 exec, -1')
    a('s_waitcnt lgkmcnt(0)')
    for i in range(3):
        if i == 2: a('s_mov_b64 exec, s[38:39]')
        a(f'v_cmp_gt_u32 vcc, {CAP}, v{58+i}')
        a(f'v_lshl_add_u32 v7, v{58+i}, 2, v{54+i}')
        a('s_and_saveexec_b64 s[14:15], vcc')
        a(f'ds_write_b32 v7, v{50+i} offset:4')
        a('s_andn2_b64 exec, s[14:15], exec')
        a(f's_cbranch_execz k1_noovf{i}')
        a(f'v_mov_b32 v7, {K1_OVC}')
        a('ds_add_rtn_u32 v9, v7, v8')
        a('s_waitcnt lgkmcnt(0)')
        a(f'v_mov_b32 v6, v{50+i}')
        a(f'v_mov_b32 v7, v{46+i}')
        a('s_mul_i32 s12, s2, 5120')
        a(f's_add_u32 s12, s12, {OVF}')
        a('v_lshlrev_b32 v9, 3, v9')
        a('buffer_store_dwordx2 v[6:7], v9, s[60:63], s12 offen sc0 sc1')
        a.label(f'k1_noovf{i}')
        a('s_mov_b64 exec, s[14:15]')
    a('s_mov_b64 exec, -1')
    a.label('k1_nopart')

def k1_image(a):
    a('s_cmp_ge_u32 s2, 250')
    a('s_cbranch_scc1 k1_noimg')
    a('v_lshlrev_b32 v4, 4, v0')
    a(f'v_add_u32 v4, {K1_IMG}, v4')
    for i in range(4):
        a(f'ds_read_b128 v[{16+4*i}:{19+4*i}], v4 offset:{i*4096}')
    a(f'v_mov_b32 v6, {K1_OVC}')
    a('ds_read_b32 v8, v6')
    a('v_lshrrev_b32 v5, 2, v0')
    a('v_mul_u32_u24 v5, 16000, v5')
    a('v_and_b32 v6, 3, v0')
    a('v_lshl_add_u32 v5, v6, 4, v5')
    a('s_lshl_b32 s38, s2, 6')
    a(f's_add_u32 s38, s38, {CELL}')
    a('s_mov_b32 s39, 232')
    a('s_waitcnt lgkmcnt(0)')
    a('v_and_b32 v6, 3, v0')
    a('v_lshlrev_b32 v6, 2, v6')
    for i in range(4):
        a(f'v_mov_b32_dpp v7, v{16+4*i} quad_perm:[0,0,0,0] row_mask:0xf bank_mask:0xf')
        a('v_cmp_ge_u32 vcc, v7, v6') if 'fullcell' not in FL1 else a('v_cmp_ge_u32 vcc, v6, v6')
        if i == 3:
            a('v_cmp_gt_u32 s[14:15], s39, v0')
            a('s_and_b64 vcc, vcc, s[14:15]')
        a('s_and_saveexec_b64 s[14:15], vcc')
        a(f'buffer_store_dwordx4 v[{16+4*i}:{19+4*i}], v5, s[60:63], s38 offen sc0 sc1')
        a('s_mov_b64 exec, s[14:15]')
        if i < 3:
            a(f'v_add_u32 v5, {64*16000}, v5')
    a('v_cmp_eq_u32 vcc, 0, v0')
    a('s_and_saveexec_b64 s[14:15], vcc')
    a('s_lshl_b32 s38, s2, 2')
    a(f's_add_u32 s38, s38, {OVFC}')
    a('v_mov_b32 v6, 0')
    a('buffer_store_dword v8, v6, s[60:63], s38 offen sc0 sc1')
    a('s_mov_b64 exec, s[14:15]')
    a.label('k1_noimg')

def gen_k1(a, dbg=False):
    a.label('k1_prep_kernel')
    a('s_cmp_ge_u32 s2, 256')
    a('s_cbranch_scc1 k1_done')
    load_kernargs(a)
    if 'cpf1' in FL1:
        a('s_getpc_b64 s[70:71]')
        a.label('k1_pc1')
        a('s_add_u32 s70, s70, k1_prep_kernel-k1_pc1')
        a('s_addc_u32 s71, s71, -1')
        a('s_lshr_b32 s72, s2, 3')
        a('s_and_b32 s72, s72, 15')
        a('s_lshl_b32 s72, s72, 10')
        a('v_lshlrev_b32 v36, 2, v0')
        a('v_add_u32 v36, s72, v36')
        a('global_load_dword v240, v36, s[70:71]')
    a('v_and_b32 v1, 63, v0')
    a('v_lshrrev_b32 v2, 6, v0')
    a('v_readfirstlane_b32 s3, v2')
    a('s_and_b32 s4, s2, 7')
    a('s_lshr_b32 s5, s2, 3')
    a('s_and_b32 s6, s5, 3')
    a('s_lshr_b32 s5, s5, 2')
    a('s_lshl_b32 s5, s5, 3')
    a('s_add_u32 s7, s4, s5')
    a('s_waitcnt lgkmcnt(0)')
    srd(a, 40, 24, 25, 0, E * 4)
    srd(a, 44, 22, 23, 0, E * 4)
    srd(a, 48, 16, 17, 0, N * 512)
    srd(a, 52, 26, 27, 0, 529 * 512)
    srd(a, 56, 30, 31, 0, 512 * 512)
    srd(a, 60, 36, 37, 0, 0x2000000)
    srd(a, 64, 36, 37, BT, N * 512)
    stamp1(a, 0, dbg)
    a('s_mul_i32 s8, s2, 2560')
    a('v_lshlrev_b32 v3, 2, v0')
    a('s_cmp_ge_u32 s2, 250')
    a('s_cbranch_scc1 k1_nopl')
    for i in range(3):
        a(f'buffer_load_dword v{10+i}, v3, s[40:43], s8 offen offset:{i*1024}')
        a(f'buffer_load_dword v{13+i}, v3, s[44:47], s8 offen offset:{i*1024}')
    a.label('k1_nopl')
    a('s_cmp_eq_u32 s3, 1')
    a('s_cbranch_scc0 k1_nopk1')
    a('s_lshr_b32 s9, s2, 5')
    a('s_lshr_b32 s10, s2, 1')
    a('s_and_b32 s10, s10, 15')
    a('s_and_b32 s11, s2, 1')
    a('s_lshl_b32 s9, s9, 5')
    a('s_add_u32 s9, s9, s11')
    a('v_and_b32 v4, 15, v1')
    a('v_lshrrev_b32 v5, 4, v1')
    a('v_lshlrev_b32 v4, 1, v4')
    a('v_add_u32 v4, s9, v4')
    a('v_lshlrev_b32 v4, 1, v4')
    a('s_cmp_lt_u32 s10, 8')
    a('s_cbranch_scc0 k1_pk_m')
    a('s_lshl_b32 s12, s10, 5')
    a('v_lshlrev_b32 v5, 3, v5')
    a('v_add_u32 v5, s12, v5')
    a('v_lshl_add_u32 v4, v5, 9, v4')
    for j in range(8):
        a(f'buffer_load_ushort v{16+j}, v4, s[56:59], 0 offen offset:{j*512}')
    a('s_branch k1_nopk')
    a.label('k1_pk_m')
    a('s_sub_u32 s12, s10, 8')
    a('s_lshl_b32 s12, s12, 4')
    a('v_lshlrev_b32 v5, 2, v5')
    a('v_add_u32 v5, s12, v5')
    a('v_and_b32 v6, 31, v5')
    a('v_and_b32 v5, 0xffe0, v5')
    a('v_lshl_add_u32 v5, v5, 1, v6')
    a('v_add_u32 v5, 256, v5')
    a('v_lshl_add_u32 v4, v5, 9, v4')
    a('v_add_u32 v6, 16384, v4')
    for j in range(8):
        vb = 4 if j % 2 == 0 else 6
        a(f'buffer_load_ushort v{16+j}, v{vb}, s[56:59], 0 offen offset:{(j//2)*512}')
    a('s_branch k1_nopk')
    a.label('k1_nopk1')
    a('s_cmp_eq_u32 s3, 2')
    a('s_cbranch_scc0 k1_nopk')
    a('s_cmp_lt_u32 s2, 12')
    a('s_cbranch_scc0 k1_nopk')
    a('s_cmp_lt_u32 s2, 8')
    a('s_cbranch_scc0 k1_pk_wd')
    a('v_and_b32 v4, 31, v1')
    a('v_lshrrev_b32 v5, 5, v1')
    a('s_lshl_b32 s9, s2, 5')
    a('v_add_u32 v4, s9, v4')
    a('v_lshlrev_b32 v4, 1, v4')
    a('v_lshlrev_b32 v5, 3, v5')
    a('v_add_u32 v5, 513, v5')
    a('v_lshl_add_u32 v4, v5, 9, v4')
    for j in range(8):
        a(f'buffer_load_ushort v{16+j}, v4, s[52:55], 0 offen offset:{j*512}')
    a('s_branch k1_nopk')
    a.label('k1_pk_wd')
    a('s_sub_u32 s9, s2, 8')
    a('s_lshl_b32 s9, s9, 6')
    a('v_add_u32 v4, s9, v1')
    a('v_lshlrev_b32 v4, 1, v4')
    a('v_add_u32 v4, 0x40000, v4')
    a('buffer_load_ushort v16, v4, s[52:55], 0 offen')
    a.label('k1_nopk')
    a('s_cmp_ge_u32 s7, 63')
    a('s_cbranch_scc1 k1_nodma')
    a('v_lshrrev_b32 v4, 4, v1')
    a('v_and_b32 v5, 15, v1')
    a('v_lshlrev_b32 v6, 2, v4')
    a('v_xor_b32 v5, v5, v6')
    a('v_lshlrev_b32 v5, 4, v5')
    a('v_lshl_add_u32 v30, v4, 9, v5')
    a('v_lshrrev_b32 v4, 3, v1')
    a('v_and_b32 v5, 7, v1')
    a('v_lshrrev_b32 v6, 1, v4')
    a('v_xor_b32 v5, v5, v6')
    a('v_lshlrev_b32 v5, 4, v5')
    a('v_lshl_add_u32 v31, v4, 9, v5')
    a('v_xor_b32 v32, 64, v31')
    a('s_lshr_b32 s9, s6, 1')
    a('s_lshl_b32 s9, s9, 17')
    a('s_and_b32 s10, s6, 1')
    a('s_lshl_b32 s10, s10, 8')
    a('s_add_u32 s9, s9, s10')
    a('s_lshl_b32 s10, s3, 13')
    a('s_add_u32 s9, s9, s10')
    a('s_lshl_b32 s10, s3, 12')
    a(f's_add_u32 s10, s10, {K1_W}')
    a('s_mul_i32 s11, s7, 160')
    a('s_mul_i32 s12, s3, 40')
    a('s_add_u32 s11, s11, s12')
    a('s_lshl_b32 s11, s11, 9')
    a('s_mul_i32 s12, s3, 5120')
    a('s_and_b32 s13, s3, 1')
    a('s_lshl_b32 s13, s13, 6')
    a('v_xor_b32 v33, s13, v31')
    a('v_xor_b32 v34, 64, v33')
    for kc in range(4):
        for q in range(4):
            a(f's_add_u32 s14, s9, {kc*32768 + q*2048}')
            a(f's_add_u32 m0, s10, {kc*16384 + q*1024}')
            a(f'buffer_load_dwordx4 v30, s[52:55], s14 offen lds')
        for i in range(5):
            a(f's_add_u32 s14, s11, {kc*128 + i*4096}')
            a(f's_add_u32 m0, s12, {K1_H + kc*20480 + i*1024}')
            a(f'buffer_load_dwordx4 v{33 + (i%2)}, s[48:51], s14 offen lds')
    a.label('k1_nodma')
    if 'pfe' in FL1:
        srd(a, 68, 20, 21, 0, E * 32)
        a('s_mul_i32 s38, s2, 20000')
        a('v_lshlrev_b32 v36, 4, v0')
        a('v_add_u32 v36, s38, v36')
        for i in range(5):
            a(f'buffer_load_dwordx4 v[{200+4*i}:{203+4*i}], v36, s[68:71], 0 offen')
            if i < 4: a('v_add_u32 v36, 4096, v36')
    if 'pfp' in FL1:
        srd(a, 68, 18, 19, 0, N * 6)
        a('s_lshl_b32 s38, s2, 8')
        a('v_lshlrev_b32 v36, 2, v1')
        a('buffer_load_dword v241, v36, s[68:71], s38 offen')
    if 'cpf' in FL1:
        a('s_cmp_eq_u32 s3, 3')
        a('s_cbranch_scc0 k1_nocpf')
        a('s_getpc_b64 s[70:71]')
        a.label('k1_pc')
        a('s_add_u32 s70, s70, k2_main_kernel-k1_pc')
        a('s_addc_u32 s71, s71, 0')
        a('s_lshr_b32 s72, s2, 3')
        a('s_and_b32 s72, s72, 31')
        a('s_lshl_b32 s72, s72, 10')
        a('v_lshlrev_b32 v36, 4, v1')
        a('v_add_u32 v36, s72, v36')
        a('global_load_dwordx4 v[240:243], v36, s[70:71]')
        a.label('k1_nocpf')
    a('v_lshlrev_b32 v4, 6, v0')
    a(f'v_add_u32 v4, {K1_IMG}, v4')
    a('v_mov_b32 v5, 0')
    a('v_cmp_eq_u32 vcc, 250, v0')
    a(f'v_mov_b32 v6, {K1_OVC}')
    a('v_cndmask_b32 v4, v4, v6, vcc')
    a('v_cmp_gt_u32 vcc, 251, v0')
    a('s_and_saveexec_b64 s[14:15], vcc')
    a('ds_write_b32 v4, v5')
    a('s_mov_b64 exec, s[14:15]')
    if 'late' not in FL1:
        a('s_waitcnt lgkmcnt(0)')
        a('s_barrier')
        k1_partition(a)
    a('s_cmp_eq_u32 s3, 1')
    a('s_cbranch_scc0 k1_nops1')
    a('s_cmp_ge_u32 s7, 63')
    a('s_cbranch_scc1 k1_w1a')
    a('s_waitcnt vmcnt(36)')
    a('s_branch k1_w1b')
    a.label('k1_w1a')
    a('s_waitcnt vmcnt(0)')
    a.label('k1_w1b')
    a('s_lshl_b32 s38, s2, 10')
    a(f's_add_u32 s38, s38, {WHP}')
    a('v_lshlrev_b32 v4, 4, v1')
    for j in range(4):
        a(f'v_lshl_or_b32 v{16+j}, v{17+2*j}, 16, v{16+2*j}')
    a('buffer_store_dwordx4 v[16:19], v4, s[60:63], s38 offen sc0 sc1')
    a('s_branch k1_nops')
    a.label('k1_nops1')
    a('s_cmp_eq_u32 s3, 2')
    a('s_cbranch_scc0 k1_nops')
    a('s_cmp_lt_u32 s2, 12')
    a('s_cbranch_scc0 k1_nops')
    a('s_waitcnt vmcnt(36)')
    a(f's_mov_b32 s38, {NL2E:#x}')
    a('s_cmp_lt_u32 s2, 8')
    a('s_cbranch_scc0 k1_ps_wd')
    for j in range(8):
        a(f'v_lshlrev_b32 v{16+j}, 16, v{16+j}')
        a(f'v_mul_f32 v{16+j}, s38, v{16+j}')
    for j in range(4):
        a(f'v_cvt_pk_bf16_f32 v{16+j}, v{16+2*j}, v{17+2*j}')
    a('s_lshl_b32 s39, s2, 10')
    a(f's_add_u32 s39, s39, {W3P}')
    a('v_lshlrev_b32 v4, 4, v1')
    a('buffer_store_dwordx4 v[16:19], v4, s[60:63], s39 offen sc0 sc1')
    a('s_branch k1_nops')
    a.label('k1_ps_wd')
    a('v_lshlrev_b32 v16, 16, v16')
    a('v_mul_f32 v16, s38, v16')
    a('v_mov_b32 v17, 0')
    a('v_cvt_pk_bf16_f32 v16, v16, v17')
    a('v_mov_b32 v18, 0')
    a('v_mov_b32 v19, 0')
    a('s_sub_u32 s39, s2, 8')
    a('s_lshl_b32 s39, s39, 10')
    a(f's_add_u32 s39, s39, {WDP}')
    a('v_lshlrev_b32 v4, 4, v1')
    a('buffer_store_dwordx4 v[16:19], v4, s[60:63], s39 offen sc0 sc1')
    a.label('k1_nops')
    stamp1(a, 1, dbg)
    a('s_waitcnt lgkmcnt(0)')
    a('s_cmp_ge_u32 s7, 63')
    a('s_cbranch_scc1 k1_b1a')
    a('s_waitcnt vmcnt(27)')
    a.label('k1_b1a')
    a('s_barrier')
    if 'late' not in FL1:
        k1_image(a)
        a('s_cmp_ge_u32 s7, 63')
        a('s_cbranch_scc1 k1_done')
    else:
        a('s_cmp_ge_u32 s7, 63')
        a('s_cbranch_scc1 k1_part')
    a('v_and_b32 v4, 31, v1')
    a('v_lshrrev_b32 v5, 5, v1')
    a('s_cmp_lt_u32 s6, 2')
    a('s_cbranch_scc0 k1_rho_id')
    a('v_lshrrev_b32 v6, 4, v4')
    a('v_lshlrev_b32 v6, 4, v6')
    a('v_bfe_u32 v7, v4, 2, 1')
    a('v_lshl_add_u32 v6, v7, 3, v6')
    a('v_bfe_u32 v7, v4, 3, 1')
    a('v_lshl_add_u32 v6, v7, 2, v6')
    a('v_and_b32 v7, 3, v4')
    a('v_add_u32 v4, v6, v7')
    a.label('k1_rho_id')
    a('v_bfe_u32 v6, v4, 1, 3')
    a('v_xor_b32 v6, v6, v5')
    a('v_lshlrev_b32 v6, 4, v6')
    a('v_lshl_add_u32 v40, v4, 7, v6')
    for j in range(1, 4):
        a(f'v_xor_b32 v{40+j}, {2*j*16}, v40')
    a('v_bfe_u32 v6, v1, 4, 1')
    a('v_bfe_u32 v7, v1, 2, 2')
    a('v_bfe_u32 v8, v1, 1, 1')
    a('v_lshl_add_u32 v8, v6, 1, v8')
    a('s_lshl_b32 s38, s3, 2')
    a('v_add_u32 v8, s38, v8')
    a('v_lshlrev_b32 v9, 2, v7')
    a('v_xor_b32 v8, v8, v9')
    a('v_lshlrev_b32 v8, 4, v8')
    a('v_lshl_add_u32 v9, v5, 3, v7')
    a('v_lshl_add_u32 v8, v9, 8, v8')
    a('v_and_b32 v9, 1, v1')
    a('v_lshl_add_u32 v8, v9, 3, v8')
    a(f'v_add_u32 v44, {K1_W}, v8')
    ACC = 64
    FR = [144, 168]
    def issue_reads(ks, fs):
        kc, j = ks // 4, ks % 4
        base = FR[fs]
        a(f'ds_read_b64_tr_b16 v[{base+20}:{base+21}], v44 offset:{ks*4096}')
        a(f'ds_read_b64_tr_b16 v[{base+22}:{base+23}], v44 offset:{ks*4096+1024}')
        for rb in range(5):
            off = (kc % 2) * 20480 + rb * 4096
            a(f'ds_read_b128 v[{base+4*rb}:{base+4*rb+3}], v{40+j} offset:{off}')
    for variant in ('A', 'B'):
        if variant == 'A':
            a('s_cmp_lt_u32 s6, 2')
            a('s_cbranch_scc0 k1_gemmB')
        else:
            a.label('k1_gemmB')
        for ks in range(16):
            kc = ks // 4
            fs = ks % 2
            if ks % 4 == 0:
                if kc > 0:
                    a(f's_waitcnt vmcnt({(3-kc)*9})')
                    a('s_barrier')
                if kc == 2:
                    for j in range(4): a(f'v_add_u32 v{40+j}, 40960, v{40+j}')
                issue_reads(ks, fs)
            if ks % 4 != 3:
                issue_reads(ks + 1, 1 - fs)
                a('s_waitcnt lgkmcnt(7)')
            else:
                a('s_waitcnt lgkmcnt(0)')
            base = FR[fs]
            for rb in range(5):
                d = f'v[{ACC+16*rb}:{ACC+16*rb+15}]'
                c = '0' if ks == 0 else d
                hf = f'v[{base+4*rb}:{base+4*rb+3}]'; wf = f'v[{base+20}:{base+23}]'
                if variant == 'A': a(f'v_mfma_f32_32x32x16_bf16 {d}, {hf}, {wf}, {c}')
                else: a(f'v_mfma_f32_32x32x16_bf16 {d}, {wf}, {hf}, {c}')
        stamp1(a, 3 if variant == 'A' else 4, dbg)
        a(f's_mov_b32 s38, {NL2E:#x}')
        a(f's_mov_b32 s39, {NL2E:#x}')
        if variant == 'A':
            a('v_and_b32 v4, 31, v1')
            a('v_lshrrev_b32 v5, 5, v1')
            a('s_and_b32 s8, s6, 1')
            a('s_lshl_b32 s8, s8, 7')
            a('s_lshl_b32 s9, s3, 5')
            a('s_add_u32 s8, s8, s9')
            a('v_add_u32 v4, s8, v4')
            a('v_lshlrev_b32 v4, 4, v4')
            a('v_lshl_add_u32 v4, v5, 12, v4')
            a('s_mul_i32 s8, s7, 81920')
            a(f's_add_u32 s8, s8, {AT}')
            for rb in range(5):
                for half in range(2):
                    r0 = ACC + 16 * rb + 8 * half
                    for p in range(4):
                        a(f'v_pk_mul_f32 v[{r0+2*p}:{r0+2*p+1}], v[{r0+2*p}:{r0+2*p+1}], s[38:39]')
                    t0 = 144 + 4 * ((2 * rb + half) % 4)
                    for p in range(4):
                        a(f'v_cvt_pk_bf16_f32 v{t0+p}, v{r0+2*p}, v{r0+2*p+1}')
                    a(f's_add_u32 s9, s8, {(4*rb + 2*half)*4096}')
                    a(f'buffer_store_dwordx4 v[{t0}:{t0+3}], v4, s[60:63], s9 offen sc0 sc1')
            if 'late' in FL1:
                stamp1(a, 5, dbg)
                a('s_branch k1_part')
            else:
                if dbg: a('s_waitcnt vmcnt(0)')
                stamp1(a, 5, dbg)
                a('s_endpgm')
        else:
            a('v_and_b32 v4, 31, v1')
            a('v_lshrrev_b32 v5, 5, v1')
            a('v_and_b32 v6, 15, v1')
            a('s_lshl_b32 s8, s3, 2')
            a('v_xor_b32 v6, s8, v6')
            a('v_lshlrev_b32 v6, 4, v6')
            a('v_lshl_add_u32 v6, v4, 8, v6')
            a('v_lshl_add_u32 v6, v5, 3, v6')
            for i in range(1, 4):
                a(f'v_xor_b32 v{6+i}, {i*16}, v6')
            for rb in range(5):
                for i in range(4):
                    r0 = ACC + 16 * rb + 4 * i
                    for p in range(2):
                        a(f'v_pk_mul_f32 v[{r0+2*p}:{r0+2*p+1}], v[{r0+2*p}:{r0+2*p+1}], s[38:39]')
                    t0 = 144 + 2 * ((4 * rb + i) % 8)
                    a(f'v_cvt_pk_bf16_f32 v{t0}, v{r0}, v{r0+1}')
                    a(f'v_cvt_pk_bf16_f32 v{t0+1}, v{r0+2}, v{r0+3}')
                    a(f'ds_write_b64 v{6+i}, v[{t0}:{t0+1}] offset:{rb*8192}')
            a('s_waitcnt lgkmcnt(0)')
            a('s_barrier')
            a('v_lshlrev_b32 v4, 4, v0')
            a('v_lshrrev_b32 v5, 4, v0')
            a('v_and_b32 v6, 15, v0')
            a('v_xor_b32 v6, v6, v5')
            a('v_lshlrev_b32 v6, 4, v6')
            a('v_lshl_add_u32 v6, v5, 9, v6')
            a('s_mul_i32 s8, s7, 81920')
            a('s_and_b32 s9, s6, 1')
            a('s_lshl_b32 s9, s9, 8')
            a('s_add_u32 s8, s8, s9')
            for i in range(10):
                a(f'ds_read_b128 v[{64+4*i}:{67+4*i}], v4 offset:{i*4096}')
            for i in range(10):
                a(f's_waitcnt lgkmcnt({9-i})')
                a(f's_add_u32 s9, s8, {i*8192}')
                a(f'buffer_store_dwordx4 v[{64+4*i}:{67+4*i}], v6, s[64:67], s9 offen sc0 sc1')
            if 'late' in FL1:
                stamp1(a, 6, dbg)
                a.label('k1_part')
                k1_partition(a)
                a('s_waitcnt lgkmcnt(0)')
                a('s_barrier')
                k1_image(a)
                if dbg: a('s_waitcnt vmcnt(0)')
                stamp1(a, 7, dbg)
                a('s_endpgm')
            else:
                if dbg: a('s_waitcnt vmcnt(0)')
                stamp1(a, 6, dbg)
                a('s_endpgm')
    a.label('k1_done')
    a('s_endpgm')

def kernel_desc(name, vgpr, sgpr=102, accum=None):
    if accum is None: accum = (vgpr + 3) // 4 * 4
    return f'''.amdhsa_kernel {name}
  .amdhsa_next_free_vgpr {vgpr}
  .amdhsa_next_free_sgpr {sgpr}
  .amdhsa_accum_offset {accum}
  .amdhsa_group_segment_fixed_size 0
  .amdhsa_kernarg_size 88
  .amdhsa_user_sgpr_count 2
  .amdhsa_user_sgpr_kernarg_segment_ptr 1
  .amdhsa_system_sgpr_workgroup_id_x 1
  .amdhsa_float_denorm_mode_32 3
  .amdhsa_float_denorm_mode_16_64 3
.end_amdhsa_kernel
'''

def build(kernels, out):
    hdr = ['; generated by dev/gen.py (hand-designed CDNA4 assembly, own generator)']
    for name, grid, block, lds, fn, vg in kernels:
        hdr.append(f'; @launch kernel={name} grid=({grid},1,1) block=({block},1,1) lds={lds}')
    txt = '\n'.join(hdr) + '\n.amdgcn_target "amdgcn-amd-amdhsa--gfx950"\n.text\n'
    seen = set()
    descs = ''
    for name, grid, block, lds, fn, vg in kernels:
        if name in seen: continue
        seen.add(name)
        a = Asm()
        fn(a)
        body = a.finalize()
        txt += f'.globl {name}\n.p2align 8\n.type {name},@function\n' + body + '\n'
        descs += kernel_desc(name, vg)
        print(name, 'lines', len(a.lines), 'nops', a.nnop, file=sys.stderr)
    txt += '.section .rodata,"a"\n.p2align 6\n' + descs.replace('.amdhsa_kernel', '.p2align 6\n.amdhsa_kernel', 100).replace('.end_.p2align 6\n', '.end_')
    open(out, 'w').write(txt)

if __name__ == '__main__':
    ks = [('k1_prep_kernel', 256, 256, K1_LDS, gen_k1, 256)]
    build(ks, sys.argv[1] if len(sys.argv) > 1 else 'k.s')
```

```python
import struct, sys
from asmdsl import Asm
from layout import *

def f32bits(x): return struct.unpack('<I', struct.pack('<f', x))[0]
NL2E = f32bits(NLOG2E)

def srd(a, d, lo, hi, off, size):
    if off:
        a(f's_add_u32 s{d}, s{lo}, {off}')
        a(f's_addc_u32 s{d+1}, s{hi}, 0')
    else:
        a(f's_mov_b32 s{d}, s{lo}')
        a(f's_mov_b32 s{d+1}, s{hi}')
    a(f's_mov_b32 s{d+2}, {size}')
    a(f's_mov_b32 s{d+3}, 0x20000')

def load_kernargs(a):
    a('s_load_dwordx16 s[16:31], s[0:1], 0')
    a('s_load_dwordx4 s[32:35], s[0:1], 64')
    a('s_load_dwordx2 s[36:37], s[0:1], 80')

K1_H = 0
K1_W = 81920
K1_IMG = 147456
K1_OVC = K1_IMG + 16000
K1_LDS = 163840

import os
FL1 = set(os.environ.get('FL', '').split(','))
def stamp1(a, idx, dbg):
    if not dbg: return
    a(f's_cmp_lg_u32 s3, 0')
    a(f's_cbranch_scc1 k1st_skip{idx}')
    a('s_memrealtime s[94:95]')
    a('s_waitcnt lgkmcnt(0)')
    a('v_mov_b32 v250, s94')
    a('v_mov_b32 v251, s95')
    a('s_lshl_b32 s96, s2, 7')
    a(f's_add_u32 s96, s96, {DBGW + 0x10000 + idx*8}')
    a('v_mov_b32 v252, 0')
    a('s_mov_b64 s[98:99], exec')
    a('s_mov_b64 exec, 1')
    a('buffer_store_dwordx2 v[250:251], v252, s[60:63], s96 offen')
    a('s_mov_b64 exec, s[98:99]')
    a.label(f'k1st_skip{idx}')

def k1_partition(a):
    a('s_cmp_ge_u32 s2, 250')
    a('s_cbranch_scc1 k1_nopart')
    a('s_cmp_ge_u32 s7, 63')
    a('s_cbranch_scc1 k1_pw0')
    a('s_waitcnt vmcnt(36)')
    a('s_branch k1_pw1')
    a.label('k1_pw0')
    a('s_waitcnt vmcnt(0)')
    a.label('k1_pw1')
    a('v_mov_b32 v8, 1')
    for i in range(3):
        d, s_ = 10 + i, 13 + i
        a(f'v_mul_u32_u24 v{46+i}, 52429, v{d}')
        a(f'v_lshrrev_b32 v{46+i}, 21, v{46+i}')
        a(f'v_mul_u32_u24 v5, 40, v{46+i}')
        a(f'v_sub_u32 v5, v{d}, v5')
        a(f'v_lshl_or_b32 v{50+i}, v5, 14, v{s_}')
        a(f'v_add_u32 v7, {i*256}, v0')
        a(f'v_lshl_or_b32 v{50+i}, v7, 20, v{50+i}')
        a(f'v_lshlrev_b32 v{54+i}, 6, v{46+i}')
        a(f'v_add_u32 v{54+i}, {K1_IMG}, v{54+i}')
        if i == 2:
            a('v_cmp_gt_u32 vcc, 128, v0')
            a('s_mov_b64 s[38:39], vcc')
            a('s_mov_b64 exec, vcc')
        a(f'ds_add_rtn_u32 v{58+i}, v{54+i}, v8')
    a('s_mov_b64 exec, -1')
    a('s_waitcnt lgkmcnt(0)')
    for i in range(3):
        if i == 2: a('s_mov_b64 exec, s[38:39]')
        a(f'v_cmp_gt_u32 vcc, {CAP}, v{58+i}')
        a(f'v_lshl_add_u32 v7, v{58+i}, 2, v{54+i}')
        a('s_and_saveexec_b64 s[14:15], vcc')
        a(f'ds_write_b32 v7, v{50+i} offset:4')
        a('s_andn2_b64 exec, s[14:15], exec')
        a(f's_cbranch_execz k1_noovf{i}')
        a(f'v_mov_b32 v7, {K1_OVC}')
        a('ds_add_rtn_u32 v9, v7, v8')
        a('s_waitcnt lgkmcnt(0)')
        a(f'v_mov_b32 v6, v{50+i}')
        a(f'v_mov_b32 v7, v{46+i}')
        a('s_mul_i32 s12, s2, 5120')
        a(f's_add_u32 s12, s12, {OVF}')
        a('v_lshlrev_b32 v9, 3, v9')
        a('buffer_store_dwordx2 v[6:7], v9, s[60:63], s12 offen sc0 sc1')
        a.label(f'k1_noovf{i}')
        a('s_mov_b64 exec, s[14:15]')
    a('s_mov_b64 exec, -1')
    a.label('k1_nopart')

def k1_image(a):
    a('s_cmp_ge_u32 s2, 250')
    a('s_cbranch_scc1 k1_noimg')
    a('v_lshlrev_b32 v4, 4, v0')
    a(f'v_add_u32 v4, {K1_IMG}, v4')
    for i in range(4):
        a(f'ds_read_b128 v[{16+4*i}:{19+4*i}], v4 offset:{i*4096}')
    a(f'v_mov_b32 v6, {K1_OVC}')
    a('ds_read_b32 v8, v6')
    a('v_lshrrev_b32 v5, 2, v0')
    a('v_mul_u32_u24 v5, 16000, v5')
    a('v_and_b32 v6, 3, v0')
    a('v_lshl_add_u32 v5, v6, 4, v5')
    a('s_lshl_b32 s38, s2, 6')
    a(f's_add_u32 s38, s38, {CELL}')
    a('s_mov_b32 s39, 232')
    a('s_waitcnt lgkmcnt(0)')
    a('v_and_b32 v6, 3, v0')
    a('v_lshlrev_b32 v6, 2, v6')
    for i in range(4):
        a(f'v_mov_b32_dpp v7, v{16+4*i} quad_perm:[0,0,0,0] row_mask:0xf bank_mask:0xf')
        a('v_cmp_ge_u32 vcc, v7, v6') if 'fullcell' not in FL1 else a('v_cmp_ge_u32 vcc, v6, v6')
        if i == 3:
            a('v_cmp_gt_u32 s[14:15], s39, v0')
            a('s_and_b64 vcc, vcc, s[14:15]')
        a('s_and_saveexec_b64 s[14:15], vcc')
        a(f'buffer_store_dwordx4 v[{16+4*i}:{19+4*i}], v5, s[60:63], s38 offen sc0 sc1')
        a('s_mov_b64 exec, s[14:15]')
        if i < 3:
            a(f'v_add_u32 v5, {64*16000}, v5')
    a('v_cmp_eq_u32 vcc, 0, v0')
    a('s_and_saveexec_b64 s[14:15], vcc')
    a('s_lshl_b32 s38, s2, 2')
    a(f's_add_u32 s38, s38, {OVFC}')
    a('v_mov_b32 v6, 0')
    a('buffer_store_dword v8, v6, s[60:63], s38 offen sc0 sc1')
    a('s_mov_b64 exec, s[14:15]')
    a.label('k1_noimg')

def gen_k1(a, dbg=False):
    a.label('k1_prep_kernel')
    a('s_cmp_ge_u32 s2, 256')
    a('s_cbranch_scc1 k1_done')
    load_kernargs(a)
    if 'cpf1' in FL1:
        a('s_getpc_b64 s[70:71]')
        a.label('k1_pc1')
        a('s_add_u32 s70, s70, k1_prep_kernel-k1_pc1')
        a('s_addc_u32 s71, s71, -1')
        a('s_lshr_b32 s72, s2, 3')
        a('s_and_b32 s72, s72, 15')
        a('s_lshl_b32 s72, s72, 10')
        a('v_lshlrev_b32 v36, 2, v0')
        a('v_add_u32 v36, s72, v36')
        a('global_load_dword v240, v36, s[70:71]')
    a('v_and_b32 v1, 63, v0')
    a('v_lshrrev_b32 v2, 6, v0')
    a('v_readfirstlane_b32 s3, v2')
    a('s_and_b32 s4, s2, 7')
    a('s_lshr_b32 s5, s2, 3')
    a('s_and_b32 s6, s5, 3')
    a('s_lshr_b32 s5, s5, 2')
    a('s_lshl_b32 s5, s5, 3')
    a('s_add_u32 s7, s4, s5')
    a('s_waitcnt lgkmcnt(0)')
    srd(a, 40, 24, 25, 0, E * 4)
    srd(a, 44, 22, 23, 0, E * 4)
    srd(a, 48, 16, 17, 0, N * 512)
    srd(a, 52, 26, 27, 0, 529 * 512)
    srd(a, 56, 30, 31, 0, 512 * 512)
    srd(a, 60, 36, 37, 0, 0x2000000)
    srd(a, 64, 36, 37, BT, N * 512)
    stamp1(a, 0, dbg)
    a('s_mul_i32 s8, s2, 2560')
    a('v_lshlrev_b32 v3, 2, v0')
    a('s_cmp_ge_u32 s2, 250')
    a('s_cbranch_scc1 k1_nopl')
    for i in range(3):
        a(f'buffer_load_dword v{10+i}, v3, s[40:43], s8 offen offset:{i*1024}')
        a(f'buffer_load_dword v{13+i}, v3, s[44:47], s8 offen offset:{i*1024}')
    a.label('k1_nopl')
    a('s_cmp_eq_u32 s3, 1')
    a('s_cbranch_scc0 k1_nopk1')
    a('s_lshr_b32 s9, s2, 5')
    a('s_lshr_b32 s10, s2, 1')
    a('s_and_b32 s10, s10, 15')
    a('s_and_b32 s11, s2, 1')
    a('s_lshl_b32 s9, s9, 5')
    a('s_add_u32 s9, s9, s11')
    a('v_and_b32 v4, 15, v1')
    a('v_lshrrev_b32 v5, 4, v1')
    a('v_lshlrev_b32 v4, 1, v4')
    a('v_add_u32 v4, s9, v4')
    a('v_lshlrev_b32 v4, 1, v4')
    a('s_cmp_lt_u32 s10, 8')
    a('s_cbranch_scc0 k1_pk_m')
    a('s_lshl_b32 s12, s10, 5')
    a('v_lshlrev_b32 v5, 3, v5')
    a('v_add_u32 v5, s12, v5')
    a('v_lshl_add_u32 v4, v5, 9, v4')
    for j in range(8):
        a(f'buffer_load_ushort v{16+j}, v4, s[56:59], 0 offen offset:{j*512}')
    a('s_branch k1_nopk')
    a.label('k1_pk_m')
    a('s_sub_u32 s12, s10, 8')
    a('s_lshl_b32 s12, s12, 4')
    a('v_lshlrev_b32 v5, 2, v5')
    a('v_add_u32 v5, s12, v5')
    a('v_and_b32 v6, 31, v5')
    a('v_and_b32 v5, 0xffe0, v5')
    a('v_lshl_add_u32 v5, v5, 1, v6')
    a('v_add_u32 v5, 256, v5')
    a('v_lshl_add_u32 v4, v5, 9, v4')
    a('v_add_u32 v6, 16384, v4')
    for j in range(8):
        vb = 4 if j % 2 == 0 else 6
        a(f'buffer_load_ushort v{16+j}, v{vb}, s[56:59], 0 offen offset:{(j//2)*512}')
    a('s_branch k1_nopk')
    a.label('k1_nopk1')
    a('s_cmp_eq_u32 s3, 2')
    a('s_cbranch_scc0 k1_nopk')
    a('s_cmp_lt_u32 s2, 12')
    a('s_cbranch_scc0 k1_nopk')
    a('s_cmp_lt_u32 s2, 8')
    a('s_cbranch_scc0 k1_pk_wd')
    a('v_and_b32 v4, 31, v1')
    a('v_lshrrev_b32 v5, 5, v1')
    a('s_lshl_b32 s9, s2, 5')
    a('v_add_u32 v4, s9, v4')
    a('v_lshlrev_b32 v4, 1, v4')
    a('v_lshlrev_b32 v5, 3, v5')
    a('v_add_u32 v5, 513, v5')
    a('v_lshl_add_u32 v4, v5, 9, v4')
    for j in range(8):
        a(f'buffer_load_ushort v{16+j}, v4, s[52:55], 0 offen offset:{j*512}')
    a('s_branch k1_nopk')
    a.label('k1_pk_wd')
    a('s_sub_u32 s9, s2, 8')
    a('s_lshl_b32 s9, s9, 6')
    a('v_add_u32 v4, s9, v1')
    a('v_lshlrev_b32 v4, 1, v4')
    a('v_add_u32 v4, 0x40000, v4')
    a('buffer_load_ushort v16, v4, s[52:55], 0 offen')
    a.label('k1_nopk')
    a('s_cmp_ge_u32 s7, 63')
    a('s_cbranch_scc1 k1_nodma')
    a('v_lshrrev_b32 v4, 4, v1')
    a('v_and_b32 v5, 15, v1')
    a('v_lshlrev_b32 v6, 2, v4')
    a('v_xor_b32 v5, v5, v6')
    a('v_lshlrev_b32 v5, 4, v5')
    a('v_lshl_add_u32 v30, v4, 9, v5')
    a('v_lshrrev_b32 v4, 3, v1')
    a('v_and_b32 v5, 7, v1')
    a('v_lshrrev_b32 v6, 1, v4')
    a('v_xor_b32 v5, v5, v6')
    a('v_lshlrev_b32 v5, 4, v5')
    a('v_lshl_add_u32 v31, v4, 9, v5')
    a('v_xor_b32 v32, 64, v31')
    a('s_lshr_b32 s9, s6, 1')
    a('s_lshl_b32 s9, s9, 17')
    a('s_and_b32 s10, s6, 1')
    a('s_lshl_b32 s10, s10, 8')
    a('s_add_u32 s9, s9, s10')
    a('s_lshl_b32 s10, s3, 13')
    a('s_add_u32 s9, s9, s10')
    a('s_lshl_b32 s10, s3, 12')
    a(f's_add_u32 s10, s10, {K1_W}')
    a('s_mul_i32 s11, s7, 160')
    a('s_mul_i32 s12, s3, 40')
    a('s_add_u32 s11, s11, s12')
    a('s_lshl_b32 s11, s11, 9')
    a('s_mul_i32 s12, s3, 5120')
    a('s_and_b32 s13, s3, 1')
    a('s_lshl_b32 s13, s13, 6')
    a('v_xor_b32 v33, s13, v31')
    a('v_xor_b32 v34, 64, v33')
    for kc in range(4):
        for q in range(4):
            a(f's_add_u32 s14, s9, {kc*32768 + q*2048}')
            a(f's_add_u32 m0, s10, {kc*16384 + q*1024}')
            a(f'buffer_load_dwordx4 v30, s[52:55], s14 offen lds')
        for i in range(5):
            a(f's_add_u32 s14, s11, {kc*128 + i*4096}')
            a(f's_add_u32 m0, s12, {K1_H + kc*20480 + i*1024}')
            a(f'buffer_load_dwordx4 v{33 + (i%2)}, s[48:51], s14 offen lds')
    a.label('k1_nodma')
    if 'pfe' in FL1:
        srd(a, 68, 20, 21, 0, E * 32)
        a('s_mul_i32 s38, s2, 20000')
        a('v_lshlrev_b32 v36, 4, v0')
        a('v_add_u32 v36, s38, v36')
        for i in range(5):
            a(f'buffer_load_dwordx4 v[{200+4*i}:{203+4*i}], v36, s[68:71], 0 offen')
            if i < 4: a('v_add_u32 v36, 4096, v36')
    if 'tlb' in FL1:
        a('v_mov_b32 v37, 0')
        a('s_mul_i32 s38, s7, 81920')
        a('buffer_load_dword v242, v37, s[60:63], s38 offen')
        a(f's_add_u32 s38, s38, {AT}')
        a('buffer_load_dword v243, v37, s[60:63], s38 offen')
        a('s_lshl_b32 s38, s2, 6')
        a(f's_add_u32 s38, s38, {CELL}')
        a('buffer_load_dword v244, v37, s[60:63], s38 offen')
        a(f's_add_u32 s38, s38, {125*16000}')
        a('buffer_load_dword v245, v37, s[60:63], s38 offen')
        a(f's_add_u32 s38, s38, {124*16000}')
        a('buffer_load_dword v246, v37, s[60:63], s38 offen')
        a(f's_mov_b32 s38, {OVFC}')
        a('buffer_load_dword v247, v37, s[60:63], s38 offen')
    if 'pfp' in FL1:
        srd(a, 68, 18, 19, 0, N * 6)
        a('s_lshl_b32 s38, s2, 8')
        a('v_lshlrev_b32 v36, 2, v1')
        a('buffer_load_dword v241, v36, s[68:71], s38 offen')
    if 'cpf' in FL1:
        a('s_cmp_eq_u32 s3, 3')
        a('s_cbranch_scc0 k1_nocpf')
        a('s_getpc_b64 s[70:71]')
        a.label('k1_pc')
        a('s_add_u32 s70, s70, k2_main_kernel-k1_pc')
        a('s_addc_u32 s71, s71, 0')
        a('s_lshr_b32 s72, s2, 3')
        a('s_and_b32 s72, s72, 31')
        a('s_lshl_b32 s72, s72, 10')
        a('v_lshlrev_b32 v36, 4, v1')
        a('v_add_u32 v36, s72, v36')
        a('global_load_dwordx4 v[240:243], v36, s[70:71]')
        a.label('k1_nocpf')
    a('v_lshlrev_b32 v4, 6, v0')
    a(f'v_add_u32 v4, {K1_IMG}, v4')
    a('v_mov_b32 v5, 0')
    a('v_cmp_eq_u32 vcc, 250, v0')
    a(f'v_mov_b32 v6, {K1_OVC}')
    a('v_cndmask_b32 v4, v4, v6, vcc')
    a('v_cmp_gt_u32 vcc, 251, v0')
    a('s_and_saveexec_b64 s[14:15], vcc')
    a('ds_write_b32 v4, v5')
    a('s_mov_b64 exec, s[14:15]')
    if 'late' not in FL1:
        a('s_waitcnt lgkmcnt(0)')
        a('s_barrier')
        k1_partition(a)
    a('s_cmp_eq_u32 s3, 1')
    a('s_cbranch_scc0 k1_nops1')
    a('s_cmp_ge_u32 s7, 63')
    a('s_cbranch_scc1 k1_w1a')
    a('s_waitcnt vmcnt(36)')
    a('s_branch k1_w1b')
    a.label('k1_w1a')
    a('s_waitcnt vmcnt(0)')
    a.label('k1_w1b')
    a('s_lshl_b32 s38, s2, 10')
    a(f's_add_u32 s38, s38, {WHP}')
    a('v_lshlrev_b32 v4, 4, v1')
    for j in range(4):
        a(f'v_lshl_or_b32 v{16+j}, v{17+2*j}, 16, v{16+2*j}')
    a('buffer_store_dwordx4 v[16:19], v4, s[60:63], s38 offen sc0 sc1')
    a('s_branch k1_nops')
    a.label('k1_nops1')
    a('s_cmp_eq_u32 s3, 2')
    a('s_cbranch_scc0 k1_nops')
    a('s_cmp_lt_u32 s2, 12')
    a('s_cbranch_scc0 k1_nops')
    a('s_waitcnt vmcnt(36)')
    a(f's_mov_b32 s38, {NL2E:#x}')
    a('s_cmp_lt_u32 s2, 8')
    a('s_cbranch_scc0 k1_ps_wd')
    for j in range(8):
        a(f'v_lshlrev_b32 v{16+j}, 16, v{16+j}')
        a(f'v_mul_f32 v{16+j}, s38, v{16+j}')
    for j in range(4):
        a(f'v_cvt_pk_bf16_f32 v{16+j}, v{16+2*j}, v{17+2*j}')
    a('s_lshl_b32 s39, s2, 10')
    a(f's_add_u32 s39, s39, {W3P}')
    a('v_lshlrev_b32 v4, 4, v1')
    a('buffer_store_dwordx4 v[16:19], v4, s[60:63], s39 offen sc0 sc1')
    a('s_branch k1_nops')
    a.label('k1_ps_wd')
    a('v_lshlrev_b32 v16, 16, v16')
    a('v_mul_f32 v16, s38, v16')
    a('v_mov_b32 v17, 0')
    a('v_cvt_pk_bf16_f32 v16, v16, v17')
    a('v_mov_b32 v18, 0')
    a('v_mov_b32 v19, 0')
    a('s_sub_u32 s39, s2, 8')
    a('s_lshl_b32 s39, s39, 10')
    a(f's_add_u32 s39, s39, {WDP}')
    a('v_lshlrev_b32 v4, 4, v1')
    a('buffer_store_dwordx4 v[16:19], v4, s[60:63], s39 offen sc0 sc1')
    a.label('k1_nops')
    stamp1(a, 1, dbg)
    a('s_waitcnt lgkmcnt(0)')
    a('s_cmp_ge_u32 s7, 63')
    a('s_cbranch_scc1 k1_b1a')
    a('s_waitcnt vmcnt(27)')
    a.label('k1_b1a')
    a('s_barrier')
    if 'late' not in FL1:
        k1_image(a)
        a('s_cmp_ge_u32 s7, 63')
        a('s_cbranch_scc1 k1_done')
    else:
        a('s_cmp_ge_u32 s7, 63')
        a('s_cbranch_scc1 k1_part')
    a('v_and_b32 v4, 31, v1')
    a('v_lshrrev_b32 v5, 5, v1')
    a('s_cmp_lt_u32 s6, 2')
    a('s_cbranch_scc0 k1_rho_id')
    a('v_lshrrev_b32 v6, 4, v4')
    a('v_lshlrev_b32 v6, 4, v6')
    a('v_bfe_u32 v7, v4, 2, 1')
    a('v_lshl_add_u32 v6, v7, 3, v6')
    a('v_bfe_u32 v7, v4, 3, 1')
    a('v_lshl_add_u32 v6, v7, 2, v6')
    a('v_and_b32 v7, 3, v4')
    a('v_add_u32 v4, v6, v7')
    a.label('k1_rho_id')
    a('v_bfe_u32 v6, v4, 1, 3')
    a('v_xor_b32 v6, v6, v5')
    a('v_lshlrev_b32 v6, 4, v6')
    a('v_lshl_add_u32 v40, v4, 7, v6')
    for j in range(1, 4):
        a(f'v_xor_b32 v{40+j}, {2*j*16}, v40')
    a('v_bfe_u32 v6, v1, 4, 1')
    a('v_bfe_u32 v7, v1, 2, 2')
    a('v_bfe_u32 v8, v1, 1, 1')
    a('v_lshl_add_u32 v8, v6, 1, v8')
    a('s_lshl_b32 s38, s3, 2')
    a('v_add_u32 v8, s38, v8')
    a('v_lshlrev_b32 v9, 2, v7')
    a('v_xor_b32 v8, v8, v9')
    a('v_lshlrev_b32 v8, 4, v8')
    a('v_lshl_add_u32 v9, v5, 3, v7')
    a('v_lshl_add_u32 v8, v9, 8, v8')
    a('v_and_b32 v9, 1, v1')
    a('v_lshl_add_u32 v8, v9, 3, v8')
    a(f'v_add_u32 v44, {K1_W}, v8')
    ACC = 64
    FR = [144, 168]
    def issue_reads(ks, fs):
        kc, j = ks // 4, ks % 4
        base = FR[fs]
        a(f'ds_read_b64_tr_b16 v[{base+20}:{base+21}], v44 offset:{ks*4096}')
        a(f'ds_read_b64_tr_b16 v[{base+22}:{base+23}], v44 offset:{ks*4096+1024}')
        for rb in range(5):
            off = (kc % 2) * 20480 + rb * 4096
            a(f'ds_read_b128 v[{base+4*rb}:{base+4*rb+3}], v{40+j} offset:{off}')
    for variant in ('A', 'B'):
        if variant == 'A':
            a('s_cmp_lt_u32 s6, 2')
            a('s_cbranch_scc0 k1_gemmB')
        else:
            a.label('k1_gemmB')
        for ks in range(16):
            kc = ks // 4
            fs = ks % 2
            if ks % 4 == 0:
                if kc > 0:
                    a(f's_waitcnt vmcnt({(3-kc)*9})')
                    a('s_barrier')
                if kc == 2:
                    for j in range(4): a(f'v_add_u32 v{40+j}, 40960, v{40+j}')
                issue_reads(ks, fs)
            if ks % 4 != 3:
                issue_reads(ks + 1, 1 - fs)
                a('s_waitcnt lgkmcnt(7)')
            else:
                a('s_waitcnt lgkmcnt(0)')
            base = FR[fs]
            for rb in range(5):
                d = f'v[{ACC+16*rb}:{ACC+16*rb+15}]'
                c = '0' if ks == 0 else d
                hf = f'v[{base+4*rb}:{base+4*rb+3}]'; wf = f'v[{base+20}:{base+23}]'
                if variant == 'A': a(f'v_mfma_f32_32x32x16_bf16 {d}, {hf}, {wf}, {c}')
                else: a(f'v_mfma_f32_32x32x16_bf16 {d}, {wf}, {hf}, {c}')
        stamp1(a, 3 if variant == 'A' else 4, dbg)
        a(f's_mov_b32 s38, {NL2E:#x}')
        a(f's_mov_b32 s39, {NL2E:#x}')
        if variant == 'A':
            a('v_and_b32 v4, 31, v1')
            a('v_lshrrev_b32 v5, 5, v1')
            a('s_and_b32 s8, s6, 1')
            a('s_lshl_b32 s8, s8, 7')
            a('s_lshl_b32 s9, s3, 5')
            a('s_add_u32 s8, s8, s9')
            a('v_add_u32 v4, s8, v4')
            a('v_lshlrev_b32 v4, 4, v4')
            a('v_lshl_add_u32 v4, v5, 12, v4')
            a('s_mul_i32 s8, s7, 81920')
            a(f's_add_u32 s8, s8, {AT}')
            for rb in range(5):
                for half in range(2):
                    r0 = ACC + 16 * rb + 8 * half
                    for p in range(4):
                        a(f'v_pk_mul_f32 v[{r0+2*p}:{r0+2*p+1}], v[{r0+2*p}:{r0+2*p+1}], s[38:39]')
                    t0 = 144 + 4 * ((2 * rb + half) % 4)
                    for p in range(4):
                        a(f'v_cvt_pk_bf16_f32 v{t0+p}, v{r0+2*p}, v{r0+2*p+1}')
                    a(f's_add_u32 s9, s8, {(4*rb + 2*half)*4096}')
                    a(f'buffer_store_dwordx4 v[{t0}:{t0+3}], v4, s[60:63], s9 offen sc0 sc1')
            if 'late' in FL1:
                stamp1(a, 5, dbg)
                a('s_branch k1_part')
            else:
                if dbg: a('s_waitcnt vmcnt(0)')
                stamp1(a, 5, dbg)
                a('s_endpgm')
        else:
            a('v_and_b32 v4, 31, v1')
            a('v_lshrrev_b32 v5, 5, v1')
            a('v_and_b32 v6, 15, v1')
            a('s_lshl_b32 s8, s3, 2')
            a('v_xor_b32 v6, s8, v6')
            a('v_lshlrev_b32 v6, 4, v6')
            a('v_lshl_add_u32 v6, v4, 8, v6')
            a('v_lshl_add_u32 v6, v5, 3, v6')
            for i in range(1, 4):
                a(f'v_xor_b32 v{6+i}, {i*16}, v6')
            for rb in range(5):
                for i in range(4):
                    r0 = ACC + 16 * rb + 4 * i
                    for p in range(2):
                        a(f'v_pk_mul_f32 v[{r0+2*p}:{r0+2*p+1}], v[{r0+2*p}:{r0+2*p+1}], s[38:39]')
                    t0 = 144 + 2 * ((4 * rb + i) % 8)
                    a(f'v_cvt_pk_bf16_f32 v{t0}, v{r0}, v{r0+1}')
                    a(f'v_cvt_pk_bf16_f32 v{t0+1}, v{r0+2}, v{r0+3}')
                    a(f'ds_write_b64 v{6+i}, v[{t0}:{t0+1}] offset:{rb*8192}')
            a('s_waitcnt lgkmcnt(0)')
            a('s_barrier')
            a('v_lshlrev_b32 v4, 4, v0')
            a('v_lshrrev_b32 v5, 4, v0')
            a('v_and_b32 v6, 15, v0')
            a('v_xor_b32 v6, v6, v5')
            a('v_lshlrev_b32 v6, 4, v6')
            a('v_lshl_add_u32 v6, v5, 9, v6')
            a('s_mul_i32 s8, s7, 81920')
            a('s_and_b32 s9, s6, 1')
            a('s_lshl_b32 s9, s9, 8')
            a('s_add_u32 s8, s8, s9')
            for i in range(10):
                a(f'ds_read_b128 v[{64+4*i}:{67+4*i}], v4 offset:{i*4096}')
            for i in range(10):
                a(f's_waitcnt lgkmcnt({9-i})')
                a(f's_add_u32 s9, s8, {i*8192}')
                a(f'buffer_store_dwordx4 v[{64+4*i}:{67+4*i}], v6, s[64:67], s9 offen sc0 sc1')
            if 'late' in FL1:
                stamp1(a, 6, dbg)
                a.label('k1_part')
                k1_partition(a)
                a('s_waitcnt lgkmcnt(0)')
                a('s_barrier')
                k1_image(a)
                if dbg: a('s_waitcnt vmcnt(0)')
                stamp1(a, 7, dbg)
                a('s_endpgm')
            else:
                if dbg: a('s_waitcnt vmcnt(0)')
                stamp1(a, 6, dbg)
                a('s_endpgm')
    a.label('k1_done')
    a('s_endpgm')

def kernel_desc(name, vgpr, sgpr=102, accum=None):
    if accum is None: accum = (vgpr + 3) // 4 * 4
    return f'''.amdhsa_kernel {name}
  .amdhsa_next_free_vgpr {vgpr}
  .amdhsa_next_free_sgpr {sgpr}
  .amdhsa_accum_offset {accum}
  .amdhsa_group_segment_fixed_size 0
  .amdhsa_kernarg_size 88
  .amdhsa_user_sgpr_count 2
  .amdhsa_user_sgpr_kernarg_segment_ptr 1
  .amdhsa_system_sgpr_workgroup_id_x 1
  .amdhsa_float_denorm_mode_32 3
  .amdhsa_float_denorm_mode_16_64 3
.end_amdhsa_kernel
'''

def build(kernels, out):
    hdr = ['; generated by dev/gen.py (hand-designed CDNA4 assembly, own generator)']
    for name, grid, block, lds, fn, vg in kernels:
        hdr.append(f'; @launch kernel={name} grid=({grid},1,1) block=({block},1,1) lds={lds}')
    txt = '\n'.join(hdr) + '\n.amdgcn_target "amdgcn-amd-amdhsa--gfx950"\n.text\n'
    seen = set()
    descs = ''
    for name, grid, block, lds, fn, vg in kernels:
        if name in seen: continue
        seen.add(name)
        a = Asm()
        fn(a)
        body = a.finalize()
        txt += f'.globl {name}\n.p2align 8\n.type {name},@function\n' + body + '\n'
        descs += kernel_desc(name, vg)
        print(name, 'lines', len(a.lines), 'nops', a.nnop, file=sys.stderr)
    txt += '.section .rodata,"a"\n.p2align 6\n' + descs.replace('.amdhsa_kernel', '.p2align 6\n.amdhsa_kernel', 100).replace('.end_.p2align 6\n', '.end_')
    open(out, 'w').write(txt)

if __name__ == '__main__':
    ks = [('k1_prep_kernel', 256, 256, K1_LDS, gen_k1, 256)]
    build(ks, sys.argv[1] if len(sys.argv) > 1 else 'k.s')
```

```python
import os, sys
from asmdsl import Asm
from layout import *
from gen import srd, load_kernargs, NL2E, f32bits
FL = set(os.environ.get('FL', '').split(','))
T_ = T
NW = 8
W_ = int(os.environ.get('TW', '23'))
CW = [0, W_, 2 * W_, 2 * W_ + (64 - 2 * W_) // 2, 64]
CAPS = 192
SC = 5 * CAPS + 32
STG = 0
STGW = 8 * 1040
EAP = STG + NW * STGW
JIT = EAP + NW * 1024
SRC = JIT + NW * 2048
W1 = SRC + SC * 4
XA = W1 + SC * 4
XB = XA + SC * 4
SV = XB + SC * 4
W0 = XA
ATL = (SV + SC + 255) // 256 * 256
MACC = ATL + 20480
SIDE = MACC + 40 * 512
PBO = SIDE + 3 * 4096
PBS = PBO + 5 * 2 * 96
PACC = PBS + 3 * 2 * 96
LUT = PACC + 480
CNT = LUT + 144
POST = CNT + 48
K2_LDS = POST + 320
HT = MACC
assert K2_LDS <= 163840, K2_LDS
NLN2 = f32bits(-0.6931471805599453)

V_LCS, V_LCL, V_LRD, V_RB, V_LCD, V_Z, V_LCE, V_LCA = 2, 3, 4, 5, 6, 7, 8, 9
V_A, V_B, V_C, V_D, V_AL = 10, 11, 12, 13, 14
V_E4 = 243
ACC, PRE, R, W3, WDA, SEL, L, OH, EAr, T, SRCr = 16, 80, 112, 144, 160, 176, 184, 192, 196, 200, 208
XY, GA, GB, GS, EID, V_WX, H1 = 216, 218, 219, 220, 221, 224, 228
V_E1 = 244
V_LUT0, V_LUT8 = 247, 248
V_HM = 245
V_PO0, V_PO1, V_EI = 240, 241, 242
def vr(b, n): return f'v[{b}:{b+n-1}]'
uid = [0]
DEFER = []
PROF = 'prof' in FL

def stamp(a, idx, dbg, vb=252, op='s_memrealtime'):
    if not dbg: return
    a(f's_cmp_lg_u32 s3, 0')
    a(f's_cbranch_scc1 st_skip{idx}')
    a(f'{op} s[98:99]')
    a('s_waitcnt lgkmcnt(0)')
    a(f'v_mov_b32 v{vb}, s98')
    a(f'v_mov_b32 v{vb+1}, s99')
    a('s_lshl_b32 s88, s2, 7')
    a(f's_add_u32 s88, s88, {DBGW + idx*8}')
    a(f'v_mov_b32 v{vb+2}, 0')
    a('s_mov_b64 s[98:99], exec')
    a('s_mov_b64 exec, 1')
    a(f'buffer_store_dwordx2 v[{vb}:{vb+1}], v{vb+2}, s[40:43], s88 offen')
    a('s_mov_b64 exec, s[98:99]')
    a.label(f'st_skip{idx}')
PTR = [16, 18, 32, 34, 64, 98]
def wstamp(a, i, dbg):
    if not (dbg and 'ws' in FL): return
    a('s_memrealtime s[98:99]')
    a('s_waitcnt lgkmcnt(0)')
    a('v_mov_b32 v252, s98'); a('v_mov_b32 v253, s99')
    a('s_lshl_b32 s88, s2, 3'); a('s_add_u32 s88, s88, s3'); a('s_lshl_b32 s88, s88, 6')
    a(f's_add_u32 s88, s88, {DBGW + 0x40000 + i*8}')
    a('v_mov_b32 v254, 0')
    a('s_mov_b64 exec, 1')
    a('buffer_store_dwordx2 v[252:253], v254, s[40:43], s88 offen')
    a('s_mov_b64 exec, -1')
def PT(a, i):
    if PROF: a(f's_memtime s[{PTR[i]}:{PTR[i]+1}]')

CP = 22
V_DESC = 246
V_D2 = 222
def build_desc(a):
    g, sub, go, ge, cp, t = 16, 17, 18, 19, 20, 21
    a(f'v_add_u32 v{g}, s28, v1')
    a(f'v_mov_b32 v{sub}, 0'); a(f'v_mov_b32 v{go}, s72'); a(f'v_mov_b32 v{ge}, s73'); a(f'v_mov_b32 v{cp}, s{CP}')
    for k in range(1, 5):
        a(f'v_cmp_le_u32 vcc, s{72+k}, v{g}')
        a(f'v_mov_b32 v{t}, {k}'); a(f'v_cndmask_b32 v{sub}, v{sub}, v{t}, vcc')
        a(f'v_mov_b32 v{t}, s{72+k}'); a(f'v_cndmask_b32 v{go}, v{go}, v{t}, vcc')
        a(f'v_mov_b32 v{t}, s{73+k}'); a(f'v_cndmask_b32 v{ge}, v{ge}, v{t}, vcc')
        a(f'v_mov_b32 v{t}, s{CP+k}'); a(f'v_cndmask_b32 v{cp}, v{cp}, v{t}, vcc')
    a(f'v_sub_u32 v{go}, v{g}, v{go}')
    a(f'v_lshlrev_b32 v{go}, 5, v{go}')
    a(f'v_sub_u32 v{cp}, v{cp}, v{go}')
    a(f'v_min_u32 v{cp}, 32, v{cp}')
    a(f'v_mul_u32_u24 v{t}, {CAPS}, v{sub}')
    a(f'v_add_u32 v{go}, v{go}, v{t}')
    a(f'v_min_u32 v{ge}, s79, v{ge}')
    a(f'v_add_u32 v{t}, 1, v{g}')
    a(f'v_cmp_ge_u32 vcc, v{t}, v{ge}')
    a(f'v_cndmask_b32 v{t}, 0, 1, vcc')
    a(f'v_lshl_or_b32 v{V_DESC}, v{cp}, 10, v{go}')
    a(f'v_lshl_or_b32 v{V_DESC}, v{sub}, 16, v{V_DESC}')
    a(f'v_lshl_or_b32 v{V_DESC}, v{t}, 19, v{V_DESC}')
    a(f'v_or_b32 v{V_DESC}, 0x100000, v{V_DESC}')
    a(f'v_cmp_eq_u32 vcc, 32, v{cp}')
    a(f'v_or_b32 v{t}, 0x200000, v{V_DESC}')
    a(f'v_cndmask_b32 v{V_DESC}, v{V_DESC}, v{t}, vcc')
    a(f'v_cmp_gt_u32 vcc, s79, v{g}')
    a(f'v_mov_b32 v{t}, 0x208000')
    a(f'v_cndmask_b32 v{V_DESC}, v{t}, v{V_DESC}, vcc')

def sig4(a, D):
    a(f's_and_b32 s88, s{D}, 0x3ff')
    a('s_lshl_b32 s88, s88, 2')

def read_lists(a, D):
    sig4(a, D)
    a(f'v_add_u32 v{V_A}, s88, v{V_LCS}')
    a(f'ds_read_b128 {vr(SRCr,4)}, v{V_A}')
    a(f'ds_read_b128 {vr(SRCr+4,4)}, v{V_A} offset:16')
    a(f'v_add_u32 v{V_C}, s88, v{V_EI}')
    a(f'ds_read_b32 v{EID}, v{V_C}')

def read_geo(a, D):
    a(f's_and_b32 s89, s{D}, 0x3ff')
    a('s_lshl_b32 s88, s89, 2')
    a(f'v_add_u32 v{V_B}, s88, v{V_E4}')
    a(f'ds_read_b32 v{GA}, v{V_B}')
    a(f'ds_read_b32 v{GB}, v{V_B} offset:{XB-XA}')
    a(f'v_add_u32 v{V_D}, s89, v{V_E1}')
    a(f'ds_read_u8 v{GS}, v{V_D}')

def issue_loads(a):
    a('s_mov_b32 m0, s39')
    a(f'v_lshl_add_u32 v{V_B}, v{EID}, 5, v{V_HM}')
    a(f'buffer_load_dwordx4 v{V_B}, s[48:51], 0 offen lds')
    for q in range(8):
        a(f's_add_u32 m0, s87, {q*1040}')
        a(f'v_add_u32 v{SRCr+q}, v{V_LCD}, v{SRCr+q}')
        if 'nodma' not in FL: a(f'buffer_load_dwordx4 v{SRCr+q}, s[44:47], s86 offen lds')

def build_xy(a):
    a(f'v_and_b32 v{V_A}, 0x80, v{GS}')
    a(f'v_mul_u32_u24 v{V_A}, 0x7f, v{V_A}')
    a(f'v_lshl_or_b32 v{V_A}, v{GA}, 16, v{V_A}')
    a(f'v_cndmask_b32 v{XY}, v{V_A}, v{GB}, s[64:65]')
    a(f'v_and_b32 v{V_B}, 7, v{GS}')
    a(f'v_lshl_add_u32 v{V_AL}, v{V_B}, 6, v{V_LCL}')
    a(f'v_lshl_add_u32 v{V_B}, v{V_B}, 4, v{V_LUT0}')
    a(f'v_cndmask_b32 v{XY+1}, v{V_B}, v{V_LUT8}, s[64:65]')
    a(f'v_lshrrev_b32 v{V_B}, 16, v{GA}')
    a(f'v_cndmask_b32 v{V_D2}, 0, v{V_B}, s[64:65]')

def read_rows(a):
    if 'norows' in FL: return
    for k in range(8):
        a(f'ds_read_b128 {vr(R+4*k,4)}, v{V_RB} offset:{k*32}')

def read_ea_oh(a):
    a(f'ds_read_b128 {vr(EAr,4)}, v{V_LCE}')
    a(f'ds_read_b128 {vr(OH,4)}, v{XY+1}')

def read_wda(a, D):
    a(f's_bfe_u32 s88, s{D}, 0x30010')
    a('s_lshl_b32 s88, s88, 12')
    a(f'v_add_u32 v{V_A}, s88, v{V_LCA}')
    a('s_mov_b32 exec_hi, 0')
    for b in range(4):
        a(f'ds_read_b128 {vr(WDA+4*b,4)}, v{V_A} offset:{512*b}')
    a('s_mov_b32 exec_hi, -1')

def jit_l(a, full):
    if not full:
        a('s_bfm_b32 s88, s81, 0')
        a('s_mov_b32 exec_lo, s88')
        a('s_mov_b32 exec_hi, s88')
    a(f'ds_write_b16 v{V_AL}, v{XY}')
    a(f'ds_write_b16_d16_hi v{V_AL}, v{XY} offset:16')
    if not full: a('s_mov_b64 exec, -1')
    a(f'ds_read_b128 {vr(L,4)}, v{V_LRD}')
    a(f'ds_read_b128 {vr(L+4,4)}, v{V_LRD} offset:1024')
    if not full:
        a('s_mov_b32 exec_lo, s88')
        a('s_mov_b32 exec_hi, s88')
    a(f'ds_write_b16 v{V_AL}, v{V_Z}')
    a(f'ds_write_b16 v{V_AL}, v{V_Z} offset:16')
    if not full: a('s_mov_b64 exec, -1')

def mf(d, x, y, c): return f'v_mfma_f32_32x32x16_bf16 {d}, {x}, {y}, {c}'
def A_ops(b, buf):
    d = vr(PRE + 16 * buf, 16)
    return [[mf(d, vr(R+8*b,4), vr(SEL,4), '0')], [mf(d, vr(R+8*b+4,4), vr(SEL+4,4), d)],
            [mf(d, vr(EAr,4), vr(W3+4*b,4), d)], [mf(d, vr(OH,4), vr(WDA+4*b,4), d)]]
def C_ops(b, buf):
    acc = vr(ACC + 16 * b, 16); p = PRE + 16 * buf
    return [[mf(acc, vr(L,4), vr(p,4), acc)], [mf(acc, vr(L+4,4), vr(p+4,4), acc)]]

def quarter(a, buf, q, mops, full):
    y = PRE + 16 * buf + 4 * q
    t = T + 4 * (q % 2)
    uid[0] += 1; u = uid[0]
    chk = (q > 0 and not full)
    if chk:
        a(f's_cmp_le_u32 s81, {8*q}')
        a(f's_cbranch_scc1 k2_qs{u}')
    seq = [f'v_exp_f32 v{t+i}, v{y+i}' for i in range(4)]
    seq += [f'v_add_f32 v{t+i}, 1.0, v{t+i}' for i in range(4)]
    seq += [f'v_rcp_f32 v{t+i}, v{t+i}' for i in range(4)]
    seq += ([f'v_pk_mul_f32 {vr(y+2*i,2)}, {vr(y+2*i,2)}, {vr(t+2*i,2)}' for i in range(2)] if 'pk' in FL else [f'v_mul_f32 v{y+i}, v{y+i}, v{t+i}' for i in range(4)])
    pk = PRE + 16 * buf + 2 * q
    seq += [f'v_cvt_pk_bf16_f32 v{pk}, v{y}, v{y+1}', f'v_cvt_pk_bf16_f32 v{pk+1}, v{y+2}, v{y+3}']
    pos = (eval(os.environ.get('POS', '[1, 9]')) if 'pk' in FL else [2, 10]); k = 0
    for i, x in enumerate(seq):
        if k < len(mops) and i == pos[k]:
            for z in mops[k]: a(z)
            k += 1
        a(x)
    if chk:
        a.label(f'k2_qe{u}')
        DEFER.append(f'k2_qs{u}:')
        DEFER.extend([f'v_mov_b32 v{pk}, 0', f'v_mov_b32 v{pk+1}, 0'])
        for m in mops: DEFER.extend(m)
        DEFER.append(f's_branch k2_qe{u}')

def flush(a, Dp, cont, tag):
    sub = 91
    a(f's_bfe_u32 s91, s{Dp}, 0x30010')
    n_, kh_, ad, t0 = V_A, V_B, V_C, V_D
    a(f'v_and_b32 v{n_}, 31, v1')
    a(f'v_lshrrev_b32 v{kh_}, 5, v1')
    a(f'v_lshrrev_b32 v{ad}, 2, v{n_}')
    a('s_lshl_b32 s88, s5, 4')
    a(f'v_add_u32 v{ad}, s88, v{ad}')
    a(f'v_xor_b32 v{ad}, v{ad}, v{kh_}')
    a(f'v_lshlrev_b32 v{ad}, 4, v{ad}')
    a(f'v_lshl_add_u32 v{ad}, v{kh_}, 9, v{ad}')
    a(f'v_and_b32 v{t0}, 3, v{n_}')
    a(f'v_lshl_add_u32 v{ad}, v{t0}, 2, v{ad}')
    a(f's_and_b32 s88, s{sub}, 1')
    a('s_lshl_b32 s88, s88, 7')
    a(f'v_xor_b32 v{ad}, s88, v{ad}')
    a(f's_lshl_b32 s88, s{sub}, 12')
    a(f's_add_u32 s88, s88, {MACC}')
    a('s_lshl_b32 s89, s4, 12')
    a(f's_add_u32 s89, s89, {SIDE - 4096}')
    a(f's_cmp_eq_u32 s{cont}, 1')
    a('s_cselect_b32 s88, s89, s88')
    a(f'v_add_u32 v{ad}, s88, v{ad}')
    a(f's_mov_b32 s89, {NLN2:#x}')
    for bp in range(2):
        for i in range(4):
            a(f'v_mul_f32 v{ACC + 32*bp + 4*i}, s89, v{ACC + 32*bp + 4*i}')
            a(f'v_mul_f32 v{ACC + 32*bp + 16 + 4*i}, s89, v{ACC + 32*bp + 16 + 4*i}')
    for i in range(4):
        a(f'v_xor_b32 v{T+i}, {i*32}, v{ad}')
        a(f'v_xor_b32 v{T+4+i}, {i*32 ^ 128}, v{ad}')
    for bp in range(2):
        for i in range(4):
            x0, x1 = ACC + 32 * bp + 4 * i, ACC + 32 * bp + 16 + 4 * i
            a(f'v_cvt_pk_bf16_f32 v{x0}, v{x0}, v{x1}')
    for bp in range(2):
        for i in range(4):
            a(f'ds_write_b32 v{T+4*bp+i}, v{ACC + 32*bp + 4*i} offset:{i*1024}')
    P = [ACC + 4 * (k // 3) + (k % 3) + 1 for k in range(12)]
    def wxop(b):
        base = V_WX + (b & ~1)
        return vr(base, 2), ('op_sel:[0,0] op_sel_hi:[1,0]' if b % 2 == 0 else 'op_sel:[0,1] op_sel_hi:[1,1]')
    w, m = wxop(0)
    for p in range(8): a(f'v_pk_mul_f32 {vr(ACC+2*p,2)}, {vr(ACC+2*p,2)}, {w} {m}')
    for b in range(1, 4):
        w, m = wxop(b)
        m3 = m.replace(']', ',0]', 1) if False else None
        sel = ('op_sel:[0,0,0] op_sel_hi:[1,0,1]' if b % 2 == 0 else 'op_sel:[0,1,0] op_sel_hi:[1,1,1]')
        for p in range(8): a(f'v_pk_fma_f32 {vr(ACC+2*p,2)}, {vr(ACC+16*b+2*p,2)}, {w}, {vr(ACC+2*p,2)} {sel}')
    for j in range(6): a(f'v_permlane16_swap_b32 v{P[2*j]}, v{P[2*j+1]}')
    for j in range(6): a(f'v_add_f32 v{P[2*j]}, v{P[2*j]}, v{P[2*j+1]}')
    S = [P[2*j] for j in range(6)]
    U = [P[1], P[3], P[5]]
    for j in range(3):
        a(f'v_add_f32_dpp v{U[j]}, v{S[2*j]}, v{S[2*j]} row_ror:8 row_mask:0xf bank_mask:0x3')
    for j in range(3):
        a(f'v_add_f32_dpp v{U[j]}, v{S[2*j+1]}, v{S[2*j+1]} row_ror:8 row_mask:0xf bank_mask:0xc')
    V0, V1 = P[7], P[9]
    a(f'v_add_f32_dpp v{V0}, v{U[0]}, v{U[0]} row_half_mirror row_mask:0xf bank_mask:0x5')
    a(f'v_add_f32_dpp v{V1}, v{U[2]}, v{U[2]} row_half_mirror row_mask:0xf bank_mask:0xf')
    a(f'v_add_f32_dpp v{V0}, v{U[1]}, v{U[1]} row_half_mirror row_mask:0xf bank_mask:0xa')
    for mod in ('quad_perm:[1,0,3,2]', 'quad_perm:[2,3,0,1]'):
        for v in (V0, V1):
            a(f'v_add_f32_dpp v{v}, v{v}, v{v} {mod} row_mask:0xf bank_mask:0xf')
    a(f's_mul_i32 s88, s{sub}, 192')
    a(f's_add_u32 s88, s88, {PBO}')
    a('s_mul_i32 s89, s4, 192')
    a(f's_add_u32 s89, s89, {PBS - 192}')
    a(f's_cmp_eq_u32 s{cont}, 1')
    a('s_cselect_b32 s88, s89, s88')
    a('s_mul_i32 s89, s5, 96')
    a('s_add_u32 s88, s88, s89')
    a(f'v_add_u32 v{ad}, s88, v{V_PO0}')
    a(f'v_add_u32 v{t0}, s88, v{V_PO1}')
    a('s_mov_b32 exec_lo, 0x11111111')
    a('s_mov_b32 exec_hi, 0x11111111')
    a(f'ds_write_b32 v{ad}, v{V0}')
    a('s_mov_b32 exec_lo, 0x01010101')
    a('s_mov_b32 exec_hi, 0x01010101')
    a(f'ds_write_b32 v{t0}, v{V1}')
    a('s_mov_b64 exec, -1')
    if tag == 'a':
        for i in range(32): a(f'v_pk_mov_b32 {vr(ACC+2*i,2)}, 0, 0')

def hpart(a, WH):
    HA = 112
    HF = [96, 16]
    a(f's_mov_b32 s89, {NLN2:#x}')
    for b in range(4):
        a(f'v_lshlrev_b32 v{V_WX+b}, 16, v{V_WX+b}')
        a(f'v_mul_f32 v{V_WX+b}, s89, v{V_WX+b}')
    a('v_and_b32 v13, 15, v1')
    a('v_lshrrev_b32 v14, 4, v1')
    a('v_xor_b32 v15, v14, v13')
    a('v_lshlrev_b32 v15, 4, v15')
    a('v_lshl_add_u32 v15, v13, 9, v15')
    a(f'v_add_u32 v15, {HT}, v15')
    for ksp in range(8):
        a(f'v_xor_b32 v12, {(4*ksp % 16)*16}, v15')
        off = (256 if ksp >= 4 else 0)
        fr = HF[ksp % 2]
        for rb in range(3):
            a(f'ds_read_b128 {vr(fr+4*rb,4)}, v12 offset:{off + rb*8192}')
        a('s_waitcnt lgkmcnt(0)')
        for cb in range(2):
            wreg = vr(WH + 4 * (2 * ksp + cb), 4)
            for rb in range(3):
                d = vr(HA + 8 * rb + 4 * cb, 4)
                c = '0' if ksp == 0 else d
                a(f'v_mfma_f32_16x16x32_bf16 {d}, {vr(fr+4*rb,4)}, {wreg}, {c}')
    for rb in range(3):
        for r in range(4):
            a(f'v_cvt_pk_bf16_f32 v{H1+4*rb+r}, v{HA+8*rb+r}, v{HA+8*rb+4+r}')

def consts(a, first):
    a('v_lshlrev_b32 v12, 4, v1')
    a('s_lshl_b32 s88, s5, 12')
    a(f's_add_u32 s88, s88, {W3P}')
    for b in range(4):
        a(f'buffer_load_dwordx4 {vr(W3+4*b,4)}, v12, s[40:43], s88 offen offset:{1024*b}')
    a('v_and_b32 v13, 31, v1')
    a('v_lshrrev_b32 v14, 5, v1')
    a('s_lshl_b32 s88, s5, 8')
    a('v_lshlrev_b32 v15, 1, v13')
    if first:
        for b in range(4):
            a(f'buffer_load_ushort v{V_WX+b}, v15, s[68:71], s88 offen offset:{64*b}')
    a('s_lshl_b32 s88, s5, 11')
    a(f's_add_u32 s88, s88, {WDP}')
    a('v_lshlrev_b32 v15, 4, v13')
    for b in range(4):
        a(f'buffer_load_dword v{WDA+4*b}, v15, s[40:43], s88 offen offset:{512*b}')
        for i in range(1, 4): a(f'v_mov_b32 v{WDA+4*b+i}, 0')
def selconst(a):
    a('v_and_b32 v13, 31, v1')
    a('v_lshrrev_b32 v14, 5, v1')
    a('v_lshlrev_b32 v16, 3, v14')
    a('v_sub_u32 v16, v13, v16')
    for sidx in range(2):
        for p in range(4):
            lo, hi = 16*sidx + 2*p, 16*sidx + 2*p + 1
            a(f'v_cmp_eq_u32 vcc, {lo}, v16')
            a(f'v_mov_b32 v17, 0x3f80')
            a(f'v_cndmask_b32 v21, 0, v17, vcc')
            a(f'v_cmp_eq_u32 vcc, {hi}, v16')
            a(f'v_mov_b32 v17, 0x3f800000')
            a(f'v_cndmask_b32 v{SEL+4*sidx+p}, v21, v17, vcc')
    for i in range(4): a(f'v_mov_b32 v{OH+i}, 0')

WH = 112
WM = 16
def tail_loads_m(a):
    a('v_lshlrev_b32 v12, 4, v1')
    a('s_lshl_b32 s88, s3, 15')
    a(f's_add_u32 s88, s88, {WHP + 16384}')
    for j in range(16):
        a(f's_add_u32 s89, s88, {j*1024}')
        a(f'buffer_load_dwordx4 {vr(WM+4*j,4)}, v12, s[40:43], s89 offen')
def tail_loads_ht(a):
    a('v_lshrrev_b32 v13, 5, v1')
    a('s_mul_i32 s89, s3, 6')
    a('v_add_u32 v13, s89, v13')
    a('v_and_b32 v10, 31, v1')
    a('s_mul_i32 s90, s2, 40')
    for j in range(3):
        a('v_and_b32 v11, 15, v13')
        a('v_xor_b32 v11, v11, v10')
        a('v_lshlrev_b32 v11, 4, v11')
        a('v_add_u32 v12, s90, v13')
        a('v_lshl_add_u32 v11, v12, 9, v11')
        a('s_and_b32 s91, s3, 1')
        a('s_lshl_b32 s91, s91, 7')
        a('s_add_u32 s91, s91, s87')
        a(f's_add_u32 m0, s91, {j*1024}')
        a('buffer_load_dwordx4 v11, s[56:59], 0 offen lds')
        if j < 2: a('v_add_u32 v13, 2, v13')
def tail_loads_wh(a):
    a('v_lshlrev_b32 v12, 4, v1')
    a('s_lshl_b32 s88, s3, 15')
    a(f's_add_u32 s88, s88, {WHP}')
    for j in range(16):
        a(f's_add_u32 s89, s88, {j*1024}')
        a(f'buffer_load_dwordx4 {vr(WH+4*j,4)}, v12, s[40:43], s89 offen')

def gen_k2(a, dbg=False):
    a.label('k2_main_kernel')
    a(f's_cmp_ge_u32 s2, {T_}')
    a('s_cbranch_scc1 k2_done')
    load_kernargs(a)
    a('v_and_b32 v1, 63, v0')
    a('v_lshrrev_b32 v2, 6, v0')
    a('v_readfirstlane_b32 s3, v2')
    a('s_lshr_b32 s4, s3, 1')
    a('s_sub_u32 s88, 5, s4')
    a('s_cmp_ge_u32 s3, 4')
    a('s_cselect_b32 s4, s88, s4')
    a('s_and_b32 s5, s3, 1')
    a('s_waitcnt lgkmcnt(0)')
    srd(a, 40, 36, 37, 0, 0x2000000)
    a('s_mov_b32 s66, 0')
    a('s_mov_b32 s67, 0')
    a('s_mov_b32 s27, 0')
    a('s_mov_b32 s15, 0')
    a('s_mov_b32 s64, 0')
    a('s_mov_b32 s65, -1')
    a.label('k2_batch')
    a('s_cmp_eq_u32 s66, 2')
    a('s_cbranch_scc1 k2_ld_ovf')
    a('v_lshlrev_b32 v15, 4, v0')
    a('s_mul_i32 s88, s2, 16000')
    a(f's_add_u32 s88, s88, {CELL}')
    a('buffer_load_dwordx4 v[24:27], v15, s[40:43], s88 offen')
    a('v_cmp_gt_u32 vcc, 488, v0')
    a('v_mov_b32 v28, 0')
    a('s_and_saveexec_b64 s[90:91], vcc')
    a('v_add_u32 v16, 8192, v15')
    a('buffer_load_dwordx4 v[28:31], v16, s[40:43], s88 offen')
    a('s_mov_b64 exec, s[90:91]')
    a('s_branch k2_ld_done')
    a.label('k2_ld_ovf')
    a('v_add_u32 v16, s21, v0')
    a('v_lshlrev_b32 v15, 3, v16')
    a('s_mul_i32 s88, s67, 5120')
    a(f's_add_u32 s88, s88, {OVF}')
    a('v_mov_b32 v25, -1')
    a('v_cmp_gt_u32 vcc, s97, v16')
    a('s_mov_b32 s89, 160')
    a('v_cmp_gt_u32 s[90:91], s89, v0')
    a('s_and_b64 vcc, vcc, s[90:91]')
    a('s_and_saveexec_b64 s[90:91], vcc')
    a('buffer_load_dwordx2 v[24:25], v15, s[40:43], s88 offen')
    a('s_mov_b64 exec, s[90:91]')
    a.label('k2_ld_done')
    a('v_mov_b32 v7, 0')
    for rep in range(2):
        a(f'v_add_u32 v16, {rep*512}, v0')
        a(f'v_cmp_gt_u32 vcc, {SC}, v16')
        a('s_and_saveexec_b64 s[90:91], vcc')
        a('v_lshlrev_b32 v15, 2, v16')
        a(f'v_add_u32 v15, {SRC}, v15')
        a('v_mov_b32 v17, 0x80000000')
        a(f'ds_write_b32 v15, v{V_Z}')
        a(f'ds_write_b32 v15, v{V_Z} offset:{W1-SRC}')
        a(f'ds_write_b32 v15, v17 offset:{XA-SRC}')
        a('s_mov_b64 exec, s[90:91]')
    a('v_cmp_gt_u32 vcc, 12, v0')
    a('s_and_saveexec_b64 s[90:91], vcc')
    a('v_lshlrev_b32 v15, 2, v0')
    a(f'v_add_u32 v15, {CNT}, v15')
    a(f'ds_write_b32 v15, v{V_Z}')
    a('s_mov_b64 exec, s[90:91]')
    a('s_cmp_eq_u32 s66, 0')
    a('s_cbranch_scc0 k2_re')
    srd(a, 44, 36, 37, BT, N * 512)
    srd(a, 48, 20, 21, 0, E * 32)
    srd(a, 52, 18, 19, 0, N * 6)
    srd(a, 56, 16, 17, 0, N * 512)
    srd(a, 60, 32, 33, 0, 2590000 * 2)
    srd(a, 68, 28, 29, 0, 512)
    stamp(a, 0, dbg)
    stamp(a, 8, dbg, 252, 's_memtime')
    a('v_lshlrev_b32 v15, 2, v0')
    a(f'v_add_u32 v15, {OVFC}, v15')
    a('v_cmp_gt_u32 vcc, 250, v0')
    a('v_mov_b32 v20, 0')
    a('s_and_saveexec_b64 s[90:91], vcc')
    a('buffer_load_dword v20, v15, s[40:43], 0 offen')
    a('s_mov_b64 exec, s[90:91]')
    a('s_mul_i32 s88, s2, 40')
    a('v_add_u32 v16, s88, v0')
    a('v_mul_u32_u24 v17, 6, v16')
    a('v_and_b32 v17, -4, v17')
    a('v_cmp_gt_u32 vcc, 40, v0')
    a('s_and_saveexec_b64 s[90:91], vcc')
    a('buffer_load_dwordx2 v[18:19], v17, s[52:55], 0 offen')
    a('s_mov_b64 exec, s[90:91]')
    if 'nopp' not in FL:
        a('s_cmp_ge_u32 s3, 2')
        a('s_cbranch_scc1 k2_nopp')
        a('s_lshr_b32 s88, s2, 3')
        a('s_and_b32 s88, s88, 31')
        a('s_lshl_b32 s88, s88, 11')
        a('s_lshl_b32 s89, s3, 10')
        a('s_add_u32 s88, s88, s89')
        a('v_lshlrev_b32 v16, 4, v1')
        a('buffer_load_dwordx4 v[240:243], v16, s[52:55], s88 offen') if False else None
        a('buffer_load_dwordx4 v[80:83], v16, s[52:55], s88 offen')
        a.label('k2_nopp')
    if 'tlb2' in FL:
        a('v_mov_b32 v16, 0')
        a('s_mul_i32 s88, s2, 20480')
        a('buffer_load_dword v84, v16, s[60:63], s88 offen')
        a('s_mul_i32 s88, s2, 240')
        a('s_add_u32 s88, s88, 5120000')
        a('buffer_load_dword v85, v16, s[60:63], s88 offen')
        a(f's_mov_b32 s88, {WHP}')
        a('buffer_load_dword v86, v16, s[40:43], s88 offen')
    a('s_lshl_b32 s88, s3, 11')
    a(f's_add_u32 s88, s88, {JIT}')
    a(f'v_lshlrev_b32 v{V_LRD}, 4, v1')
    a(f'v_add_u32 v{V_LRD}, s88, v{V_LRD}')
    z = T
    for i in range(4): a(f'v_mov_b32 v{z+i}, 0')
    a(f'ds_write_b128 v{V_LRD}, v[{z}:{z+3}]')
    a(f'ds_write_b128 v{V_LRD}, v[{z}:{z+3}] offset:1024')
    a('v_cmp_gt_u32 vcc, 120, v0')
    a('s_and_saveexec_b64 s[90:91], vcc')
    a('v_lshlrev_b32 v16, 2, v0')
    a(f'v_add_u32 v16, {PACC}, v16')
    a(f'ds_write_b32 v16, v{V_Z}')
    a('s_mov_b64 exec, s[90:91]')
    a('v_cmp_gt_u32 vcc, 72, v0')
    a('s_and_saveexec_b64 s[90:91], vcc')
    a('v_lshrrev_b32 v16, 3, v0')
    a('v_and_b32 v17, 7, v0')
    a('v_cmp_eq_u32 vcc, v16, v17')
    a('v_mov_b32 v17, 0x3f80')
    a('v_cndmask_b32 v17, 0, v17, vcc')
    a('v_lshlrev_b32 v16, 1, v0')
    a(f'v_add_u32 v16, {LUT}, v16')
    a('ds_write_b16 v16, v17')
    a('s_mov_b64 exec, s[90:91]')
    a('s_waitcnt lgkmcnt(0)')
    a('s_barrier')
    a('v_lshlrev_b32 v12, 4, v1')
    a('s_mul_i32 s88, s2, 20480')
    a(f's_add_u32 s88, s88, {AT}')
    for j in range(3):
        a(f's_lshl_b32 s89, s3, 10')
        a(f's_add_u32 s89, s89, {j*8192}')
        if j == 2:
            a('s_cmp_ge_u32 s3, 4')
            a('s_cbranch_scc1 k2_noat')
        a(f's_add_u32 m0, s89, {ATL}')
        a('s_add_u32 s89, s89, s88')
        a('buffer_load_dwordx4 v12, s[40:43], s89 offen lds')
    a.label('k2_noat')
    consts(a, True)
    a(f's_mov_b32 s92, {NL2E:#x}')
    a('s_lshl_b32 s86, s5, 8')
    a(f's_mul_i32 s87, s3, {STGW}')
    a('s_lshl_b32 s39, s3, 10')
    a(f's_add_u32 s39, s39, {EAP}')
    a(f'v_lshlrev_b32 v{V_E4}, 2, v13')
    a(f'v_add_u32 v{V_E4}, {XA}, v{V_E4}')
    a(f'v_add_u32 v{V_E1}, {SV}, v13')
    a(f'v_lshrrev_b32 v{V_EI}, 1, v1')
    a(f'v_lshlrev_b32 v{V_EI}, 2, v{V_EI}')
    a(f'v_add_u32 v{V_EI}, {W1}, v{V_EI}')
    a(f'v_and_b32 v{V_HM}, 1, v1')
    a(f'v_lshlrev_b32 v{V_HM}, 4, v{V_HM}')
    a(f'v_lshlrev_b32 v{V_LCE}, 5, v13')
    a(f'v_lshl_add_u32 v{V_LCE}, v14, 4, v{V_LCE}')
    a(f'v_add_u32 v{V_LCE}, s39, v{V_LCE}')
    a(f'v_lshrrev_b32 v{V_LCS}, 4, v1')
    a(f'v_lshlrev_b32 v{V_LCS}, 5, v{V_LCS}')
    a(f'v_add_u32 v{V_LCS}, {SRC}, v{V_LCS}')
    a('v_bfe_u32 v16, v13, 4, 1')
    a(f'v_lshlrev_b32 v{V_LCL}, 10, v16')
    a('v_bfe_u32 v16, v13, 2, 1')
    a(f'v_lshl_add_u32 v{V_LCL}, v16, 9, v{V_LCL}')
    a('v_bfe_u32 v16, v13, 3, 1')
    a(f'v_lshl_add_u32 v{V_LCL}, v16, 3, v{V_LCL}')
    a('v_and_b32 v16, 3, v13')
    a(f'v_lshl_add_u32 v{V_LCL}, v16, 1, v{V_LCL}')
    a(f'v_lshl_add_u32 v{V_LCL}, v14, 5, v{V_LCL}')
    a('s_lshl_b32 s88, s3, 11')
    a(f's_add_u32 s88, s88, {JIT}')
    a(f'v_add_u32 v{V_LCL}, s88, v{V_LCL}')
    a('v_and_b32 v16, 7, v13')
    a(f'v_mul_u32_u24 v{V_RB}, 1040, v16')
    a('v_lshrrev_b32 v16, 3, v13')
    a(f'v_lshl_add_u32 v{V_RB}, v16, 8, v{V_RB}')
    a(f'v_lshl_add_u32 v{V_RB}, v14, 4, v{V_RB}')
    a(f'v_add_u32 v{V_RB}, s87, v{V_RB}')
    a('v_and_b32 v16, 15, v1')
    a(f'v_lshlrev_b32 v{V_LCD}, 4, v16')
    a('s_lshl_b32 s88, s5, 7')
    a('v_add_u32 v16, s88, v13')
    a('v_lshlrev_b32 v16, 4, v16')
    a(f'v_add_u32 v{V_LCA}, {ATL}, v16')
    a(f'v_mov_b32 v{V_LUT0}, {LUT}')
    a(f'v_mov_b32 v{V_LUT8}, {LUT+128}')
    a('v_lshrrev_b32 v16, 4, v1')
    a('v_bfe_u32 v17, v1, 2, 2')
    a('v_and_b32 v21, 1, v17')
    a('v_lshrrev_b32 v22, 1, v17')
    a('v_lshl_add_u32 v21, v21, 1, v22')
    a('v_and_b32 v23, 1, v16')
    a('v_lshl_add_u32 v21, v21, 1, v23')
    a('v_lshl_add_u32 v22, v22, 1, v23')
    a('v_add_u32 v22, 8, v22')
    a('v_lshrrev_b32 v16, 1, v16')
    a('v_mul_u32_u24 v16, 12, v16')
    a('v_add_u32 v21, v21, v16'); a('v_add_u32 v22, v22, v16')
    a(f'v_lshlrev_b32 v{V_PO0}, 2, v21'); a(f'v_lshlrev_b32 v{V_PO1}, 2, v22')
    selconst(a)
    a('s_waitcnt vmcnt(14)')
    stamp(a, 1, dbg)
    a('s_mul_i32 s88, s2, 40')
    a('v_add_u32 v16, s88, v0')
    a('v_and_b32 v16, 1, v16')
    a('v_lshlrev_b32 v16, 4, v16')
    a('v_alignbit_b32 v22, v19, v18, v16')
    a('v_lshrrev_b32 v23, v16, v19')
    a('v_lshlrev_b32 v15, 3, v0')
    a(f'v_add_u32 v15, {POST}, v15')
    a('v_cmp_gt_u32 vcc, 40, v0')
    a('s_and_saveexec_b64 s[90:91], vcc')
    a('ds_write_b64 v15, v[22:23]')
    a('s_mov_b64 exec, s[90:91]')
    a('v_cmp_ne_u32 vcc, 0, v20')
    a('s_cbranch_vccz k2_later')
    a(f'v_mov_b32 v15, {CNT+32}')
    a('v_mov_b32 v16, 1')
    a('ds_write_b32 v15, v16')
    a('s_branch k2_later')
    a.label('k2_re')
    consts(a, False)
    selconst(a)
    a('s_waitcnt vmcnt(0) lgkmcnt(0)')
    a('s_barrier')
    a.label('k2_later')
    CI0, CI1, VC0, VC1 = 21, 22, 18, 19
    a('s_cmp_eq_u32 s66, 2')
    a('s_cbranch_scc1 k2_v_ovf')
    a(f'v_lshrrev_b32 v{CI0}, 2, v0')
    a(f'v_add_u32 v{CI1}, 128, v{CI0}')
    a(f'v_mov_b32_dpp v{VC0}, v24 quad_perm:[0,0,0,0] row_mask:0xf bank_mask:0xf')
    a(f'v_mov_b32_dpp v{VC1}, v28 quad_perm:[0,0,0,0] row_mask:0xf bank_mask:0xf')
    a('v_and_b32 v15, 3, v0')
    a('v_lshlrev_b32 v15, 2, v15')
    a('v_subrev_u32 v15, 1, v15')
    for r in (VC0, VC1):
        a(f'v_min_u32 v{r}, {CAP}, v{r}')
        a(f'v_sub_i32 v{r}, v{r}, v15')
    a('s_cmp_eq_u32 s66, 1')
    a('s_cbranch_scc0 k2_v_done')
    for r, c in ((VC0, CI0), (VC1, CI1)):
        a(f'v_subrev_u32 v15, s67, v{c}')
        a('v_cmp_gt_u32 vcc, 12, v15')
        a(f'v_cndmask_b32 v{r}, 0, v{r}, vcc')
    a('s_branch k2_v_done')
    a.label('k2_v_ovf')
    a(f'v_mov_b32 v{CI0}, s67'); a(f'v_mov_b32 v{CI1}, s67')
    a(f'v_cmp_eq_u32 vcc, s2, v25')
    a(f'v_cndmask_b32 v{VC0}, 0, 1, vcc')
    a(f'v_mov_b32 v{VC1}, 0')
    a.label('k2_v_done')
    a(f'v_mul_u32_u24 v{CI0}, 640, v{CI0}')
    a(f'v_mul_u32_u24 v{CI1}, 640, v{CI1}')
    MS = [72, 74, 76, 80, 82, 88, 90, 94]
    for i in range(8):
        vc = VC0 if i < 4 else VC1
        a(f'v_cmp_lt_i32 s[{MS[i]}:{MS[i]+1}], {i%4}, v{vc}')
    a('s_mov_b32 s10, 0xeeeeeeee'); a('s_mov_b32 s11, 0xeeeeeeee')
    a('s_cmp_eq_u32 s66, 2')
    a('s_cselect_b32 s10, -1, s10'); a('s_cselect_b32 s11, -1, s11')
    a(f's_and_b64 s[{MS[0]}:{MS[0]+1}], s[{MS[0]}:{MS[0]+1}], s[10:11]')
    a(f's_and_b64 s[{MS[4]}:{MS[4]+1}], s[{MS[4]}:{MS[4]+1}], s[10:11]')
    SB = 32
    for i in range(8):
        a(f'v_bfe_u32 v{SB+i}, v{24+i}, 17, 3')
        a(f'v_lshlrev_b32 v{SB+8+i}, 2, v{SB+i}')
        a(f'v_add_u32 v{SB+8+i}, {CNT}, v{SB+8+i}')
    a('v_mov_b32 v16, 1')
    for i in range(8):
        a(f's_mov_b64 exec, s[{MS[i]}:{MS[i]+1}]')
        a(f'ds_add_rtn_u32 v{T+i}, v{SB+8+i}, v16')
    a('s_mov_b64 exec, -1')
    for i in range(8):
        ci = CI0 if i < 4 else CI1
        a(f'v_and_b32 v{48+i}, 0x3fff, v{24+i}')
        a(f'v_lshlrev_b32 v{48+i}, 9, v{48+i}')
        a(f'v_lshrrev_b32 v{56+i}, 20, v{24+i}')
        a(f'v_add_u32 v{56+i}, v{56+i}, v{ci}')
        a(f'v_mul_u32_u24 v{SB+i}, {CAPS*4}, v{SB+i}')
        a(f'v_add_u32 v{SB+i}, {SRC}, v{SB+i}')
    a('s_waitcnt lgkmcnt(0)')
    for i in range(8):
        a(f'v_min_u32 v{T+i}, {CAPS-1}, v{T+i}')
        a(f'v_lshl_add_u32 v{SB+i}, v{T+i}, 2, v{SB+i}')
    for i in range(8):
        a(f's_mov_b64 exec, s[{MS[i]}:{MS[i]+1}]')
        a(f'ds_write_b32 v{SB+i}, v{48+i}')
        a(f'ds_write_b32 v{SB+i}, v{56+i} offset:{W1-SRC}')
        a(f'ds_write_b32 v{SB+i}, v{24+i} offset:{XA-SRC}')
    a('s_mov_b64 exec, -1')
    a('s_waitcnt lgkmcnt(0)')
    a('s_barrier')
    stamp(a, 2, dbg)
    PB_ = [112, 120]
    for rnd in range(2):
        b0 = PB_[rnd]
        a(f's_lshl_b32 s89, s3, 6')
        if rnd: a('s_add_u32 s89, s89, 512')
        a('v_add_u32 v16, s89, v1')
        a(f'v_min_u32 v16, {SC-1}, v16')
        a('v_lshlrev_b32 v15, 2, v16')
        a(f'v_add_u32 v{b0}, {XA}, v15')
        a(f'ds_read_b32 v{b0+1}, v{b0}')
    a(f'v_mov_b32 v15, {CNT}')
    a('ds_read_b128 v[24:27], v15')
    a('ds_read_b32 v28, v15 offset:16')
    a('ds_read_b32 v29, v15 offset:32')
    a('s_waitcnt lgkmcnt(0)')
    for rnd in range(2):
        b0 = PB_[rnd]
        a(f'v_and_b32 v16, 0x3fff, v{b0+1}')
        a('v_mul_u32_u24 v16, 6, v16')
        a('v_and_b32 v16, -4, v16')
        a(f'v_cmp_le_i32 vcc, 0, v{b0+1}')
        a(f'v_mov_b32 v{b0+2}, 0'); a(f'v_mov_b32 v{b0+3}, 0')
        a('s_and_saveexec_b64 s[90:91], vcc')
        a(f'buffer_load_dwordx2 v[{b0+2}:{b0+3}], v16, s[52:55], 0 offen')
        a('s_mov_b64 exec, s[90:91]')
        a(f'v_bfe_u32 v16, v{b0+1}, 14, 6')
        a('v_lshlrev_b32 v16, 3, v16')
        a(f'v_add_u32 v16, {POST}, v16')
        a(f'ds_read_b64 v[{b0+4}:{b0+5}], v16')
    a('s_mov_b32 s72, 0')
    for k in range(5):
        a(f'v_readfirstlane_b32 s88, v{24+k}')
        a('s_max_u32 s91, s91, s88') if k else a('s_mov_b32 s91, s88')
        a('s_add_u32 s89, s88, 7')
        a(f's_and_b32 s{CP+k}, s89, -8')
        a('s_add_u32 s89, s88, 31')
        a('s_lshr_b32 s89, s89, 5')
        a(f's_add_u32 s{73+k}, s{72+k}, s89')
    a('s_cmp_eq_u32 s66, 0')
    a('s_cbranch_scc0 k2_noflag2')
    a('v_readfirstlane_b32 s85, v29')
    a.label('k2_noflag2')
    a(f's_cmp_gt_u32 s91, {CAPS}')
    a('s_cselect_b32 s93, 1, 0')
    a('s_cbranch_scc1 k2_nofit1')
    a(f's_mov_b32 s88, {CW[0]}'); a(f's_mov_b32 s89, {CW[1]}')
    for k in range(1, 4):
        a(f's_cmp_eq_u32 s4, {k}')
        a(f's_cselect_b32 s88, {CW[k]}, s88')
        a(f's_cselect_b32 s89, {CW[k+1]}, s89')
    a('s_mul_i32 s88, s77, s88')
    a('s_lshr_b32 s28, s88, 6')
    a('s_mul_i32 s89, s77, s89')
    a('s_lshr_b32 s79, s89, 6')
    if 'solo' in FL:
        a('s_cmp_ge_u32 s3, 4')
        a('s_cselect_b32 s79, s28, s79')
    build_desc(a)
    a(f'v_readlane_b32 s78, v{V_DESC}, 0')
    a(f'v_readlane_b32 s94, v{V_DESC}, 1')
    a(f'v_readlane_b32 s6, v{V_DESC}, 2')
    a('s_mov_b32 s30, 2')
    read_lists(a, 78)
    a('s_waitcnt lgkmcnt(0)')
    issue_loads(a)
    a('s_bfe_u32 s80, s78, 0x30010')
    a('s_mov_b32 s38, s72')
    for k in range(1, 5):
        a(f's_cmp_eq_u32 s80, {k}')
        a(f's_cselect_b32 s38, s{72+k}, s38')
    a('s_cmp_gt_u32 s28, s38')
    a('s_cselect_b32 s38, 1, 0')
    a.label('k2_nofit1')
    stamp(a, 12, dbg)
    a('s_cmp_eq_u32 s93, 0')
    a('s_cbranch_scc1 k2_fits')
    a('s_mov_b32 s66, 1')
    a('s_mov_b32 s67, 0')
    a('s_waitcnt vmcnt(0) lgkmcnt(0)')
    a('s_barrier')
    a('s_branch k2_batch')
    a.label('k2_fits')
    stamp(a, 10, dbg)
    for i in range(32): a(f'v_pk_mov_b32 {vr(ACC+2*i,2)}, 0, 0')
    for i in range(8): a(f'v_mov_b32 v{L+i}, 0'); a(f'v_mov_b32 v{PRE+16+i}, 0')
    for k in range(1, 4):
        a(f's_mul_i32 s10, s77, {CW[k]}')
        a('s_lshr_b32 s10, s10, 6')
        a(f's_mul_i32 s11, s77, {CW[k+1]}')
        a('s_lshr_b32 s11, s11, 6')
        a('s_mov_b32 s12, 0'); a('s_mov_b32 s13, s72')
        for j in range(1, 5):
            a(f's_cmp_ge_u32 s10, s{72+j}')
            a(f's_cselect_b32 s12, {j}, s12')
            a(f's_cselect_b32 s13, s{72+j}, s13')
        a('s_cmp_lt_u32 s10, s11')
        a('s_cselect_b32 s12, s12, 15')
        a('s_cmp_gt_u32 s10, s13')
        a(f's_cselect_b32 s{31+k}, s12, 15')
    a('s_waitcnt vmcnt(9) lgkmcnt(0)')
    a('s_cmp_eq_u32 s15, 0')
    a('s_cbranch_scc0 k2_wxdone')
    a('s_mov_b32 s15, 1')
    a(f's_mov_b32 s89, {NLN2:#x}')
    for b in range(4):
        a(f'v_lshlrev_b32 v{V_WX+b}, 16, v{V_WX+b}')
        a(f'v_mul_f32 v{V_WX+b}, s89, v{V_WX+b}')
    a.label('k2_wxdone')
    for rnd in range(2):
        b0 = PB_[rnd]
        if rnd == 1:
            a('s_cmp_eq_u32 s3, 7')
            a('s_cbranch_scc1 k2_nogeo')
        e_, p0, p1, d0, d1 = b0+1, b0+2, b0+3, b0+4, b0+5
        t = 80
        a(f'v_and_b32 v15, 1, v{e_}')
        a('v_lshlrev_b32 v15, 4, v15')
        a(f'v_alignbit_b32 v{t}, v{p1}, v{p0}, v15')
        a(f'v_lshrrev_b32 v{t+1}, v15, v{p1}')
        a(f'v_lshlrev_b32 v{t+2}, 16, v{t}'); a(f'v_and_b32 v{t+3}, 0xffff0000, v{t}'); a(f'v_lshlrev_b32 v{t+4}, 16, v{t+1}')
        a(f'v_lshlrev_b32 v{t+5}, 16, v{d0}'); a(f'v_and_b32 v{t+6}, 0xffff0000, v{d0}'); a(f'v_lshlrev_b32 v{t+7}, 16, v{d1}')
        a(f'v_sub_f32 v{t+2}, v{t+5}, v{t+2}'); a(f'v_sub_f32 v{t+3}, v{t+6}, v{t+3}'); a(f'v_sub_f32 v{t+4}, v{t+7}, v{t+4}')
        a(f'v_cvt_pk_bf16_f32 v{t}, v{t+2}, v{t+3}')
        a(f'v_cvt_pk_bf16_f32 v{t+1}, v{t+4}, v{V_Z}')
        a(f'v_lshlrev_b32 v{t+2}, 16, v{t}'); a(f'v_and_b32 v{t+3}, 0xffff0000, v{t}'); a(f'v_lshlrev_b32 v{t+4}, 16, v{t+1}')
        a(f'v_mul_f32 v{t+2}, v{t+2}, v{t+2}'); a(f'v_mul_f32 v{t+3}, v{t+3}, v{t+3}'); a(f'v_mul_f32 v{t+4}, v{t+4}, v{t+4}')
        a(f'v_cvt_pk_bf16_f32 v{t+5}, v{t+2}, v{t+3}')
        a(f'v_cvt_pk_bf16_f32 v{t+6}, v{t+4}, v{V_Z}')
        a(f'v_lshlrev_b32 v{t+2}, 16, v{t+5}'); a(f'v_and_b32 v{t+3}, 0xffff0000, v{t+5}'); a(f'v_lshlrev_b32 v{t+4}, 16, v{t+6}')
        a(f'v_add_f32 v{t+2}, v{t+2}, v{t+3}'); a(f'v_add_f32 v{t+2}, v{t+2}, v{t+4}')
        a(f'v_cvt_pk_bf16_f32 v{t+2}, v{t+2}, v{V_Z}')
        a(f'v_and_b32 v{t+3}, 0xffff, v{t}')
        a(f'v_lshl_or_b32 v{t+3}, v{t+2}, 16, v{t+3}')
        a(f'v_alignbit_b32 v{t+4}, v{t+1}, v{t}, 16')
        a(f'v_bfe_u32 v{t+5}, v{e_}, 14, 3')
        a(f'v_or_b32 v{t+5}, 0x80, v{t+5}')
        a(f'v_cmp_le_i32 vcc, 0, v{e_}')
        for r in (t+3, t+4, t+5):
            a(f'v_cndmask_b32 v{r}, 0, v{r}, vcc')
        a(f'ds_write_b32 v{b0}, v{t+3}')
        a(f'ds_write_b32 v{b0}, v{t+4} offset:{XB-XA}')
        a(f'v_subrev_u32 v15, {XA}, v{b0}')
        a('v_lshrrev_b32 v15, 2, v15')
        a(f'v_add_u32 v15, {SV}, v15')
        a(f'ds_write_b8 v15, v{t+5}')
    a.label('k2_nogeo')
    a('s_cmp_eq_u32 s3, 7')
    a('s_cbranch_scc0 k2_nopad')
    a('v_lshlrev_b32 v15, 2, v1')
    a(f'v_add_u32 v15, {XA + 960*4}, v15')
    a('s_mov_b32 exec_hi, 0')
    a(f'ds_write_b32 v15, v{V_Z}')
    a(f'ds_write_b32 v15, v{V_Z} offset:{XB-XA}')
    a(f'v_add_u32 v15, {SV + 960}, v1')
    a(f'ds_write_b8 v15, v{V_Z}')
    a('s_mov_b32 exec_hi, -1')
    a.label('k2_nopad')
    a('s_waitcnt lgkmcnt(0)')
    a('s_barrier')
    stamp(a, 3, dbg)
    wstamp(a, 0, dbg)
    a('s_bitcmp1_b32 s78, 20')
    a('s_cbranch_scc0 k2_edge_done')
    a('s_waitcnt vmcnt(0)')
    read_geo(a, 78)
    read_rows(a)
    read_wda(a, 78)
    a('s_waitcnt lgkmcnt(12)')
    build_xy(a)
    read_ea_oh(a)
    a('s_waitcnt lgkmcnt(0)')
    read_lists(a, 94)
    a(f'v_or_b32 v{OH}, v{OH}, v{V_D2}')
    A00 = A_ops(0, 0)
    for x in A00[0]: a(x)
    a('s_waitcnt lgkmcnt(0)')
    a('s_bitcmp1_b32 s94, 20')
    a('s_cbranch_scc0 k2_p_nodma')
    issue_loads(a)
    a.label('k2_p_nodma')
    for m in A00[1:]:
        for x in m: a(x)
    a('s_mov_b32 s13, 0')
    a('s_mov_b32 s14, 0')
    a('s_mov_b32 s12, 0')
    wstamp(a, 1, dbg)
    def body(a, full):
        tg = 'f' if full else 'g'
        quarter(a, 0, 0, C_ops(3, 1), full)
        jit_l(a, full)
        A = A_ops(1, 1)
        quarter(a, 0, 1, A[0:2], full); quarter(a, 0, 2, A[2:3], full); quarter(a, 0, 3, A[3:4], full)
        a('s_bitcmp1_b32 s13, 19')
        a('s_cbranch_scc1 k2_flush')
        a.label(f'k2_nofl{tg}')
        a('s_waitcnt lgkmcnt(0)')
        quarter(a, 1, 0, C_ops(0, 0), full)
        read_geo(a, 94)
        A = A_ops(2, 0)
        quarter(a, 1, 1, A[0:2], full); quarter(a, 1, 2, A[2:3], full); quarter(a, 1, 3, A[3:4], full)
        A = A_ops(3, 1)
        quarter(a, 0, 0, C_ops(1, 1), full)
        quarter(a, 0, 1, A[0:2], full)
        a('s_waitcnt vmcnt(0) lgkmcnt(0)')
        read_rows(a)
        build_xy(a)
        quarter(a, 0, 2, A[2:3], full); quarter(a, 0, 3, A[3:4], full)
        read_ea_oh(a)
        read_lists(a, 6)
        a('s_xor_b32 s88, s94, s78')
        a('s_and_b32 s88, s88, 0x70000')
        a(f's_cbranch_scc1 k2_wda{tg}')
        a.label(f'k2_wdar{tg}')
        D = Asm()
        D.label(f'k2_wda{tg}')
        read_wda(D, 94)
        D(f's_branch k2_wdar{tg}')
        DEFER.extend(D.lines)
        quarter(a, 1, 0, C_ops(2, 0), full)
        a('s_waitcnt lgkmcnt(0)')
        a(f'v_or_b32 v{OH}, v{OH}, v{V_D2}')
        a('s_bitcmp1_b32 s6, 20')
        a(f's_cbranch_scc0 k2_late{tg}')
        issue_loads(a)
        a.label(f'k2_nx3{tg}')
        D = Asm()
        D.label(f'k2_late{tg}')
        D('s_cmp_eq_u32 s12, 0')
        D(f's_cbranch_scc0 k2_late2{tg}')
        D('s_mov_b32 s12, 1')
        tail_loads_ht(D)
        D.label(f'k2_late2{tg}')
        D('s_bitcmp1_b32 s94, 20')
        D(f's_cbranch_scc1 k2_nx3{tg}')
        tail_loads_wh(D)
        D(f's_branch k2_nx3{tg}')
        DEFER.extend(D.lines)
        A = A_ops(0, 0)
        quarter(a, 1, 1, A[0:2], full); quarter(a, 1, 2, A[2:3], full); quarter(a, 1, 3, A[3:4], full)
    if 'priobig' in FL:
        a('s_cmp_lt_u32 s3, 4')
        a('s_cbranch_scc0 k2_np0')
        a('s_setprio 1')
        a.label('k2_np0')
    if 'prio1' in FL:
        a('s_cmp_ge_u32 s3, 4')
        a('s_cbranch_scc0 k2_np1')
        a('s_setprio 1')
        a.label('k2_np1')
    if 'prioalt' in FL:
        a('s_lshr_b32 s12, s3, 2')
    a.label('k2_grp')
    if 'prioalt' in FL:
        a('s_xor_b32 s12, s12, 1')
        a('s_cmp_eq_u32 s12, 1')
        a('s_cbranch_scc1 k2_pa1')
        a('s_setprio 0')
        a('s_branch k2_pa2')
        a.label('k2_pa1')
        a('s_setprio 1')
        a.label('k2_pa2')
    a('s_bitcmp1_b32 s78, 21')
    a('s_cbranch_scc0 k2_gen')
    body(a, True)
    a.label('k2_rot')
    a('s_mov_b32 s13, s78'); a('s_mov_b32 s14, s38')
    a('s_bitcmp1_b32 s78, 19')
    a('s_cselect_b32 s38, 0, s38')
    a('s_mov_b32 s78, s94'); a('s_mov_b32 s94, s6')
    a('s_add_u32 s30, s30, 1')
    a(f'v_readlane_b32 s6, v{V_DESC}, s30')
    a('s_bitcmp1_b32 s78, 20')
    a('s_cbranch_scc1 k2_grp')
    G = Asm()
    G.label('k2_gen')
    G('s_bfe_u32 s81, s78, 0x6000a')
    save = list(DEFER); DEFER.clear()
    body(G, False)
    G('s_branch k2_rot')
    G.label('k2_flush')
    flush(G, 13, 14, 'a')
    G('s_bitcmp1_b32 s78, 21')
    G('s_cbranch_scc1 k2_noflf')
    G('s_branch k2_noflg')
    inner = list(DEFER); DEFER.clear()
    DEFER.extend(save); DEFER.extend(G.lines); DEFER.extend(inner)
    wstamp(a, 2, dbg)
    wstamp(a, 3, dbg)
    for m in C_ops(3, 1):
        for x in m: a(x)
    flush(a, 13, 14, 'b')
    if False:
        a('s_lshl_b32 s88, s2, 3'); a('s_add_u32 s88, s88, s3'); a('s_lshl_b32 s88, s88, 5')
        a(f's_add_u32 s88, s88, {DBGW + 0x20000}')
        a(f'v_mov_b32 v{V_A}, 0')
        for i in range(6): a(f'v_mov_b32 v{T+i}, v{246+i}')
        a('s_mov_b64 exec, 1')
        a(f'buffer_store_dwordx4 {vr(T,4)}, v{V_A}, s[40:43], s88 offen')
        a(f'buffer_store_dwordx2 {vr(T+4,2)}, v{V_A}, s[40:43], s88 offen offset:16')
        a('s_mov_b64 exec, -1')
    a('s_branch k2_edge_done2')
    a.label('k2_edge_done')
    tail_loads_ht(a)
    tail_loads_wh(a)
    a.label('k2_edge_done2')
    wstamp(a, 4, dbg)
    tail_loads_m(a)
    wstamp(a, 5, dbg)
    a('s_waitcnt vmcnt(32) lgkmcnt(0)')
    wstamp(a, 6, dbg)
    a('s_barrier')
    wstamp(a, 7, dbg)
    stamp(a, 4, dbg)
    a('s_mov_b32 s7, s32'); a('s_mov_b32 s8, s33'); a('s_mov_b32 s9, s34')
    a('v_lshlrev_b32 v176, 3, v0')
    for k in range(1, 4):
        a(f's_cmp_eq_u32 s{6+k}, 15')
        a(f's_cbranch_scc1 k2_mg{k}')
        a(f's_lshl_b32 s11, s{6+k}, 12')
        a(f's_add_u32 s11, s11, {MACC}')
        a('v_add_u32 v177, s11, v176')
        a(f'v_add_u32 v178, {SIDE + (k-1)*4096}, v176')
        a('ds_read_b64 v[180:181], v177')
        a('ds_read_b64 v[182:183], v178')
        a('s_waitcnt lgkmcnt(0)')
        for j in range(2):
            a(f'v_lshlrev_b32 v184, 16, v{180+j}'); a(f'v_lshlrev_b32 v185, 16, v{182+j}'); a('v_add_f32 v184, v184, v185')
            a(f'v_and_b32 v186, 0xffff0000, v{180+j}'); a(f'v_and_b32 v187, 0xffff0000, v{182+j}'); a('v_add_f32 v186, v186, v187')
            a(f'v_cvt_pk_bf16_f32 v{180+j}, v184, v186')
        a('ds_write_b64 v177, v[180:181]')
        a.label(f'k2_mg{k}')
    for k in range(5):
        a(f's_cmp_eq_u32 s{CP+k}, 0')
        a(f's_cbranch_scc0 k2_nz{k}')
        a(f'v_add_u32 v177, {MACC + k*4096}, v176')
        a(f'v_mov_b32 v180, 0'); a('v_mov_b32 v181, 0')
        a('ds_write_b64 v177, v[180:181]')
        a.label(f'k2_nz{k}')
    a('s_cmp_ge_u32 s3, 2')
    a('s_cbranch_scc1 k2_mgdone')
    a('v_cmp_gt_u32 vcc, 120, v0')
    a('s_and_saveexec_b64 s[90:91], vcc')
    a('v_mul_u32_u24 v177, 2731, v0')
    a('v_lshrrev_b32 v177, 16, v177')
    a('v_mul_u32_u24 v178, 24, v177')
    a('v_sub_u32 v178, v0, v178')
    a('v_lshlrev_b32 v178, 2, v178')
    a('v_mul_u32_u24 v179, 192, v177')
    a('v_add_u32 v179, v179, v178')
    a(f'v_add_u32 v179, {PBO}, v179')
    a('ds_read_b32 v180, v179')
    a('ds_read_b32 v181, v179 offset:96')
    a('v_lshlrev_b32 v182, 2, v0')
    a(f'v_add_u32 v182, {PACC}, v182')
    a('ds_read_b32 v183, v182')
    a('v_lshlrev_b32 v184, 2, v177')
    a(f'v_add_u32 v184, {CNT}, v184')
    a('ds_read_b32 v184, v184')
    a(f'v_add_u32 v179, {PBS}, v178')
    for k in range(3):
        a(f'ds_read_b32 v{185+2*k}, v179 offset:{k*192}')
        a(f'ds_read_b32 v{186+2*k}, v179 offset:{k*192+96}')
    a('s_waitcnt lgkmcnt(0)')
    a('v_add_f32 v180, v180, v181')
    a('v_cmp_ne_u32 vcc, 0, v184')
    a('v_cndmask_b32 v180, 0, v180, vcc')
    a('v_add_f32 v183, v183, v180')
    for k in range(3):
        a(f'v_add_f32 v{185+2*k}, v{185+2*k}, v{186+2*k}')
        a(f'v_cmp_eq_u32 vcc, s{7+k}, v177')
        a(f'v_cndmask_b32 v{185+2*k}, 0, v{185+2*k}, vcc')
        a(f'v_add_f32 v183, v183, v{185+2*k}')
    a('ds_write_b32 v182, v183')
    a('s_mov_b64 exec, s[90:91]')
    a.label('k2_mgdone')
    a('s_or_b32 s10, s66, s85')
    a('s_cmp_eq_u32 s10, 0')
    a('s_cbranch_scc1 k2_tail')
    a('s_waitcnt lgkmcnt(0)')
    a('s_barrier')
    a('v_lshlrev_b32 v176, 2, v0')
    a(f'v_add_u32 v177, {MACC}, v176')
    a('v_lshlrev_b32 v178, 3, v0')
    a(f's_mul_i32 s10, s2, 40960')
    a(f's_add_u32 s10, s10, {G32}')
    a('s_mov_b32 s11, 0')
    a.label('k2_sp_loop')
    a('ds_read_b32 v180, v177')
    a('v_mov_b32 v182, 0'); a('v_mov_b32 v183, 0')
    a('s_cmp_eq_u32 s27, 0')
    a('s_cbranch_scc1 k2_sp_first')
    a('buffer_load_dwordx2 v[182:183], v178, s[40:43], s10 offen sc0 sc1')
    a.label('k2_sp_first')
    a('s_waitcnt vmcnt(0) lgkmcnt(0)')
    a('v_lshlrev_b32 v184, 16, v180')
    a('v_and_b32 v185, 0xffff0000, v180')
    a('v_add_f32 v182, v182, v184')
    a('v_add_f32 v183, v183, v185')
    a('buffer_store_dwordx2 v[182:183], v178, s[40:43], s10 offen sc0 sc1')
    a('v_add_u32 v177, 2048, v177')
    a('s_add_u32 s10, s10, 4096')
    a('s_add_u32 s11, s11, 1')
    a('s_cmp_lt_u32 s11, 10')
    a('s_cbranch_scc1 k2_sp_loop')
    a('s_mov_b32 s27, 1')
    a('s_cmp_eq_u32 s66, 1')
    a('s_cbranch_scc0 k2_nb1')
    a('s_add_u32 s67, s67, 12')
    a('s_cmp_lt_u32 s67, 250')
    a('s_cbranch_scc1 k2_batch_w')
    a('s_mov_b32 s66, 3')
    a.label('k2_nb1')
    a('s_cmp_eq_u32 s85, 0')
    a('s_cbranch_scc1 k2_tail_rare')
    a('s_cmp_eq_u32 s66, 2')
    a('s_cbranch_scc1 k2_ovf_more')
    a('s_mov_b32 s66, 2')
    a('s_mov_b32 s67, -1')
    a('s_branch k2_ovf_next')
    a.label('k2_ovf_more')
    a('s_add_u32 s21, s21o, 160'.replace('s21o', 's31'))
    a('s_mov_b32 s31, s21')
    a('s_cmp_lt_u32 s21, s97')
    a('s_cbranch_scc1 k2_batch_w')
    a.label('k2_ovf_next')
    a('s_add_u32 s67, s67, 1')
    a('s_cmp_ge_u32 s67, 250')
    a('s_cbranch_scc1 k2_tail_rare')
    a('s_lshl_b32 s88, s67, 2')
    a(f's_add_u32 s88, s88, {OVFC}')
    a('s_load_dword s97, s[36:37], s88')
    a('s_waitcnt lgkmcnt(0)')
    a('s_cmp_eq_u32 s97, 0')
    a('s_cbranch_scc1 k2_ovf_next')
    a('s_mov_b32 s21, 0'); a('s_mov_b32 s31, 0')
    a.label('k2_batch_w')
    a('s_waitcnt vmcnt(0) lgkmcnt(0)')
    a('s_barrier')
    a('s_branch k2_batch')
    a.label('k2_tail_rare')
    a('s_waitcnt vmcnt(0) lgkmcnt(0)')
    a('v_lshlrev_b32 v176, 2, v0')
    a(f'v_add_u32 v177, {MACC}, v176')
    a('v_lshlrev_b32 v178, 3, v0')
    a(f's_mul_i32 s10, s2, 40960')
    a(f's_add_u32 s10, s10, {G32}')
    a('s_mov_b32 s11, 0')
    a.label('k2_cv_loop')
    a('buffer_load_dwordx2 v[182:183], v178, s[40:43], s10 offen sc0 sc1')
    a('s_waitcnt vmcnt(0)')
    a('v_cvt_pk_bf16_f32 v180, v182, v183')
    a('ds_write_b32 v177, v180')
    a('v_add_u32 v177, 2048, v177')
    a('s_add_u32 s10, s10, 4096')
    a('s_add_u32 s11, s11, 1')
    a('s_cmp_lt_u32 s11, 10')
    a('s_cbranch_scc1 k2_cv_loop')
    a.label('k2_tail')
    a('v_and_b32 v13, 15, v1')
    a('v_lshrrev_b32 v14, 4, v1')
    a('s_mul_i32 s88, s2, 40')
    a('v_lshlrev_b32 v15, 2, v14')
    a('v_add_u32 v15, s88, v15')
    a('v_lshlrev_b32 v15, 9, v15')
    a('v_lshl_add_u32 v15, v13, 2, v15')
    a('s_lshl_b32 s88, s3, 6')
    a('v_add_u32 v15, s88, v15')
    HR = 200
    for rb in range(3):
        for r in range(4):
            off = (16 * rb + r) * 512
            a(f's_mov_b32 s89, {off}')
            a(f'buffer_load_dword v{HR+4*rb+r}, v15, s[56:59], s89 offen')
    stamp(a, 5, dbg)
    TA = 176
    FR = [212, 224]
    a('v_xor_b32 v11, v14, v13')
    a('v_lshlrev_b32 v11, 4, v11')
    for rb in range(3):
        a(f'v_add_u32 v8, {16*rb}, v13')
        a('v_mul_u32_u24 v9, 43, v8')
        a('v_lshrrev_b32 v9, 8, v9')
        a('v_mul_u32_u24 v10, 6, v9')
        a('v_sub_u32 v10, v8, v10')
        a('v_add_u32 v12, 1, v9')
        a('v_lshrrev_b32 v12, 1, v12')
        a('v_lshlrev_b32 v12, 8, v12')
        a('v_lshl_add_u32 v9, v9, 13, v12')
        a('v_lshl_add_u32 v9, v10, 9, v9')
        a(f'v_add_u32 v{2+rb}, v9, v11')
    def rd_h(ksp):
        off = (256 if ksp >= 4 else 0); fr = FR[ksp % 2]
        for rb in range(3):
            a(f'v_xor_b32 v12, {(4*ksp % 16)*16}, v{2+rb}')
            a(f'ds_read_b128 {vr(fr+4*rb,4)}, v12 offset:{off}')
    def rd_m(ksp):
        off = (256 if ksp >= 4 else 0); fr = FR[ksp % 2]
        a(f'v_xor_b32 v12, {(4*ksp % 16)*16}, v11')
        for rb in range(3):
            a(f'ds_read_b128 {vr(fr+4*rb,4)}, v12 offset:{off + rb*8192}')
    rd_h(0)
    for ksp in range(8):
        fr = FR[ksp % 2]
        if ksp < 7:
            rd_h(ksp + 1)
            a(f's_waitcnt vmcnt({28 + 14 - 2*ksp}) lgkmcnt(3)')
        else:
            a(f's_waitcnt vmcnt({28 + 14 - 2*ksp}) lgkmcnt(0)')
        for cb in range(2):
            wreg = vr(WH + 4 * (2 * ksp + cb), 4)
            for rb in range(3):
                d = vr(TA + 8 * rb + 4 * cb, 4)
                c = '0' if ksp == 0 else d
                a(f'v_mfma_f32_16x16x32_bf16 {d}, {vr(fr+4*rb,4)}, {wreg}, {c}')
    a('v_lshl_add_u32 v11, v13, 9, v11')
    a(f'v_add_u32 v11, {MACC}, v11')
    a('s_waitcnt lgkmcnt(0)')
    a('s_barrier')
    rd_m(0)
    for ksp in range(8):
        fr = FR[ksp % 2]
        if ksp < 7:
            rd_m(ksp + 1)
            a(f's_waitcnt vmcnt({12 + 14 - 2*ksp}) lgkmcnt(3)')
        else:
            a(f's_waitcnt vmcnt({12 + 14 - 2*ksp}) lgkmcnt(0)')
        for cb in range(2):
            wreg = vr(WM + 4 * (2 * ksp + cb), 4)
            for rb in range(3):
                d = vr(TA + 8 * rb + 4 * cb, 4)
                a(f'v_mfma_f32_16x16x32_bf16 {d}, {vr(fr+4*rb,4)}, {wreg}, {d}')
    stamp(a, 6, dbg)
    TT = 16
    xs = [TA + i for i in range(24)]
    for i, x in enumerate(xs): a(f'v_mul_f32 v{TT+i}, s92, v{x}')
    for i in range(24): a(f'v_exp_f32 v{TT+i}, v{TT+i}')
    for i in range(24): a(f'v_add_f32 v{TT+i}, 1.0, v{TT+i}')
    for i in range(24): a(f'v_rcp_f32 v{TT+i}, v{TT+i}')
    for i in range(12): a(f'v_pk_mul_f32 {vr(TA+2*i,2)}, {vr(TA+2*i,2)}, {vr(TT+2*i,2)}')
    a('s_waitcnt vmcnt(0)')
    for rb in range(3):
        for r in range(4):
            h = HR + 4 * rb + r
            a(f'v_lshlrev_b32 v{TT+8*rb+r}, 16, v{h}')
            a(f'v_and_b32 v{TT+8*rb+4+r}, 0xffff0000, v{h}')
    for i in range(12): a(f'v_pk_add_f32 {vr(TA+2*i,2)}, {vr(TA+2*i,2)}, {vr(TT+2*i,2)}')
    for rb in range(3):
        for r in range(4):
            a(f'v_cvt_pk_bf16_f32 v{HR+4*rb+r}, v{TA+8*rb+r}, v{TA+8*rb+4+r}')
    for rb in range(3):
        if rb == 2:
            a('s_mov_b32 exec_hi, 0')
        for r in range(4):
            a(f's_mov_b32 s89, {(16 * rb + r) * 512}')
            a(f'buffer_store_dword v{HR+4*rb+r}, v15, s[60:63], s89 offen')
    a('s_mov_b64 exec, -1')
    stamp(a, 7, dbg)
    stamp(a, 9, dbg, 252, 's_memtime')
    a('s_cmp_ge_u32 s3, 2')
    a('s_cbranch_scc1 k2_done')
    a('v_cmp_gt_u32 vcc, 120, v0')
    a('s_and_saveexec_b64 s[90:91], vcc')
    a('s_cbranch_execz k2_done')
    a('v_mul_u32_u24 v16, 21846, v0')
    a('v_lshrrev_b32 v16, 16, v16')
    a('v_mul_u32_u24 v17, 3, v16')
    a('v_sub_u32 v17, v0, v17')
    a('v_lshrrev_b32 v18, 3, v16')
    a('v_mul_u32_u24 v18, 24, v18')
    a('v_and_b32 v19, 1, v16')
    a('v_mul_u32_u24 v19, 12, v19')
    a('v_add_u32 v18, v18, v19')
    a('v_bfe_u32 v19, v16, 1, 2')
    a('v_mul_u32_u24 v19, 3, v19')
    a('v_add3_u32 v18, v18, v19, v17')
    a('v_lshlrev_b32 v18, 2, v18')
    a(f'v_add_u32 v18, {PACC}, v18')
    a('ds_read_b32 v16, v18')
    a('s_mul_i32 s88, s2, 240')
    a('v_lshlrev_b32 v13, 1, v0')
    a('buffer_load_ushort v20, v13, s[52:55], s88 offen')
    a('s_waitcnt vmcnt(0) lgkmcnt(0)')
    a('v_lshlrev_b32 v20, 16, v20')
    a('v_add_f32 v16, v16, v20')
    a(f'v_cvt_pk_bf16_f32 v16, v16, v{V_Z}')
    a('s_add_u32 s88, s88, 5120000')
    a('buffer_store_short v16, v13, s[60:63], s88 offen')
    a.label('k2_done')
    a('s_endpgm')
    for x in DEFER: a(x)
    DEFER.clear()

if __name__ == '__main__':
    from gen import build, gen_k1, K1_LDS
    dbg = len(sys.argv) > 2 and sys.argv[2] == 'dbg'
    ks = [('k1_prep_kernel', 256, 256, K1_LDS, lambda a: gen_k1(a, dbg), 256),
          ('k2_main_kernel', T_, NW * 64, K2_LDS, lambda a: gen_k2(a, dbg), 256)]
    build(ks, sys.argv[1])
    print('K2_LDS', K2_LDS, file=sys.stderr)
```
